```python
import torch

def _softmax(x, axis=-1):
    return torch.softmax(x, dim=axis)
def _gelu(x):
    return torch.nn.functional.gelu(x, approximate="tanh")
def _silu(x):
    return torch.nn.functional.silu(x)
def _sigmoid(x):
    return torch.sigmoid(x)
def _layernorm(x, axis=-1, eps=1e-5):
    m = x.mean(dim=axis, keepdim=True)
    v = x.var(dim=axis, keepdim=True, unbiased=False)
    return (x - m) / torch.sqrt(v + eps)
def _scatter_add(tgt, idx, src, axis=0):
    return tgt.clone().index_add_(axis, idx, src)
def _segment_sum(src, seg, n):
    out = torch.zeros((n,) + src.shape[1:], dtype=src.dtype)
    return out.index_add_(0, seg, src)
def _pad(x, pw):
    flat = tuple(v for pair in reversed(pw) for v in pair)
    return torch.nn.functional.pad(x, flat)

kernel_name = 'parallel_sum__linear_attn_block__dense_activation_relu__prompt'

def setup_inputs():

    _w = (lambda a: (lambda t: t.to(torch.bfloat16) if t.is_floating_point() else t)(torch.as_tensor(a)))
    def _A_setup():
        B, S, D = 1, 2048, 640
        return {
            "x": _w((lambda *s: torch.randn(*s, dtype=torch.bfloat16) * 0.05)(B, S, D)),
            "wqkv": _w((lambda *s: torch.randn(*s, dtype=torch.bfloat16) * 0.2)(D, 3 * D)),
            "wo": _w((lambda *s: torch.randn(*s, dtype=torch.bfloat16) * 0.2)(D, D)),
        }
    _A_in = _A_setup()

    def _B_setup():
        B, S, D, Dff = 1, 2048, 640, 1536
        return {
            "x": _w((lambda *s: torch.randn(*s, dtype=torch.bfloat16) * 0.05)(B, S, D)),
            "w1": _w((lambda *s: torch.randn(*s, dtype=torch.bfloat16) * 0.05)(D, Dff)),
            "w2": _w((lambda *s: torch.randn(*s, dtype=torch.bfloat16) * 0.05)(Dff, D)),
        }
    _B_in = _B_setup()

    return {
        "A_x": _A_in["x"],
        "A_wqkv": _A_in["wqkv"],
        "A_wo": _A_in["wo"],
        "B_x": _B_in["x"],
        "B_w1": _B_in["w1"],
        "B_w2": _B_in["w2"],
    }

def reference(A_x, A_wqkv, A_wo, B_x, B_w1, B_w2):
    def _A_ref(x, wqkv, wo):
        B, S, D = x.shape
        H = 32; Dh = D // H
        qkv = (lambda x, *d: x.permute(*d))((x @ wqkv).reshape(B, S, 3, H, Dh), 2, 0, 3, 1, 4)
        q, k, v = qkv[0], qkv[1], qkv[2]
        phi = lambda t: torch.where(t > 0, t + 1, torch.exp(t)) + 1e-6
        pq, pk = phi(q), phi(k)
        kv = torch.einsum("bhsd,bhse->bhde", pk, v)
        z = torch.einsum("bhsd->bhd", pk)
        num = torch.einsum("bhqd,bhde->bhqe", pq, kv)
        den = torch.einsum("bhqd,bhd->bhq", pq, z)[..., None] + 1e-6
        o = num / den
        return (lambda x, *d: x.permute(*d))(o, 0, 2, 1, 3).reshape(B, S, D) @ wo

    def _B_ref(x, w1, w2):
        h = torch.einsum("bsd,df->bsf", x, w1)
        zero = torch.zeros_like(h)
        h = torch.maximum(h, zero)
        return torch.einsum("bsf,fd->bsd", h, w2)

    x = A_x
    xn = _layernorm(x, axis=-1)
    return x + _A_ref(xn, A_wqkv, A_wo) + _B_ref(xn, B_w1, B_w2)
```

```python
import sys, struct

NAME = "parallel_sum__linear_attn_block__dense_activation_relu__prompt"

ACT_OFF = 0
W2R_OFF = 0x900000
KVP_OFF = 0xC00000
RSTD_OFF = 0xD00000
WS_SIZE = 0xE00000
OOB = 0x40000000

def f32bits(x):
    return struct.unpack("<I", struct.pack("<f", x))[0]

LOG2E = 1.4426950408889634
LN2 = 0.6931471805599453


class Em:
    def __init__(self):
        self.L = []
        self.vm = []

    def __call__(self, s):
        for line in s.split("\n"):
            self.L.append("    " + line)

    def label(self, s):
        self.L.append(s + ":")

    def c(self, s):
        self.L.append("    ; " + s)

    def vmop(self, s, tag):
        self(s)
        self.vm.append(tag)

    def vm_n(self, tags):
        last = -1
        for k, t in enumerate(self.vm):
            if t in tags:
                last = k
        n = len(self.vm) - 1 - last
        self.vm = self.vm[last + 1:]
        assert n <= 63, n
        return n

    def wait_vm(self, tags, lgkm=None):
        n = self.vm_n(tags)
        if lgkm is None:
            self(f"s_waitcnt vmcnt({n})")
        else:
            self(f"s_waitcnt vmcnt({n}) lgkmcnt({lgkm})")

    def text(self):
        return "\n".join(self.L) + "\n"


S_X, S_WQKV, S_W1, S_WS, S_DBG, S_RP, S_CODE = 8, 12, 16, 20, 24, 28, 32
sW, sI, sG, sT0, sT1, sT2, sT3 = 36, 37, 38, 39, 40, 41, 42
sXoff, sWoffA, sWoffB = 60, 61, 62
sXlds, sWlds = 63, 64
sC, sLn2, sHiMask = 65, 66, 67
sACT = 68
sHIm = 70
sL16m = 72
sKVP = 74
vLane = 1
vXsrc = 2
vWsrcA = 6
vWsrcB = 11
vXrd = 15
vWrdA = 19
vWrdB = 23
vSt = 27
vL31x4 = 28
vHi = 29
vT = 30
vSel = 36
vXext = 40
vWext = 44
vM = 48
vRstd = 49
vSd = 50
vRl = 51
vT2 = 52
vAcc = 64
vWf = 144
vE = 184
aX = 0
aGram = 160
aRow = 176
aCs = 180

X_LDS = 0
W_LDS = 65536


def r4(b):
    return f"v[{b}:{b+3}]"


def k1_path(e, typ):
    KV = (typ == "KV")
    SLOT = 20480 if KV else 16384
    MISC = W_LDS + 4 * SLOT
    CS_LDS = MISC
    KVT_LDS = MISC + 4096
    KVT_P = 176
    lab = "KV" if KV else "Q"

    e.label(f"L_{lab}_path")
    e(f"s_getpc_b64 s[{S_CODE}:{S_CODE+1}]")
    e.label(f"L_{lab}_pc")
    e(f"s_mov_b32 s{S_CODE+2}, L_{lab}_end-L_{lab}_pc")
    e(f"s_mov_b32 s{S_CODE+3}, 0x00020000")
    e(f"v_lshlrev_b32 v{vT}, 7, v0")
    e.vmop(f"buffer_load_dword v255, v{vT}, s[{S_CODE}:{S_CODE+3}], 0 offen", "pf")

    e(f"v_lshrrev_b32 v{vT}, 3, v{vLane}")
    e(f"v_and_b32 v{vT+1}, 7, v{vLane}")
    e(f"v_lshrrev_b32 v{vT+2}, 1, v{vT}")
    e(f"v_xor_b32 v{vT+1}, v{vT+1}, v{vT+2}")
    e(f"v_xor_b32 v{vT+2}, 4, v{vT+1}")
    e(f"v_mul_u32_u24 v{vT}, 1280, v{vT}")
    e(f"v_lshl_add_u32 v{vXsrc}, v{vT+1}, 4, v{vT}")
    e(f"v_lshl_add_u32 v{vXsrc+1}, v{vT+2}, 4, v{vT}")
    e(f"v_add_u32 v{vXsrc+1}, {8*1280}, v{vXsrc+1}")
    e(f"v_add_u32 v{vXsrc+2}, {16*1280}, v{vXsrc}")
    e(f"v_add_u32 v{vXsrc+3}, {16*1280}, v{vXsrc+1}")
    e(f"s_lshl_b32 s{sT0}, s{sI}, 2")
    e(f"s_add_u32 s{sT0}, s{sT0}, s{sW}")
    e(f"s_mul_i32 s{sXoff}, s{sT0}, {32*1280}")
    e(f"s_lshl_b32 s{sXlds}, s{sW}, 14")

    if KV:
        e(f"s_mul_i32 s{sT0}, s{sG}, 160")
        for u in range(5):
            d = vWsrcA + u
            e(f"v_add_u32 v{vT}, {64*u}, v{vLane}")
            e(f"v_mul_u32_u24 v{vT+1}, 3277, v{vT}")
            e(f"v_lshrrev_b32 v{vT+1}, 16, v{vT+1}")
            e(f"v_mul_u32_u24 v{vT+2}, 20, v{vT+1}")
            e(f"v_sub_u32 v{vT+2}, v{vT}, v{vT+2}")
            e(f"v_mov_b32 v{vT+3}, 1280")
            e(f"v_mov_b32 v{vT+4}, 2528")
            e(f"v_cmp_lt_u32 vcc, 9, v{vT+2}")
            e(f"v_mov_b32 v{vT+5}, 2368")
            e(f"v_mul_u32_u24 v{vT+1}, 3840, v{vT+1}")
            e(f"v_cndmask_b32 v{vT+3}, v{vT+3}, v{vT+4}, vcc")
            e(f"v_cmp_lt_u32 vcc, 11, v{vT+2}")
            e(f"v_lshl_add_u32 v{vT+1}, v{vT+2}, 4, v{vT+1}")
            e(f"s_nop 0")
            e(f"v_cndmask_b32 v{vT+3}, v{vT+3}, v{vT+5}, vcc")
            e(f"v_add3_u32 v{d}, v{vT+1}, v{vT+3}, s{sT0}")
        e(f"s_mul_i32 s{sWoffA}, s{sW}, {16*3840}")
        e(f"s_mul_i32 s{sWlds}, s{sW}, 5120")
        nA, nB = 5, 4
        rowsB = 128
    else:
        e(f"v_lshrrev_b32 v{vT}, 2, v{vLane}")
        e(f"v_and_b32 v{vT}, 7, v{vT}")
        e(f"v_mul_u32_u24 v{vT}, 3072, v{vT}")
        e(f"v_and_b32 v{vT+1}, 3, v{vLane}")
        e(f"v_lshl_add_u32 v{vT}, v{vT+1}, 4, v{vT}")
        e(f"v_lshl_add_u32 v{vT}, v{vHi}, 6, v{vT}")
        e(f"s_mul_i32 s{sT0}, s{sG}, 384")
        e(f"s_add_u32 s{sT0}, s{sT0}, 128")
        e(f"v_add_u32 v{vWsrcA}, s{sT0}, v{vT}")
        e(f"v_add_u32 v{vWsrcA+1}, 128, v{vWsrcA}")
        e(f"v_add_u32 v{vWsrcA+2}, {8*3072}, v{vWsrcA}")
        e(f"v_add_u32 v{vWsrcA+3}, {8*3072+128}, v{vWsrcA}")
        e(f"s_mul_i32 s{sWoffA}, s{sW}, {16*3072}")
        e(f"s_lshl_b32 s{sWlds}, s{sW}, 12")
        nA, nB = 4, 3
        rowsB = 64

    e(f"s_lshl_b32 s{sT0}, s{sW}, 8")
    e(f"s_add_u32 s{sT0}, s{sT0}, s2")
    e(f"s_lshr_b32 s{sT1}, s{sT0}, 3")
    e(f"s_and_b32 s{sT2}, s{sT0}, 7")
    e(f"s_sub_u32 s76, s{sT1}, 48")
    e(f"s_mul_i32 s77, s76, 13108")
    e(f"s_lshr_b32 s77, s77, 16")
    e(f"s_mul_i32 s78, s77, 5")
    e(f"s_sub_u32 s78, s76, s78")
    e(f"s_lshl_b32 s79, s78, 1")
    e(f"s_cmp_lt_u32 s78, 3")
    e(f"s_cselect_b32 s80, 0, 1")
    e(f"s_sub_u32 s79, s79, s80")
    e(f"s_add_u32 s80, s79, 1")
    e(f"s_cmp_eq_u32 s78, 2")
    e(f"s_cselect_b32 s80, 9, s80")
    e(f"s_mul_i32 s77, s77, 10")
    e(f"s_add_u32 s79, s79, s77")
    e(f"s_add_u32 s80, s80, s77")
    e(f"s_lshl_b32 s76, s{sT1}, 1")
    e(f"s_add_u32 s77, s76, 1")
    e(f"s_cmp_lt_u32 s{sT1}, 48")
    e(f"s_cselect_b32 s79, s76, s79")
    e(f"s_cselect_b32 s80, s77, s80")
    e(f"s_waitcnt lgkmcnt(0)")
    e(f"s_cselect_b32 s{S_RP}, s54, s48")
    e(f"s_cselect_b32 s{S_RP+1}, s55, s49")
    e(f"s_mov_b32 s{S_RP+2}, {640*1280}")
    e(f"s_cselect_b32 s{S_RP+2}, {1536*1280}, s{S_RP+2}")
    e(f"s_mov_b32 s{S_RP+3}, 0x00020000")
    for (srd, p, sz) in [(S_X, 44, 2048*1280), (S_WQKV, 46, 640*3840), (S_W1, 52, 640*3072),
                         (S_WS, 58, WS_SIZE), (S_DBG, 56, 256)]:
        e(f"s_mov_b32 s{srd}, s{p}")
        e(f"s_mov_b32 s{srd+1}, s{p+1}")
        e(f"s_mov_b32 s{srd+2}, {sz}")
        e(f"s_mov_b32 s{srd+3}, 0x00020000")

    SW_A = S_WQKV if KV else S_W1
    SW_B = S_W1 if KV else S_WQKV
    stepA = 64 * (3840 if KV else 3072)
    stepB = rowsB * (3072 if KV else 3840)
    nstB = 640 // rowsB
    stages = [("A", s) for s in range(10)] + [("B", s) for s in range(nstB)]

    def issue_stage(gs, out=None):
        groups = []
        if gs >= len(stages):
            return groups
        ph, s = stages[gs]
        slot = gs % 4
        if ph == "A":
            for b in range(4):
                groups.append((f"s_add_u32 m0, s{sXlds}, {X_LDS + slot*4096 + b*1024}",
                               f"buffer_load_dwordx4 v{vXsrc+b}, s[{S_X}:{S_X+3}], s{sXoff} offen lds", ("st", gs)))
            for u in range(nA):
                groups.append((f"s_add_u32 m0, s{sWlds}, {W_LDS + slot*SLOT + u*1024}",
                               f"buffer_load_dwordx4 v{vWsrcA+u}, s[{SW_A}:{SW_A+3}], s{sWoffA} offen lds", ("st", gs)))
            groups.append((f"s_add_u32 s{sXoff}, s{sXoff}, 128", f"s_add_u32 s{sWoffA}, s{sWoffA}, {stepA}", None))
        else:
            for u in range(nB):
                groups.append((f"s_add_u32 m0, s75, {W_LDS + slot*SLOT + u*1024}",
                               f"buffer_load_dwordx4 v{vWsrcB+u}, s[{SW_B}:{SW_B+3}], s{sWoffB} offen lds", ("st", gs)))
            groups.append((f"s_add_u32 s{sWoffB}, s{sWoffB}, {stepB}", "s_nop 0", None))
        return groups

    def emit_group(g):
        a, b, tag = g
        e(a)
        if tag is None:
            e(b)
        else:
            e("s_nop 0")
            e.vmop(b, tag)

    for gs in range(2):
        for g in issue_stage(gs):
            emit_group(g)

    RP_LDS = W_LDS + 3 * SLOT
    e(f"s_mul_i32 s76, s{sT2}, 160")
    e(f"s_mul_i32 s79, s79, {16*1280}")
    e(f"s_mul_i32 s80, s80, {16*1280}")
    e(f"s_sub_u32 s80, s80, {16*1280}")
    e(f"s_add_u32 s79, s79, s76")
    e(f"s_add_u32 s80, s80, s76")
    e(f"s_cmp_lt_u32 s{sT0}, 544")
    e(f"s_cselect_b32 s79, s79, {OOB}")
    e(f"s_cselect_b32 s80, s80, {OOB}")
    e(f"s_mul_i32 s77, s{sW}, 5120")
    e(f"s_add_u32 s77, s77, {RP_LDS}")
    e(f"s_mul_i32 s78, s{sT2}, 68")
    e(f"s_add_u32 s78, s78, s{sT1}")
    e(f"s_mul_i32 s78, s78, 5120")
    e(f"s_add_u32 s78, s78, {W2R_OFF}")
    e(f"s_cmp_lt_u32 s{sT0}, 544")
    e(f"s_cselect_b32 s78, s78, {OOB}")
    e(f"v_mov_b32 v{vT+3}, s79")
    e(f"v_mov_b32 v{vT+4}, s80")
    for u in range(5):
        e(f"v_add_u32 v{vT}, {64*u}, v{vLane}")
        e(f"v_mul_u32_u24 v{vT+1}, 6554, v{vT}")
        e(f"v_lshrrev_b32 v{vT+1}, 16, v{vT+1}")
        e(f"v_mul_u32_u24 v{vT+2}, 10, v{vT+1}")
        e(f"v_sub_u32 v{vT+2}, v{vT}, v{vT+2}")
        e(f"v_cmp_lt_u32 vcc, 15, v{vT+1}")
        e(f"v_mul_u32_u24 v{vT+1}, 1280, v{vT+1}")
        e(f"v_lshl_add_u32 v{vT+1}, v{vT+2}, 4, v{vT+1}")
        e(f"v_cndmask_b32 v{vT+5}, v{vT+3}, v{vT+4}, vcc")
        e(f"s_add_u32 m0, s77, {u*1024}")
        e(f"v_add_u32 v{vT+1}, v{vT+1}, v{vT+5}")
        e.vmop(f"buffer_load_dwordx4 v{vT+1}, s[{S_RP}:{S_RP+3}], 0 offen lds", "rp")
    for g in issue_stage(2):
        emit_group(g)

    if KV:
        e(f"v_lshrrev_b32 v{vT}, 2, v{vLane}")
        e(f"v_and_b32 v{vT}, 7, v{vT}")
        e(f"v_mul_u32_u24 v{vT}, 3072, v{vT}")
        e(f"v_and_b32 v{vT+1}, 3, v{vLane}")
        e(f"v_lshl_add_u32 v{vT}, v{vT+1}, 4, v{vT}")
        e(f"v_lshl_add_u32 v{vT}, v{vHi}, 6, v{vT}")
        e(f"s_mul_i32 s{sT3}, s{sG}, 384")
        e(f"v_add_u32 v{vWsrcB}, s{sT3}, v{vT}")
        for u in range(1, 4):
            e(f"v_add_u32 v{vWsrcB+u}, {u*8*3072}, v{vWsrcB}")
        e(f"s_mul_i32 s{sWoffB}, s{sW}, {32*3072}")
        e(f"s_lshl_b32 s75, s{sW}, 12")
    else:
        e(f"s_mul_i32 s{sT3}, s{sG}, 160")
        for u in range(3):
            e(f"v_add_u32 v{vT}, {64*u}, v{vLane}")
            e(f"v_mul_u32_u24 v{vT+1}, 5462, v{vT}")
            e(f"v_lshrrev_b32 v{vT+1}, 16, v{vT+1}")
            e(f"v_mul_u32_u24 v{vT+2}, 12, v{vT+1}")
            e(f"v_sub_u32 v{vT+2}, v{vT}, v{vT+2}")
            e(f"v_cmp_lt_u32 vcc, 9, v{vT+2}")
            e(f"v_mul_u32_u24 v{vT+1}, 3840, v{vT+1}")
            e(f"v_lshl_add_u32 v{vT+1}, v{vT+2}, 4, v{vT+1}")
            e(f"v_add_u32 v{vT+1}, s{sT3}, v{vT+1}")
            e(f"v_mov_b32 v{vT+3}, {OOB}")
            e(f"v_cndmask_b32 v{vWsrcB+u}, v{vT+1}, v{vT+3}, vcc")
        e(f"s_mul_i32 s{sWoffB}, s{sW}, {16*3840}")
        e(f"s_mul_i32 s75, s{sW}, 3072")

    e(f"v_and_b32 v{vT}, 31, v{vLane}")
    e(f"v_lshrrev_b32 v{vT+1}, 1, v{vT}")
    e(f"v_and_b32 v{vT+1}, 7, v{vT+1}")
    e(f"v_xor_b32 v{vT+1}, v{vT+1}, v{vHi}")
    e(f"v_lshlrev_b32 v{vT}, 7, v{vT}")
    e(f"v_add_u32 v{vT}, s{sXlds}, v{vT}")
    e(f"v_lshrrev_b32 v{vT+2}, 2, v{vLane}")
    e(f"v_and_b32 v{vT+2}, 3, v{vT+2}")
    e(f"v_and_b32 v{vT+3}, 3, v{vLane}")
    e(f"v_lshlrev_b32 v{vT+3}, 3, v{vT+3}")
    e(f"v_and_b32 v{vT+4}, 16, v{vLane}")
    e(f"v_lshl_add_u32 v{vT+3}, v{vT+4}, 1, v{vT+3}")
    e(f"v_lshl_add_u32 v{vT+4}, v{vHi}, 3, v{vT+2}")
    if KV:
        e(f"v_mul_u32_u24 v{vT2}, 320, v{vT+4}")
        e(f"v_add_u32 v{vT2}, v{vT2}, v{vT+3}")
        e(f"v_lshl_add_u32 v{vT2+1}, v{vT+2}, 6, v{vT+3}")
        e(f"v_lshl_add_u32 v{vT2+1}, v{vHi}, 10, v{vT2+1}")
        kkA, kkB = 16*320, 2048
    else:
        e(f"v_lshl_add_u32 v{vT2}, v{vT+2}, 6, v{vT+3}")
        e(f"v_lshl_add_u32 v{vT2}, v{vHi}, 11, v{vT2}")
        e(f"v_mul_u32_u24 v{vT2+1}, 192, v{vT+4}")
        e(f"v_add_u32 v{vT2+1}, v{vT2+1}, v{vT+3}")
        kkA, kkB = 4096, 16*192
    for p in range(4):
        e(f"s_add_u32 s{sT0}, s{sW}, {p}")
        e(f"s_and_b32 s{sT0}, s{sT0}, 3")
        e(f"s_lshl_b32 s{sT1}, s{sT0}, 1")
        e(f"v_xor_b32 v{vT+5}, s{sT1}, v{vT+1}")
        e(f"v_lshl_add_u32 v{vXrd+p}, v{vT+5}, 4, v{vT}")
        e(f"s_mul_i32 s{sT1}, s{sT0}, {kkA}")
        e(f"s_add_u32 s{sT1}, s{sT1}, {W_LDS}")
        e(f"v_add_u32 v{vWrdA+p}, s{sT1}, v{vT2}")
        e(f"s_mul_i32 s{sT1}, s{sT0}, {kkB}")
        e(f"s_add_u32 s{sT1}, s{sT1}, {W_LDS}")
        e(f"v_add_u32 v{vWrdB+p}, s{sT1}, v{vT2+1}")
    e(f"v_lshrrev_b32 v{vT}, 4, v{vLane}")
    e(f"v_xor_b32 v{vT}, v{vT}, v{vLane}")
    e(f"v_and_b32 v{vT}, 1, v{vT}")
    e(f"v_cmp_eq_u32 vcc, 0, v{vT}")
    e(f"v_mov_b32 v{vT+1}, 0x3f803f80")
    e(f"s_nop 0")
    for r in range(4):
        e(f"v_cndmask_b32 v{vSel+r}, 0, v{vT+1}, vcc")
    e(f"v_and_b32 v{vT}, 15, v{vLane}")
    e(f"v_lshlrev_b32 v{vT}, 4, v{vT}")
    e(f"v_lshl_add_u32 v{vT}, v{vHi}, 8, v{vT}")
    e(f"v_and_b32 v{vT+1}, 16, v{vLane}")
    e(f"v_lshl_add_u32 v{vT}, v{vT+1}, 6, v{vT}")
    e(f"s_and_b32 s{sT0}, s{sW}, 1")
    e(f"s_lshl_b32 s{sT0}, s{sT0}, 11")
    e(f"v_add_u32 v{vSt}, s{sT0}, v{vT}")
    e(f"s_lshr_b32 s{sT0}, s{sW}, 1")
    e(f"s_lshl_b32 s{sT1}, s{sI}, 1")
    e(f"s_add_u32 s{sT0}, s{sT0}, s{sT1}")
    e(f"s_mul_i32 s{sACT}, s{sT0}, {68*4096}")
    e(f"s_mov_b32 s{sC}, {f32bits(1e-6/LN2):#x}")
    e(f"s_mov_b32 s{sLn2}, {f32bits(LN2):#x}")
    e(f"s_mov_b32 s{sHiMask}, 0xffff0000")
    e(f"s_mov_b32 s{sHIm}, 0")
    e(f"s_mov_b32 s{sHIm+1}, -1")
    e(f"s_mov_b32 s{sL16m}, 0xffff0000")
    e(f"s_mov_b32 s{sL16m+1}, 0xffff0000")

    e(f"v_lshrrev_b32 v{vT}, 4, v{vLane}")
    e(f"v_and_b32 v{vT}, 1, v{vT}")
    e(f"v_lshl_add_u32 v{vT}, v{vT}, 2, v{vT+2}")
    e(f"v_lshl_add_u32 v{vT}, v{vHi}, 4, v{vT}")
    e(f"v_mul_u32_u24 v{vT}, 160, v{vT}")
    e(f"v_and_b32 v{vT+1}, 3, v{vLane}")
    e(f"v_lshl_add_u32 v{vT}, v{vT+1}, 3, v{vT}")
    e(f"v_add_u32 v{vT}, s77, v{vT}")
    e(f"v_lshlrev_b32 v{vT+1}, 4, v{vLane}")
    e(f"v_add_u32 v{vT+3}, 4096, v{vT+1}")
    e.wait_vm({"rp", "pf"})
    for nu in range(5):
        for s in range(2):
            e(f"ds_read_b64_tr_b16 v[{vE+4*nu+2*s}:{vE+4*nu+2*s+1}], v{vT} offset:{32*nu+1280*s}")
    e("s_waitcnt lgkmcnt(0)")
    for nu in range(5):
        if nu < 4:
            e.vmop(f"buffer_store_dwordx4 {r4(vE+4*nu)}, v{vT+1}, s[{S_WS}:{S_WS+3}], s78 offen offset:{1024*nu}", "rps")
        else:
            e.vmop(f"buffer_store_dwordx4 {r4(vE+4*nu)}, v{vT+3}, s[{S_WS}:{S_WS+3}], s78 offen", "rps")

    def tr_imm(ph, slot, pgrp, t, s):
        if ph == "A":
            if KV:
                return slot*SLOT + s*1280 + t*64
            return slot*SLOT + (t >> 1)*1024 + (t & 1)*512 + s*256
        if KV:
            return slot*SLOT + pgrp*8192 + t*512 + s*256
        return slot*SLOT + s*768 + t*64

    def run_pass(ph, T, corient, accbase, csbase, gs0):
        nst = 10 if ph == "A" else nstB
        kps = 4 if ph == "A" else rowsB // 16
        vrd = vWrdA if ph == "A" else vWrdB
        bias = [0]
        pend_dma = []

        def mfmas(n):
            out = []
            xs = f"a[{aX+4*n}:{aX+4*n+3}]"
            for t in range(T):
                wf = r4(vWf + (n % 2)*20 + 4*t)
                acc = f"v[{accbase+16*t}:{accbase+16*t+15}]"
                cin = "0" if n == 0 else acc
                if corient:
                    out.append(f"v_mfma_f32_32x32x16_bf16 {acc}, {xs}, {wf}, {cin}")
                else:
                    out.append(f"v_mfma_f32_32x32x16_bf16 {acc}, {wf}, {xs}, {cin}")
                if n % 4 == 0:
                    cs = f"a[{csbase+4*t}:{csbase+4*t+3}]"
                    out.append(f"v_mfma_f32_16x16x32_bf16 {cs}, {r4(vSel)}, {wf}, {'0' if n == 0 else cs}")
            if ph == "A":
                g = f"a[{aGram}:{aGram+15}]"
                out.append(f"v_mfma_f32_32x32x16_bf16 {g}, {xs}, {xs}, {'0' if n == 0 else g}")
                rw = f"a[{aRow}:{aRow+3}]"
                out.append(f"v_mfma_f32_16x16x32_bf16 {rw}, {r4(vSel)}, {xs}, {'0' if n == 0 else rw}")
            return out

        def reads(n):
            st, p = divmod(n, kps)
            slot = (gs0 + st) % 4
            out = []
            if ph == "A":
                out.append(f"ds_read_b128 a[{aX+4*n}:{aX+4*n+3}], v{vXrd+(p & 3)} offset:{slot*4096}")
            for t in range(T):
                for s in range(2):
                    imm = tr_imm(ph, slot, p >> 2, t, s) - bias[0]
                    assert 0 <= imm < 65536, imm
                    d = vWf + (n % 2)*20 + 4*t + 2*s
                    out.append(f"ds_read_b64_tr_b16 v[{d}:{d+1}], v{vrd+(p & 3)} offset:{imm}")
            return out

        NK = 40
        for n in range(NK + 1):
            st, p = divmod(n, kps)
            if n < NK and p == 0:
                gs = gs0 + st
                e.c(f"--- pass {ph} stage {st} ---")
                e.wait_vm({("st", gs)}, lgkm=0)
                e("s_barrier")
                pend_dma = issue_stage(gs + 3)
                slot = gs % 4
                want = 2*SLOT if (slot >= 2 and tr_imm(ph, 3, kps//4 - 1, T-1, 1) >= 65536) else 0
                if want != bias[0]:
                    for q in range(4):
                        if want > bias[0]:
                            e(f"v_add_u32 v{vrd+q}, {want-bias[0]}, v{vrd+q}")
                        else:
                            e(f"v_subrev_u32 v{vrd+q}, {bias[0]-want}, v{vrd+q}")
                    bias[0] = want
            else:
                e("s_waitcnt lgkmcnt(0)")
            rd = reads(n) if n < NK else []
            mf = mfmas(n - 1) if n > 0 else []
            if not mf:
                for r_ in rd:
                    e(r_)
            for k, m in enumerate(mf):
                e(m)
                for _ in range(4):
                    if rd:
                        e(rd.pop(0))
                if not rd and pend_dma:
                    emit_group(pend_dma.pop(0))
            for r_ in rd:
                e(r_)
            if p == kps - 1 or n == NK:
                while pend_dma:
                    emit_group(pend_dma.pop(0))

    def colsum_exchange(T, csbase):
        e("s_nop 7")
        e(f"v_and_b32 v{vT}, 15, v{vLane}")
        e(f"v_lshlrev_b32 v{vT}, 2, v{vT}")
        e(f"s_lshl_b32 s{sT0}, s{sW}, 10")
        e(f"v_add_u32 v{vT}, s{sT0}, v{vT}")
        e(f"v_add_u32 v{vT}, {CS_LDS}, v{vT}")
        for t in range(T):
            e(f"ds_write_b32 v{vT}, a{csbase+4*t} offset:{t*128}")
            e(f"ds_write_b32 v{vT}, a{csbase+4*t+1} offset:{t*128+64}")

    def ext_mfma(T, corient, accbase):
        e(f"v_add_u32 v{vT}, {CS_LDS}, v{vL31x4}")
        for t in range(T):
            for ww in range(4):
                e(f"ds_read_b32 v{vWf+4*t+ww}, v{vT} offset:{ww*1024+t*128}")
        e("s_waitcnt lgkmcnt(0)")
        for t in range(T):
            b = vWf + 4*t
            x = vWf + 20 + 4*t
            e(f"v_add_f32 v{b}, v{b}, v{b+1}")
            e(f"v_add_f32 v{b+2}, v{b+2}, v{b+3}")
            e(f"v_add_f32 v{b}, v{b}, v{b+2}")
            e(f"v_and_b32 v{b+1}, s{sHiMask}, v{b}")
            e(f"v_sub_f32 v{b+1}, v{b}, v{b+1}")
            e(f"v_lshrrev_b32 v{b}, 16, v{b}")
            e(f"v_and_or_b32 v{x}, v{b+1}, s{sHiMask}, v{b}")
            e(f"v_and_b32 v{b+2}, s{sHiMask}, v{b+1}")
            e(f"v_sub_f32 v{b+2}, v{b+1}, v{b+2}")
            e(f"v_lshrrev_b32 v{x+1}, 16, v{b+2}")
            e(f"v_mov_b32 v{x+2}, 0")
            e(f"v_mov_b32 v{x+3}, 0")
        e("s_nop 1")
        for t in range(T):
            x = vWf + 20 + 4*t
            acc = f"v[{accbase+16*t}:{accbase+16*t+15}]"
            if corient:
                e(f"v_mfma_f32_32x32x16_bf16 {acc}, {r4(vXext)}, {r4(x)}, {acc}")
            else:
                e(f"v_mfma_f32_32x32x16_bf16 {acc}, {r4(x)}, {r4(vXext)}, {acc}")
        e("s_nop 15")

    def ln_stats_write():
        e(f"v_and_b32 v{vT+1}, 31, v{vLane}")
        e(f"v_mul_u32_u24 v{vT+2}, 144, v{vT+1}")
        e(f"v_lshl_add_u32 v{vT+2}, v{vHi}, 4, v{vT+2}")
        e(f"v_add_u32 v{vT+2}, s{sXlds}, v{vT+2}")
        e("s_nop 7")
        for q in range(4):
            e(f"ds_write_b128 v{vT+2}, a[{aGram+4*q}:{aGram+4*q+3}] offset:{32*q}")
        e(f"v_and_b32 v{vT+3}, 15, v{vLane}")
        e(f"v_lshlrev_b32 v{vT+3}, 2, v{vT+3}")
        e(f"v_add_u32 v{vT+3}, s{sXlds}, v{vT+3}")
        e(f"ds_write_b32 v{vT+3}, a{aRow} offset:4608")
        e(f"ds_write_b32 v{vT+3}, a{aRow+1} offset:4672")

    def ln_stats_finish():
        e(f"v_mul_u32_u24 v{vT+2}, 148, v{vT+1}")
        e(f"v_add_u32 v{vT+2}, s{sXlds}, v{vT+2}")
        e(f"v_add_u32 v{vT+3}, s{sXlds}, v{vL31x4}")
        e(f"ds_read_b32 v{vT+4}, v{vT+2}")
        e(f"ds_read_b32 v{vT+5}, v{vT+3} offset:4608")
        e("s_waitcnt lgkmcnt(0)")
        e(f"v_mul_f32 v{vT+5}, {f32bits(1.0/640):#x}, v{vT+5}")
        e(f"v_mul_f32 v{vT+4}, {f32bits(1.0/640):#x}, v{vT+4}")
        e(f"v_fma_f32 v{vT+4}, -v{vT+5}, v{vT+5}, v{vT+4}")
        e(f"v_max_f32 v{vT+4}, 0, v{vT+4}")
        e(f"v_cvt_pk_bf16_f32 v{vT+2}, v{vT+5}, v{vT+4}")
        e(f"v_lshlrev_b32 v{vM}, 16, v{vT+2}")
        e(f"v_and_b32 v{vT+4}, s{sHiMask}, v{vT+2}")
        e(f"v_add_f32 v{vT+4}, {f32bits(1e-5):#x}, v{vT+4}")
        e(f"v_cvt_pk_bf16_f32 v{vT+4}, v{vT+4}, v{vT+4}")
        e(f"v_and_b32 v{vT+4}, s{sHiMask}, v{vT+4}")
        e(f"v_sqrt_f32 v{vT+4}, v{vT+4}")
        e("s_nop 0")
        e(f"v_cvt_pk_bf16_f32 v{vT+4}, v{vT+4}, v{vT+4}")
        e(f"v_and_b32 v{vSd}, s{sHiMask}, v{vT+4}")
        e(f"v_rcp_f32 v{vRstd}, v{vSd}")
        e("s_nop 0")
        e(f"v_mul_f32 v{vRl}, {f32bits(LOG2E):#x}, v{vRstd}")
        e(f"v_xor_b32 v{vT+2}, 0x80000000, v{vM}")
        e(f"v_lshrrev_b32 v{vT+4}, 16, v{vT+2}")
        e(f"v_or_b32 v{vT+2}, v{vT+2}, v{vT+4}")
        e(f"v_cndmask_b32 v{vXext}, v{vT+2}, 0, s[{sHIm}:{sHIm+1}]")
        e(f"v_cndmask_b32 v{vXext+1}, v{vT+4}, 0, s[{sHIm}:{sHIm+1}]")
        e(f"v_mov_b32 v{vXext+2}, 0")
        e(f"v_mov_b32 v{vXext+3}, 0")

    def h_epilogue(T, accbase, kappa_sgpr_expr):
        for t in range(T):
            a = accbase + 16*t
            o = vE + 8*(t % 4)
            for j in range(8):
                e(f"v_cvt_pk_bf16_f32 v{o+j}, v{a+2*j}, v{a+2*j+1}")
            for j in range(8):
                e(f"v_pk_max_i16 v{o+j}, v{o+j}, 0")
            e(f"s_add_u32 s{sT1}, s{sT0}, {t*4096}")
            e.vmop(f"buffer_store_dwordx4 {r4(o)}, v{vSt}, s[{S_WS}:{S_WS+3}], s{sT1} offen", "hst")
            e.vmop(f"buffer_store_dwordx4 {r4(o+4)}, v{vSt}, s[{S_WS}:{S_WS+3}], s{sT1} offen offset:512", "hst")

    def phi(dst, acc, rl, tmp):
        e(f"v_fma_f32 v{tmp}, v{acc}, v{rl}, s{sC}")
        e(f"v_exp_f32 v{tmp+1}, v{tmp} clamp")
        e(f"v_max_f32 v{tmp}, s{sC}, v{tmp}")
        e(f"v_fma_f32 v{dst}, v{tmp}, s{sLn2}, v{tmp+1}")

    if not KV:
        e(f"v_lshlrev_b32 v{vT}, 4, v0")
        e(f"v_add_u32 v{vT}, {KVT_LDS}, v{vT}")
        for r in range(4):
            e(f"v_mov_b32 v{vT+2+r}, 0")
        for q in range(5):
            e(f"ds_write_b128 v{vT}, v[{vT+2}:{vT+5}] offset:{q*4096}")

    TA = 5 if KV else 4
    TB = 2 if KV else 3
    run_pass("A", TA, KV, vAcc, aCs, 0)
    e.c("=== end of pass A ===")
    colsum_exchange(TA, aCs)
    ln_stats_write()
    e("s_waitcnt lgkmcnt(0)")
    e("s_barrier")
    ln_stats_finish()
    if KV:
        e(f"ds_write_b32 v{vT+3}, v{vRl} offset:4864")
        e(f"ds_write_b32 v{vT+3}, v{vRstd} offset:4992")
        e(f"v_lshlrev_b32 v{vT+2}, 4, v{vHi}")
        e(f"v_add_u32 v{vT+2}, s{sXlds}, v{vT+2}")
        e("s_waitcnt lgkmcnt(0)")
        RL = vE + 40
        RS = vE + 56
        for q in range(4):
            e(f"ds_read_b128 {r4(RL+4*q)}, v{vT+2} offset:{4864+32*q}")
            e(f"ds_read_b128 {r4(RS+4*q)}, v{vT+2} offset:{4992+32*q}")
    ext_mfma(TA, KV, vAcc)
    if KV:
        K0p, K1p, K2p, V0p, V1p, V2p = vE, vE+8, vE+16, vE+24, vE+32, vWf
        for (t, dst) in [(3, V0p), (4, V1p), (2, V2p)]:
            a = vAcc + 16*t
            for j in range(8):
                e(f"v_mul_f32 v{vT2}, v{a+2*j}, v{RS+2*j}")
                e(f"v_mul_f32 v{vT2+1}, v{a+2*j+1}, v{RS+2*j+1}")
                e(f"v_cvt_pk_bf16_f32 v{dst+j}, v{vT2}, v{vT2+1}")
        e(f"v_mov_b32 v{vT2}, 0x3f803f80")
        for j in range(8):
            e(f"v_cndmask_b32 v{V2p+j}, v{vT2}, v{V2p+j}, s[{sL16m}:{sL16m+1}]")
        for (t, dst) in [(0, K0p), (1, K1p), (2, K2p)]:
            a = vAcc + 16*t
            for j in range(8):
                phi(vT2+4, a+2*j, RL+2*j, vT2)
                phi(vT2+5, a+2*j+1, RL+2*j+1, vT2+2)
                e(f"v_cvt_pk_bf16_f32 v{dst+j}, v{vT2+4}, v{vT2+5}")
        e("s_nop 1")
        prods = [(0, 0), (1, 0), (0, 1), (1, 1), (2, 1), (0, 2), (1, 2), (2, 2)]
        Kp = [K0p, K1p, K2p]
        Vp = [V0p, V1p, V2p]
        preg = {}
        for n, (a, b) in enumerate(prods):
            if n < 5:
                preg[(a, b)] = ("v", vAcc + 16*n)
            else:
                preg[(a, b)] = ("a", 208 + 16*(n-5))
        for h in range(2):
            for (a, b) in prods:
                f, base = preg[(a, b)]
                d = f"{f}[{base}:{base+15}]"
                e(f"v_mfma_f32_32x32x16_bf16 {d}, {r4(Kp[a]+4*h)}, {r4(Vp[b]+4*h)}, {'0' if h == 0 else d}")
        CP = 6144
        e(f"v_mul_u32_u24 v{vT}, 21, v{vHi}")
        e(f"v_and_b32 v{vT+1}, 31, v{vLane}")
        e(f"v_add_lshl_u32 v{vT}, v{vT}, v{vT+1}, 4")
        e(f"v_add_lshl_u32 v{vT+1}, v{vHi}, v{vT+1}, 4")
        e(f"v_add_u32 v{vT}, s{sXlds}, v{vT}")
        e(f"v_add_u32 v{vT+1}, s{sXlds}, v{vT+1}")
        e("s_nop 15")
        for (a, b) in prods:
            f, base = preg[(a, b)]
            for q in range(4):
                C0 = 8*a + 2*q
                if C0 >= 20:
                    continue
                src = f"{f}[{base+4*q}:{base+4*q+3}]"
                heads = [C0 // 5, (C0+1) // 5]
                ebase = [0, 32, 48][b]
                mask = 0
                for hi in range(2):
                    for l in range(32):
                        if b == 2 and l < 16:
                            continue
                        eg = ebase + l
                        if eg // 20 == heads[hi]:
                            mask |= 1 << (32*hi + l)
                if mask:
                    e(f"s_mov_b32 exec_lo, {mask & 0xffffffff:#x}")
                    e(f"s_mov_b32 exec_hi, {mask >> 32:#x}")
                    va = vT if heads[0] == heads[1] else vT+1
                    imm = CP + 16*(21*C0 + ebase - 20*heads[0])
                    e(f"ds_write_b128 v{va}, {src} offset:{imm}")
                if b == 2:
                    e(f"s_mov_b32 exec_lo, 1")
                    e(f"s_mov_b32 exec_hi, 1")
                    e(f"ds_write_b128 v{vT}, {src} offset:{CP + 16*(21*C0+20)}")
        e("s_mov_b64 exec, -1")
        e("s_waitcnt lgkmcnt(0)")
        e("s_barrier")
        e(f"v_lshlrev_b32 v{vT}, 4, v0")
        for rnd in range(2):
            for ww in range(4):
                e(f"ds_read_b128 {r4(vAcc+16*rnd+4*ww)}, v{vT} offset:{ww*16384+CP+rnd*4096}")
        e(f"v_add_u32 v{vT+1}, 4096, v{vT}")
        e(f"v_mov_b32 v{vT+2}, {OOB}")
        e(f"v_cmp_gt_u32 vcc, 164, v0")
        e(f"s_lshl_b32 s{sT0}, s{sG}, 4")
        e(f"s_add_u32 s{sT0}, s{sT0}, s{sI}")
        e(f"v_cndmask_b32 v{vT+1}, v{vT+2}, v{vT+1}, vcc")
        e(f"s_lshl_b32 s{sT1}, s{sT0}, 13")
        e(f"s_add_u32 s{sT1}, s{sT1}, {KVP_OFF}")
        e("s_waitcnt lgkmcnt(0)")
        for rnd in range(2):
            b = vAcc + 16*rnd
            for r in range(4):
                e(f"v_add_f32 v{b+r}, v{b+r}, v{b+4+r}")
                e(f"v_add_f32 v{b+8+r}, v{b+8+r}, v{b+12+r}")
            for r in range(4):
                e(f"v_add_f32 v{b+r}, v{b+r}, v{b+8+r}")
            e.vmop(f"buffer_store_dwordx4 {r4(b)}, v{vT+rnd}, s[{S_WS}:{S_WS+3}], s{sT1} offen sc1", "kvp")
        e.wait_vm({"kvp"})
        e("s_barrier")
        e(f"v_mov_b32 v{vT}, s{sT0}")
        e(f"v_cmp_eq_u32 vcc, 0, v0")
        e(f"v_mov_b32 v{vT+1}, 1")
        e("s_nop 0")
        e(f"v_cndmask_b32 v{vT}, v{vT+2}, v{vT}, vcc")
        e.vmop(f"buffer_store_byte v{vT+1}, v{vT}, s[{S_DBG}:{S_DBG+3}], 0 offen sc1", "flag")
    else:
        e(f"s_lshl_b32 s{sT0}, s{sI}, 2")
        e(f"s_add_u32 s{sT0}, s{sT0}, s{sW}")
        e(f"s_lshl_b32 s{sT0}, s{sT0}, 7")
        e(f"s_add_u32 s{sT0}, s{sT0}, {RSTD_OFF}")
        e(f"s_cmp_eq_u32 s{sG}, 0")
        e(f"s_cselect_b32 s{sT0}, s{sT0}, {OOB}")
        e.vmop(f"buffer_store_dword v{vRstd}, v{vL31x4}, s[{S_WS}:{S_WS+3}], s{sT0} offen", "rs")
        e(f"s_mul_i32 s{sT0}, s{sG}, {6*4096}")
        e(f"s_add_u32 s{sT0}, s{sT0}, {2*4096}")
        e(f"s_add_u32 s{sT0}, s{sT0}, s{sACT}")
        h_epilogue(TA, vAcc, None)

    e("s_nop 1")
    run_pass("B", TB, False, vAcc, aCs, 10)
    e.c("=== end of pass B ===")
    colsum_exchange(TB, aCs)
    e("s_waitcnt lgkmcnt(0)")
    e("s_barrier")
    ext_mfma(TB, False, vAcc)
    if KV:
        e(f"s_mul_i32 s{sT0}, s{sG}, {6*4096}")
        e(f"s_add_u32 s{sT0}, s{sT0}, s{sACT}")
        h_epilogue(TB, vAcc, None)
    else:
        PQ = 232
        for s in range(5):
            a = vAcc + 8*s
            for j in range(4):
                phi(vT2+4, a+2*j, vRl, vT2)
                phi(vT2+5, a+2*j+1, vRl, vT2+2)
                e(f"v_cvt_pk_bf16_f32 v{PQ+4*s+j}, v{vT2+4}, v{vT2+5}")
        for rnd in range(2):
            A1 = vT2 + 6 + 2*rnd
            A2 = A1 + 1
            e(f"v_add_u32 v{vT}, {256*rnd}, v0")
            e(f"v_mul_u32_u24 v{vT+1}, 3121, v{vT}")
            e(f"v_lshrrev_b32 v{vT+1}, 16, v{vT+1}")
            e(f"v_mul_u32_u24 v{vT+2}, 21, v{vT+1}")
            e(f"v_sub_u32 v{vT+2}, v{vT}, v{vT+2}")
            e(f"v_mul_u32_u24 v{vT+3}, 13108, v{vT+1}")
            e(f"v_lshrrev_b32 v{vT+3}, 16, v{vT+3}")
            e(f"v_mul_u32_u24 v{vT+4}, 20, v{vT+3}")
            e(f"v_add_u32 v{vT+4}, v{vT+4}, v{vT+2}")
            e(f"v_add_u32 v{vT+5}, 16, v{vT+4}")
            e(f"v_cmp_lt_u32 vcc, 63, v{vT+4}")
            e(f"v_add_u32 v{vT+3}, 64, v{vT+3}")
            e("s_nop 0")
            e(f"v_cndmask_b32 v{vT+4}, v{vT+4}, v{vT+5}, vcc")
            e(f"v_cmp_eq_u32 vcc, 20, v{vT+2}")
            e(f"v_add_u32 v{vT+5}, 4, v{vT+3}")
            e("s_nop 0")
            e(f"v_cndmask_b32 v{vT+5}, v{vT+4}, v{vT+5}, vcc")
            e(f"v_cndmask_b32 v{vT+4}, v{vT+4}, v{vT+3}, vcc")
            e(f"v_lshrrev_b32 v{vT+2}, 2, v{vT+1}")
            e(f"v_lshlrev_b32 v{vT+2}, 5, v{vT+2}")
            e(f"v_and_b32 v{vT+3}, 1, v{vT+1}")
            e(f"v_lshl_add_u32 v{vT+2}, v{vT+3}, 4, v{vT+2}")
            e(f"v_and_b32 v{vT+3}, 2, v{vT+1}")
            e(f"v_lshl_add_u32 v{vT+2}, v{vT+3}, 2, v{vT+2}")
            e(f"v_add_u32 v{vT+2}, {KVT_LDS}, v{vT+2}")
            e(f"v_mad_u32_u24 v{A1}, v{vT+4}, s81, v{vT+2}")
            e(f"v_mad_u32_u24 v{A2}, v{vT+5}, s81, v{vT+2}")
        e(f"v_mov_b32 v{vT}, {KVT_LDS + 100*KVT_P}")
        e(f"v_cmp_gt_u32 vcc, 164, v0")
        e(f"v_lshlrev_b32 v{vT+1}, 4, v0")
        e(f"v_add_u32 v{vT+2}, 4096, v{vT+1}")
        e(f"v_mov_b32 v{vT+3}, {OOB}")
        e(f"v_cndmask_b32 v{vT2+8}, v{vT}, v{vT2+8}, vcc")
        e(f"v_cndmask_b32 v{vT2+9}, v{vT}, v{vT2+9}, vcc")
        e(f"v_cndmask_b32 v{vT+2}, v{vT+3}, v{vT+2}, vcc")
        e(f"s_lshl_b32 s{sT0}, s{sG}, 4")
        e(f"v_mov_b32 v{vT}, s{sT0}")
        e(f"s_mov_b32 s{sT1}, 0x01010101")
        e("s_mov_b32 s82, 0")
        e.label("L_Q_poll")
        e(f"buffer_load_dwordx4 {r4(vWf)}, v{vT}, s[{S_DBG}:{S_DBG+3}], 0 offen sc1")
        e("s_waitcnt vmcnt(0)")
        e.vm = []
        e(f"v_and_b32 v{vWf}, v{vWf}, v{vWf+1}")
        e(f"v_and_b32 v{vWf+2}, v{vWf+2}, v{vWf+3}")
        e(f"v_and_b32 v{vWf}, v{vWf}, v{vWf+2}")
        e(f"v_cmp_ne_u32 vcc, s{sT1}, v{vWf}")
        e("s_nop 4")
        e("s_cbranch_vccz L_Q_go")
        e("s_sleep 4")
        e("s_add_u32 s82, s82, 1")
        e("s_cmp_lt_u32 s82, 0x20000")
        e("s_cbranch_scc1 L_Q_poll")
        e.label("L_Q_go")
        e(f"s_lshl_b32 s{sT0}, s{sG}, 17")
        e(f"s_add_u32 s{sT0}, s{sT0}, {KVP_OFF}")
        for ip in range(16):
            for rnd in range(2):
                e.vmop(f"buffer_load_dwordx4 {r4(vAcc+8*ip+4*rnd)}, v{vT+1+rnd}, s[{S_WS}:{S_WS+3}], s{sT0} offen sc1", ("kv", ip))
            e(f"s_add_u32 s{sT0}, s{sT0}, 8192")
        for ip in range(1, 16):
            e.wait_vm({("kv", ip)})
            for r in range(8):
                e(f"v_add_f32 v{vAcc+r}, v{vAcc+r}, v{vAcc+8*ip+r}")
        for rnd in range(2):
            b = vAcc + 4*rnd
            e(f"v_cvt_pk_bf16_f32 v{vAcc+8+2*rnd}, v{b}, v{b+1}")
            e(f"v_cvt_pk_bf16_f32 v{vAcc+9+2*rnd}, v{b+2}, v{b+3}")
            e(f"ds_write_b64 v{vT2+6+2*rnd}, v[{vAcc+8+2*rnd}:{vAcc+9+2*rnd}]")
            e(f"ds_write_b64 v{vT2+7+2*rnd}, v[{vAcc+8+2*rnd}:{vAcc+9+2*rnd}]")
        e("s_waitcnt lgkmcnt(0)")
        e("s_barrier")
        e(f"v_and_b32 v{vT}, 31, v{vLane}")
        e(f"v_mul_u32_u24 v{vT}, {KVT_P}, v{vT}")
        e(f"v_lshl_add_u32 v{vT}, v{vHi}, 4, v{vT}")
        e(f"v_add_u32 v{vT}, {KVT_LDS}, v{vT}")
        need = [(0, 0), (0, 1), (0, 2), (1, 1), (1, 2), (1, 3), (1, 4), (2, 0), (2, 1), (2, 2), (2, 3), (2, 4)]
        FR = vAcc + 48
        for n, (o, s) in enumerate(need):
            e(f"ds_read_b128 {r4(FR+4*n)}, v{vT} offset:{o*32*KVT_P+32*s}")
        e("s_waitcnt lgkmcnt(0)")
        first = {}
        for n, (o, s) in sorted(enumerate(need), key=lambda z: (z[1][1], z[1][0])):
            d = f"v[{vAcc+16*o}:{vAcc+16*o+15}]"
            e(f"v_mfma_f32_32x32x16_bf16 {d}, {r4(FR+4*n)}, {r4(PQ+4*s)}, {'0' if o not in first else d}")
            first[o] = 1
        e("s_nop 15")
        F = vT2
        for h in range(4):
            e(f"v_add_f32 v{F+h}, {f32bits(1e-6):#x}, v{vAcc+32+h}")
        for h in range(4):
            e(f"v_rcp_f32 v{F+h}, v{F+h}")
        e("s_nop 0")
        for h in range(4):
            e(f"v_mul_f32 v{F+h}, v{F+h}, v{vSd}")
        e(f"v_cndmask_b32 v{F+4}, v{F}, v{F+1}, s[{sHIm}:{sHIm+1}]")
        e(f"v_cndmask_b32 v{F+5}, v{F+2}, v{F+3}, s[{sHIm}:{sHIm+1}]")
        OP = vE
        k = 0
        for o in range(3):
            for q in range(4):
                if o == 2 and q < 2:
                    continue
                C0 = 8*o + 2*q if o < 2 else 16 + 2*(q-2)
                if C0 // 5 == (C0+1) // 5:
                    f = F + C0 // 5
                else:
                    f = F + 4 + (0 if C0 == 4 else 1)
                a = vAcc + 16*o + 4*q
                for r in range(4):
                    e(f"v_mul_f32 v{a+r}, v{a+r}, v{f}")
                e(f"v_cvt_pk_bf16_f32 v{OP+k}, v{a}, v{a+1}")
                e(f"v_cvt_pk_bf16_f32 v{OP+k+1}, v{a+2}, v{a+3}")
                k += 2
        e(f"s_lshr_b32 s{sT0}, s{sG}, 1")
        e(f"s_mul_i32 s{sT0}, s{sT0}, {5*4096}")
        e(f"s_add_u32 s{sT0}, s{sT0}, {48*4096}")
        e(f"s_add_u32 s{sT0}, s{sT0}, s{sACT}")
        e(f"s_and_b32 s{sT1}, s{sG}, 1")
        e(f"s_mul_i32 s{sT2}, s{sT1}, {3*4096}")
        e(f"s_add_u32 s{sT2}, s{sT2}, s{sT0}")
        e(f"s_add_u32 s{sT3}, s{sT2}, 4096")
        e(f"s_lshl_b32 s{sT1}, s{sT1}, 9")
        e(f"s_add_u32 s{sT0}, s{sT0}, s{sT1}")
        e(f"s_add_u32 s{sT0}, s{sT0}, {2*4096}")
        e(f"buffer_store_dwordx4 {r4(OP)}, v{vSt}, s[{S_WS}:{S_WS+3}], s{sT2} offen")
        e(f"buffer_store_dwordx4 {r4(OP+4)}, v{vSt}, s[{S_WS}:{S_WS+3}], s{sT2} offen offset:512")
        e(f"buffer_store_dwordx4 {r4(OP+8)}, v{vSt}, s[{S_WS}:{S_WS+3}], s{sT3} offen")
        e(f"buffer_store_dwordx4 {r4(OP+12)}, v{vSt}, s[{S_WS}:{S_WS+3}], s{sT3} offen offset:512")
        e(f"buffer_store_dwordx4 {r4(OP+16)}, v{vSt}, s[{S_WS}:{S_WS+3}], s{sT0} offen")
    e("s_endpgm")
    e.label(f"L_{lab}_end")


def gen_k1():
    e = Em()
    e.L.append(".globl k1_kernel\n.p2align 8\n.type k1_kernel,@function\nk1_kernel:")
    e("s_load_dwordx4 s[44:47], s[0:1], 0")
    e("s_load_dwordx2 s[48:49], s[0:1], 16")
    e("s_load_dwordx4 s[52:55], s[0:1], 32")
    e("s_load_dwordx2 s[56:57], s[0:1], 56")
    e("s_load_dwordx2 s[58:59], s[0:1], 64")
    e("s_cmp_ge_u32 s2, 256")
    e("s_cbranch_scc1 L_k1_exit")
    e(f"v_and_b32 v{vLane}, 63, v0")
    e(f"v_lshrrev_b32 v{vT}, 6, v0")
    e(f"v_lshrrev_b32 v{vHi}, 5, v{vLane}")
    e(f"v_readfirstlane_b32 s{sW}, v{vT}")
    e(f"v_and_b32 v{vL31x4}, 31, v{vLane}")
    e(f"v_lshlrev_b32 v{vL31x4}, 2, v{vL31x4}")
    e(f"s_and_b32 s{sT0}, s2, 1")
    e(f"s_lshl_b32 s{sT0}, s{sT0}, 3")
    e(f"s_bfe_u32 s{sT1}, s2, 0x30003")
    e(f"s_add_u32 s{sI}, s{sT0}, s{sT1}")
    e(f"s_bfe_u32 s{sT0}, s2, 0x20001")
    e(f"s_lshl_b32 s{sT0}, s{sT0}, 2")
    e(f"s_lshr_b32 s{sT1}, s2, 6")
    e(f"s_add_u32 s{sT0}, s{sT0}, s{sT1}")
    e(f"s_lshr_b32 s{sG}, s{sT0}, 1")
    e(f"s_mov_b32 s81, 176")
    e(f"s_and_b32 s{sT0}, s{sT0}, 1")
    e(f"s_cmp_eq_u32 s{sT0}, 1")
    e("s_cbranch_scc1 L_Q_path")
    ekv = Em()
    k1_path(ekv, "KV")
    eq = Em()
    k1_path(eq, "Q")
    return e.text() + ekv.text() + eq.text() + "L_k1_exit:\n    s_endpgm\n"


def gen_k2():
    e = Em()
    e.L.append(".globl k2_kernel\n.p2align 8\n.type k2_kernel,@function\nk2_kernel:")
    S_X, S_OUT, S_WS, S_CODE = 8, 12, 16, 20
    sW, sT, sCc, sA, sB = 36, 37, 38, 39, 40
    e("s_load_dwordx2 s[44:45], s[0:1], 0")
    e("s_load_dwordx2 s[46:47], s[0:1], 48")
    e("s_load_dwordx2 s[48:49], s[0:1], 64")
    e("s_cmp_ge_u32 s2, 256")
    e("s_cbranch_scc1 L_k2_exit")
    e(f"s_getpc_b64 s[{S_CODE}:{S_CODE+1}]")
    e.label("L_k2_pc")
    e(f"s_mov_b32 s{S_CODE+2}, L_k2_exit-L_k2_pc")
    e(f"s_mov_b32 s{S_CODE+3}, 0x00020000")
    e(f"v_lshlrev_b32 v2, 7, v0")
    e.vmop(f"buffer_load_dword v39, v2, s[{S_CODE}:{S_CODE+3}], 0 offen", "pf")
    e("v_and_b32 v1, 63, v0")
    e("v_lshrrev_b32 v2, 6, v0")
    e("v_lshlrev_b32 v3, 4, v1")
    e(f"v_readfirstlane_b32 s{sW}, v2")
    e("v_add_u32 v4, 4096, v3")
    e("s_and_b32 s41, s2, 3")
    e("s_lshl_b32 s41, s41, 3")
    e("s_bfe_u32 s42, s2, 0x30003")
    e(f"s_add_u32 s{sT}, s41, s42")
    e("s_bfe_u32 s41, s2, 0x10002")
    e("s_lshl_b32 s41, s41, 2")
    e("s_lshr_b32 s42, s2, 6")
    e(f"s_add_u32 s{sCc}, s41, s42")
    e(f"s_mul_i32 s{sA}, s{sT}, 68")
    e(f"s_add_u32 s{sA}, s{sA}, s{sW}")
    e(f"s_lshl_b32 s{sA}, s{sA}, 12")
    e(f"s_mul_i32 s{sB}, s{sCc}, 68")
    e(f"s_add_u32 s{sB}, s{sB}, s{sW}")
    e(f"s_mul_i32 s{sB}, s{sB}, 5120")
    e(f"s_add_u32 s{sB}, s{sB}, {W2R_OFF}")
    e("s_waitcnt lgkmcnt(0)")
    for (srd, p, sz) in [(S_X, 44, 2048*1280), (S_OUT, 46, 2048*1280), (S_WS, 48, WS_SIZE)]:
        e(f"s_mov_b32 s{srd}, s{p}")
        e(f"s_mov_b32 s{srd+1}, s{p+1}")
        e(f"s_mov_b32 s{srd+2}, {sz}")
        e(f"s_mov_b32 s{srd+3}, 0x00020000")
    NS = 7
    D = 6

    def freg(st, k):
        if st < 6:
            b = 40 + st*36 + 4*k
            return f"v[{b}:{b+3}]"
        b = 80 + 4*k
        return f"a[{b}:{b+3}]"

    def loads(n):
        st = n % NS
        out = []
        for m in range(4):
            out.append(f"buffer_load_dwordx4 {freg(st, m)}, v3, s[{S_WS}:{S_WS+3}], s{sA} offen offset:{1024*m}")
        for nu in range(5):
            if nu < 4:
                out.append(f"buffer_load_dwordx4 {freg(st, 4+nu)}, v3, s[{S_WS}:{S_WS+3}], s{sB} offen offset:{1024*nu}")
            else:
                out.append(f"buffer_load_dwordx4 {freg(st, 4+nu)}, v4, s[{S_WS}:{S_WS+3}], s{sB} offen")
        return out

    def adv():
        e(f"s_add_u32 s{sA}, s{sA}, {4*4096}")
        e(f"s_add_u32 s{sB}, s{sB}, {4*5120}")

    for n in range(2):
        for l in loads(n):
            e.vmop(l, ("k", n))
        adv()
    e(f"s_lshl_b32 s41, s{sT}, 6")
    e(f"s_lshl_b32 s42, s{sW}, 4")
    e(f"s_add_u32 s41, s41, s42")
    e(f"s_mul_i32 s43, s41, 1280")
    e(f"s_mul_i32 s50, s{sCc}, 160")
    e(f"s_add_u32 s43, s43, s50")
    e(f"s_lshl_b32 s50, s41, 2")
    e(f"s_add_u32 s50, s50, {RSTD_OFF}")
    e(f"s_mul_i32 s51, s42, 336")
    for r in range(3):
        e(f"v_add_u32 v27, {64*r}, v1")
        e(f"v_mul_u32_u24 v28, 6554, v27")
        e(f"v_lshrrev_b32 v28, 16, v28")
        e(f"v_mul_u32_u24 v29, 10, v28")
        e(f"v_sub_u32 v29, v27, v29")
        e(f"v_mul_u32_u24 v30, 1280, v28")
        e(f"v_lshl_add_u32 v30, v29, 4, v30")
        e(f"v_add_u32 v{5+r}, s43, v30")
        e(f"v_mul_u32_u24 v30, 336, v28")
        e(f"v_lshl_add_u32 v30, v29, 5, v30")
        e(f"v_add_u32 v{8+r}, s51, v30")
        e(f"v_lshlrev_b32 v31, 2, v28")
        if r == 2:
            e(f"v_mov_b32 v32, {OOB}")
            e(f"v_cmp_gt_u32 vcc, 32, v1")
            e(f"v_mov_b32 v33, 0")
            e("s_nop 0")
            e(f"v_cndmask_b32 v7, v32, v7, vcc")
            e(f"v_cndmask_b32 v31, v32, v31, vcc")
            e(f"v_cndmask_b32 v10, v33, v10, vcc")
        e.vmop(f"buffer_load_dwordx4 v[{12+4*r}:{15+4*r}], v{5+r}, s[{S_X}:{S_X+3}], 0 offen", "x")
        e.vmop(f"buffer_load_dword v{24+r}, v31, s[{S_WS}:{S_WS+3}], s50 offen", "x")
    for n in range(2, D):
        for l in loads(n):
            e.vmop(l, ("k", n))
        adv()
    e("v_and_b32 v27, 15, v1")
    e("v_mul_u32_u24 v27, 336, v27")
    e("v_lshrrev_b32 v28, 4, v1")
    e("v_lshl_add_u32 v27, v28, 4, v27")
    e(f"s_mul_i32 s41, s{sW}, {64*336}")
    e("v_add_u32 v11, s41, v27")
    NK = 17
    for n in range(NK):
        st = n % NS
        e.wait_vm({("k", n)})
        ld = loads(n + D) if n + D < NK else []
        k = 0
        for m in range(4):
            for nu in range(5):
                acc = f"a[{(m*5+nu)*4}:{(m*5+nu)*4+3}]"
                e(f"v_mfma_f32_16x16x32_bf16 {acc}, {freg(st, 4+nu)}, {freg(st, m)}, {'0' if n == 0 else acc}")
                if ld and k % 2 == 0:
                    e.vmop(ld.pop(0), ("k", n + D))
                k += 1
        if n + D < NK:
            adv()
    e("s_nop 7")
    for m in range(4):
        for nu in range(5):
            a = (m*5+nu)*4
            e(f"ds_write_b128 v11, a[{a}:{a+3}] offset:{m*16*336+nu*64}")
    e("s_waitcnt lgkmcnt(0)")
    e("s_barrier")
    for r in range(3):
        for ww in range(4):
            for h in range(2):
                b = 40 + r*32 + ww*8 + h*4
                off = ww*64*336 + h*16
                if off < 65536:
                    e(f"ds_read_b128 v[{b}:{b+3}], v{8+r} offset:{off}")
                else:
                    raise Exception("off")
    e("s_mov_b32 s41, 0xffff0000")
    for r in range(3):
        e(f"s_waitcnt lgkmcnt({min(15, 8*(2-r))})")
        b = 40 + r*32
        for k in range(8):
            e(f"v_add_f32 v{b+k}, v{b+k}, v{b+8+k}")
            e(f"v_add_f32 v{b+16+k}, v{b+16+k}, v{b+24+k}")
        for k in range(8):
            e(f"v_add_f32 v{b+k}, v{b+k}, v{b+16+k}")
        for k in range(4):
            xr = 12 + 4*r + k
            e(f"v_lshlrev_b32 v27, 16, v{xr}")
            e(f"v_and_b32 v28, s41, v{xr}")
            e(f"v_fma_f32 v27, v{b+2*k}, v{24+r}, v27")
            e(f"v_fma_f32 v28, v{b+2*k+1}, v{24+r}, v28")
            e(f"v_cvt_pk_bf16_f32 v{b+8+k}, v27, v28")
        e(f"buffer_store_dwordx4 v[{b+8}:{b+11}], v{5+r}, s[{S_OUT}:{S_OUT+3}], 0 offen")
    e.label("L_k2_exit")
    e("s_endpgm")
    return e.text()


def kd(name, vgpr, sgpr, acc):
    return f""".amdhsa_kernel {name}
  .amdhsa_next_free_vgpr {vgpr}
  .amdhsa_next_free_sgpr {sgpr}
  .amdhsa_accum_offset {acc}
  .amdhsa_group_segment_fixed_size 0
  .amdhsa_kernarg_size 72
  .amdhsa_user_sgpr_count 2
  .amdhsa_user_sgpr_kernarg_segment_ptr 1
  .amdhsa_system_sgpr_workgroup_id_x 1
.end_amdhsa_kernel
"""


def main():
    out = []
    out.append("; @launch kernel=k1_kernel grid=(256,1,1) block=(256,1,1) lds=163840")
    out.append("; @launch kernel=k2_kernel grid=(256,1,1) block=(256,1,1) lds=86016")
    out.append('.amdgcn_target "amdgcn-amd-amdhsa--gfx950"')
    out.append(".text")
    out.append(gen_k1())
    out.append(gen_k2())
    out.append('.section .rodata,"a"')
    out.append(".p2align 6")
    out.append(kd("k1_kernel", 512, 96, 256))
    out.append(".p2align 6")
    out.append(kd("k2_kernel", 376, 64, 256))
    return "\n".join(out)


if __name__ == "__main__":
    path = sys.argv[1] if len(sys.argv) > 1 else f"cdna_kernels/{NAME}.s"
    open(path, "w").write(main())
    print("wrote", path)
```

```python
import sys, struct, os

NAME = "parallel_sum__linear_attn_block__dense_activation_relu__prompt"

ACT_OFF = 0
W2R_OFF = 0x900000
KVA_OFF = 0xC00000
RSTD_OFF = 0xD00000
FLG_OFF = 0xD10000
STP_OFF = 0xD20000
CSP_OFF = 0xD50000
STAMP_OFF = 0xD80000
WS_SIZE = 0xE00000
OOB = 0x40000000
STAMP = os.environ.get("STAMP", "0") == "1"
ROT2 = int(os.environ.get("ROT2", "1"))
HF = int(os.environ.get("HF", "2"))
SLP = int(os.environ.get("SLP", "4"))
OST = int(os.environ.get("OST", "3"))

def f32bits(x):
    return struct.unpack("<I", struct.pack("<f", x))[0]

LOG2E = 1.4426950408889634
LN2 = 0.6931471805599453

SLOT1 = 45056
WA_OFF = 16384
SLOT2 = 36864
G2S = [45056, 81920, 0]
CP_LDS = 118784
OUT_LDS = 45056
RP_LDS = 135168
KVT_LDS = 135168
STAT_LDS = 156672
EXT_LDS = 159744
KVT_P = 176

S_X, S_WQKV, S_W1, S_WS, S_DBG, S_RP, S_CODE, S_OUT = 8, 12, 16, 20, 24, 28, 32, 84
sW, sI, sG, sT0, sT1, sT2, sT3, sXlim = 36, 37, 38, 39, 40, 41, 42, 43
sXoff, sWoffA, sWoffB = 60, 61, 62
sLx, sLa, sLb = 63, 64, 75
sC, sLn2, sHiMask = 65, 66, 67
sACT = 68
sTw = 69
sHIm = 70
sL16m = 72
sFlag = 74
sRPl, sRPd = 77, 78
sKVTP, sSpin, sRot = 81, 82, 83
sJ, sT64, sCc, sA, sB, sCnt = 88, 89, 90, 91, 92, 93
sSlot, sD = 96, 97
sA0, sB0 = 76, 79
sRole = 80
vLane, vHi, vL31x4, vFl0, vL16, vL16b, vStamp, vPoll, vPollN = 1, 2, 3, 4, 5, 6, 7, 8, 9
vT = 10


class Em:
    def __init__(self, lab):
        self.L = []
        self.vm = []
        self.stamps = []
        self.nlab = 0
        self.lab = lab
        self.cap = None

    def __call__(self, s):
        for line in s.split("\n"):
            if self.cap is not None:
                self.cap[-1].append(line)
            else:
                self.L.append("    " + line)

    def capture(self):
        self.cap = [[]]

    def para(self):
        if self.cap is not None and self.cap[-1]:
            self.cap.append([])

    def end_capture(self):
        c = [p for p in self.cap if p]
        self.cap = None
        return c

    def label(self, s):
        self.L.append(s + ":")

    def c(self, s):
        self.L.append("    ; " + s)

    def vmop(self, s, tag):
        assert self.cap is None
        self(s)
        self.vm.append(tag)
        assert len(self.vm) <= 63, self.vm

    def op(self, o):
        if isinstance(o, tuple):
            self.vmop(o[0], o[1])
        elif isinstance(o, list):
            for x in o:
                self.op(x)
        else:
            self(o)

    def merge(self, dm, paras):
        dm, paras = list(dm), list(paras)
        while dm or paras:
            if dm:
                self.op(dm.pop(0))
            k = -(-len(paras) // (len(dm) + 1)) if paras else 0
            for _ in range(k):
                self.op(paras.pop(0))

    def vm_n(self, tags):
        last = -1
        for k, t in enumerate(self.vm):
            if t in tags:
                last = k
        n = len(self.vm) - 1 - last
        self.vm = self.vm[last + 1:]
        return n

    def wait_vm(self, tags, lgkm=None):
        n = self.vm_n(tags)
        if lgkm is None:
            self(f"s_waitcnt vmcnt({n})")
        else:
            self(f"s_waitcnt vmcnt({n}) lgkmcnt({lgkm})")

    def pending(self, tag):
        return tag in self.vm

    def stamp(self, name, real=False):
        if not STAMP:
            return
        k = len(self.stamps)
        self.stamps.append(name)
        assert k < 60
        self("s_waitcnt lgkmcnt(0)")
        self(("s_memrealtime" if real else "s_memtime") + " s[98:99]")
        self("s_waitcnt lgkmcnt(0)")
        self(f"v_writelane_b32 v{vStamp}, s98, {k}")

    def stamp_flush(self):
        if not STAMP:
            return
        self(f"s_lshl_b32 s98, s2, 3")
        self(f"s_add_u32 s98, s98, s{sW}")
        self(f"s_lshl_b32 s99, s{sRole}, 2")
        self(f"s_add_u32 s98, s98, s99")
        self(f"s_lshl_b32 s98, s98, 8")
        self(f"s_add_u32 s98, s98, {STAMP_OFF}")
        self(f"v_lshlrev_b32 v{vT}, 2, v{vLane}")
        self(f"buffer_store_dword v{vStamp}, v{vT}, s[{S_WS}:{S_WS+3}], s98 offen")
        print(f"stamps: {self.lab}:" + ",".join(self.stamps))

    def flag_store(self, val):
        self(f"v_mov_b32 v{vPollN}, {val}")
        self.vmop(f"buffer_store_dword v{vPollN}, v{vFl0}, s[{S_WS}:{S_WS+3}], s{sFlag} offen sc1", "flag")

    def poll_issue(self, vaddr, srd, tag, dst=None):
        self.vmop(f"buffer_load_dword v{dst or vPoll}, v{vaddr}, s[{srd}:{srd+3}], 0 offen sc1", tag)

    def poll_check(self, vaddr, srd, vneed, tag, dst=None):
        dst = dst or vPoll
        self.nlab += 1
        k = f"{self.lab}{self.nlab}"
        self.wait_vm({tag})
        self(f"v_cmp_lt_u32 vcc, v{dst}, v{vneed}")
        self(f"s_mov_b32 s{sSpin}, 0")
        self("s_nop 3")
        self(f"s_cbranch_vccz L_ok{k}")
        self.label(f"L_sp{k}")
        self(f"s_sleep {SLP}")
        self(f"buffer_load_dword v{dst}, v{vaddr}, s[{srd}:{srd+3}], 0 offen sc1")
        self("s_waitcnt vmcnt(0)")
        self(f"v_cmp_lt_u32 vcc, v{dst}, v{vneed}")
        self(f"s_add_u32 s{sSpin}, s{sSpin}, 1")
        self(f"s_cmp_lt_u32 s{sSpin}, 0x40000")
        self(f"s_cselect_b64 s[94:95], -1, 0")
        self(f"s_and_b64 vcc, vcc, s[94:95]")
        self(f"s_cbranch_vccnz L_sp{k}")
        self.label(f"L_ok{k}")

    def srds(self, lst):
        tab = {"X": (S_X, 44, 2048*1280), "WQKV": (S_WQKV, 46, 640*3840), "W1": (S_W1, 52, 640*3072),
               "WS": (S_WS, 58, WS_SIZE), "DBG": (S_DBG, 56, 256), "OUT": (S_OUT, 50, 2048*1280)}
        for k in lst:
            srd, p, sz = tab[k]
            self(f"s_mov_b32 s{srd}, s{p}")
            self(f"s_mov_b32 s{srd+1}, s{p+1}")
            self(f"s_mov_b32 s{srd+2}, {sz}")
            self(f"s_mov_b32 s{srd+3}, 0x00020000")

    def text(self):
        return "\n".join(self.L) + "\n"


def r4(b):
    return f"v[{b}:{b+3}]"


def image_cfg(KV):
    if KV:
        WB_OFF = WA_OFF + 20480
        A = dict(kk=5120, s=1280, t=lambda t: t*64)
        B = dict(kk=2048, s=256, t=lambda t: t*512)
        tiles = [("A", t) for t in range(5)] + [("B", t) for t in range(2)]
    else:
        WB_OFF = WA_OFF + 16384
        A = dict(kk=4096, s=256, t=lambda t: (t >> 1)*1024 + (t & 1)*512)
        B = dict(kk=3072, s=768, t=lambda t: t*64)
        tiles = [("A", t) for t in range(4)] + [("B", t) for t in range(3)]
    return WB_OFF, A, B, tiles


def lane_parts(e, KV, dA, dB, t):
    e(f"v_lshrrev_b32 v{t}, 2, v{vLane}")
    e(f"v_and_b32 v{t}, 3, v{t}")
    e(f"v_and_b32 v{t+1}, 3, v{vLane}")
    e(f"v_lshlrev_b32 v{t+1}, 3, v{t+1}")
    e(f"v_and_b32 v{t+2}, 16, v{vLane}")
    e(f"v_lshl_add_u32 v{t+1}, v{t+2}, 1, v{t+1}")
    e(f"v_lshl_add_u32 v{t+2}, v{vHi}, 3, v{t}")
    if KV:
        e(f"v_mul_u32_u24 v{dA}, 320, v{t+2}")
        e(f"v_add_u32 v{dA}, v{dA}, v{t+1}")
        e(f"v_lshl_add_u32 v{dB}, v{t}, 6, v{t+1}")
        e(f"v_lshl_add_u32 v{dB}, v{vHi}, 10, v{dB}")
    else:
        e(f"v_lshl_add_u32 v{dA}, v{t}, 6, v{t+1}")
        e(f"v_lshl_add_u32 v{dA}, v{vHi}, 11, v{dA}")
        e(f"v_mul_u32_u24 v{dB}, 192, v{t+2}")
        e(f"v_add_u32 v{dB}, v{dB}, v{t+1}")


def slot_offsets(e, d_st, d_cs):
    e(f"s_mul_i32 s{d_st}, s{sI}, 10")
    e(f"s_add_u32 s{d_st}, s{d_st}, s{sRot}")
    e(f"s_lshl_b32 s{d_st}, s{d_st}, 10")
    e(f"s_add_u32 s{d_st}, s{d_st}, {STP_OFF}")
    e(f"s_cmp_lt_u32 s{sJ}, 10")
    e(f"s_cselect_b32 s{d_st}, s{d_st}, {OOB}")
    e(f"s_mul_i32 s{d_cs}, s{sJ}, 10")
    e(f"s_add_u32 s{d_cs}, s{d_cs}, s{sRot}")
    e(f"s_lshl_b32 s{d_cs}, s{d_cs}, 10")
    e(f"s_add_u32 s{d_cs}, s{d_cs}, {CSP_OFF}")
    e(f"s_cmp_lt_u32 s{sI}, 10")
    e(f"s_cselect_b32 s{d_cs}, s{d_cs}, {OOB}")


def compute_path(typ):
    KV = typ == "KV"
    e = Em("C" + typ)
    WB_OFF, IA, IB, tiles = image_cfg(KV)
    vXrd = 18
    vWA, vWB = 22, 23
    vSt = 24
    vAcc = 32
    vWf = 144
    vXf = 200
    vXext = 244
    vXp, vRstd, vSd, vRl = 248, 249, 250, 251
    corient = [KV and t < 5 for t in range(7)]
    A_ = lambda t: vAcc + 16*t

    e.label(f"L_C{typ}")
    e.stamp("start_real", True)
    e.stamp("start")
    e(f"s_getpc_b64 s[{S_CODE}:{S_CODE+1}]")
    e.label(f"L_C{typ}_pc")
    e(f"s_mov_b32 s{S_CODE+2}, L_H{typ}_end-L_C{typ}_pc")
    e(f"s_mov_b32 s{S_CODE+3}, 0x00020000")
    e(f"v_lshlrev_b32 v{vT}, 7, v0")
    e.vmop(f"buffer_load_dword v255, v{vT}, s[{S_CODE}:{S_CODE+3}], 0 offen", "pf")
    for r in range(4):
        e(f"v_mov_b32 v{vAcc+r}, 0")
    slot_offsets(e, sT0, sT1)
    e(f"s_cmp_eq_u32 s{sW}, 0")
    e(f"s_cselect_b32 s{sT0}, s{sT0}, {OOB}")
    e(f"s_cselect_b32 s{sT1}, s{sT1}, {OOB}")
    e(f"s_and_b32 s{sT2}, s{sFlag}, 0xffffff80")
    e(f"v_mov_b32 v{vT+1}, {OOB}")
    e(f"v_cmp_gt_u32 vcc, 8, v0")
    if KV:
        e(f"s_lshl_b32 s{sT3}, s{sG}, 13")
        e(f"s_lshl_b32 s{sTw}, s{sI}, 10")
        e(f"s_add_u32 s{sT3}, s{sT3}, s{sTw}")
        e(f"s_add_u32 s{sT3}, s{sT3}, {KVA_OFF}")
        e(f"s_cmp_lt_u32 s{sI}, 7")
        e(f"s_cselect_b32 s{sT3}, s{sT3}, {OOB}")
        e(f"s_cmp_eq_u32 s{sW}, 0")
        e(f"s_cselect_b32 s{sT3}, s{sT3}, {OOB}")
    e(f"v_cndmask_b32 v{vT}, v{vT+1}, v{vL16}, vcc")
    e("s_waitcnt lgkmcnt(0)")
    e.srds(["WS"])
    e.vmop(f"buffer_store_dword v{vAcc}, v{vT}, s[{S_WS}:{S_WS+3}], s{sT2} offen sc1", "z")
    e.vmop(f"buffer_store_dwordx4 {r4(vAcc)}, v{vL16}, s[{S_WS}:{S_WS+3}], s{sT0} offen sc1", "z")
    e.vmop(f"buffer_store_dwordx4 {r4(vAcc)}, v{vL16}, s[{S_WS}:{S_WS+3}], s{sT1} offen sc1", "z")
    if KV:
        e.vmop(f"buffer_store_dwordx4 {r4(vAcc)}, v{vL16}, s[{S_WS}:{S_WS+3}], s{sT3} offen sc1", "z")
    e.srds(["X", "OUT", "DBG"])
    e(f"v_and_b32 v{vT}, 31, v{vLane}")
    e(f"v_lshrrev_b32 v{vT+1}, 1, v{vT}")
    e(f"v_and_b32 v{vT+1}, 7, v{vT+1}")
    e(f"v_xor_b32 v{vT+1}, v{vT+1}, v{vHi}")
    e(f"v_lshlrev_b32 v{vT}, 7, v{vT}")
    e(f"s_lshl_b32 s{sT0}, s{sW}, 12")
    e(f"v_add_u32 v{vT}, s{sT0}, v{vT}")
    for kk in range(4):
        e(f"v_xor_b32 v{vT+2}, {2*kk}, v{vT+1}")
        e(f"v_lshl_add_u32 v{vXrd+kk}, v{vT+2}, 4, v{vT}")
    lane_parts(e, KV, vWA, vWB, vT)
    e(f"v_add_u32 v{vWA}, {WA_OFF}, v{vWA}")
    e(f"v_add_u32 v{vWB}, {WB_OFF}, v{vWB}")
    e(f"v_and_b32 v{vT}, 15, v{vLane}")
    e(f"v_lshlrev_b32 v{vT}, 4, v{vT}")
    e(f"v_lshl_add_u32 v{vT}, v{vHi}, 8, v{vT}")
    e(f"v_and_b32 v{vT+1}, 16, v{vLane}")
    e(f"v_lshl_add_u32 v{vT}, v{vT+1}, 6, v{vT}")
    e(f"s_and_b32 s{sT0}, s{sW}, 1")
    e(f"s_lshl_b32 s{sT0}, s{sT0}, 11")
    e(f"v_add_u32 v{vSt}, s{sT0}, v{vT}")
    e(f"s_lshr_b32 s{sT0}, s{sW}, 1")
    e(f"s_lshl_b32 s{sT1}, s{sI}, 1")
    e(f"s_add_u32 s{sT0}, s{sT0}, s{sT1}")
    e(f"s_mul_i32 s{sACT}, s{sT0}, {68*4096}")
    EXR = 212
    for r in list(range(vAcc+4, vAcc+112)) + list(range(vWf+28, vWf+56)) + list(range(vXf+4, vXf+8)) + \
            [EXR+4*t+k for t in range(7) for k in (2, 3)] + [vXext+2, vXext+3]:
        e(f"v_mov_b32 v{r}, 0")
    e(f"v_lshlrev_b32 v25, 1, v{vL31x4}")
    e(f"v_add_u32 v25, {EXT_LDS}, v25")
    e(f"s_mul_i32 s{sT0}, s{sW}, 768")
    e(f"s_add_u32 s{sT0}, s{sT0}, {STAT_LDS}")
    e(f"v_lshl_add_u32 v26, v{vL31x4}, 2, s{sT0}")
    e(f"v_lshl_add_u32 v27, v{vHi}, 4, s{sT0}")
    e(f"s_and_b32 s{sT0}, s2, 1")
    e(f"s_lshl_b32 s{sT0}, s{sT0}, 7")
    e(f"v_mov_b32 v{vT}, s{sT0}")
    e(f"v_mov_b32 v{vT+1}, {OOB}")
    e(f"v_cmp_eq_u32 vcc, 0, v0")
    e(f"v_mov_b32 v{vT+2}, 1")
    e(f"s_mov_b32 s{sCnt}, 0")
    e(f"s_mov_b32 s{sSlot}, 0")
    e(f"v_cndmask_b32 v{vT}, v{vT+1}, v{vT}, vcc")
    e.wait_vm({"z"})
    e.vmop(f"buffer_atomic_add v{vT+2}, v{vT}, s[{S_DBG}:{S_DBG+3}], 0 offen", "init")

    def reads(kk):
        out = [f"ds_read_b128 {r4(vXf+4*(kk % 2))}, v{vXrd+kk}"]
        for t, (img, ti) in enumerate(tiles):
            I = IA if img == "A" else IB
            va = vWA if img == "A" else vWB
            for s in range(2):
                d = vWf + (kk % 2)*28 + 4*t + 2*s
                out.append(f"ds_read_b64_tr_b16 v[{d}:{d+1}], v{va} offset:{kk*I['kk'] + s*I['s'] + I['t'](ti)}")
        return out

    def mf(t, x, w):
        acc = f"v[{A_(t)}:{A_(t)+15}]"
        if corient[t]:
            return f"v_mfma_f32_32x32x16_bf16 {acc}, {x}, {w}, {acc}"
        return f"v_mfma_f32_32x32x16_bf16 {acc}, {w}, {x}, {acc}"

    def mfmas(par):
        return [mf(t, r4(vXf + 4*par), r4(vWf + par*28 + 4*t)) for t in range(7)]

    e(".p2align 3")
    e.label(f"L_C{typ}_g1")
    e("s_waitcnt lgkmcnt(0)")
    e("s_barrier")
    adv = [f"s_add_u32 s{sSlot}, s{sSlot}, 1", f"s_cmp_eq_u32 s{sSlot}, 3", f"s_cselect_b32 s{sSlot}, 0, s{sSlot}",
           f"s_mov_b32 s{sD}, {SLOT1}", f"s_cselect_b32 s{sD}, {(-2*SLOT1) & 0xffffffff:#x}, s{sD}",
           f"s_add_u32 s{sCnt}, s{sCnt}, 1", f"s_cmp_lt_u32 s{sCnt}, 10"]
    for kk in range(4):
        if kk:
            e("s_waitcnt lgkmcnt(0)")
        rd = reads(kk)
        for k, m in enumerate(mfmas((kk + 1) % 2)):
            e(m)
            for _ in range(3):
                if rd:
                    e(rd.pop(0))
            if kk == 2 and k == 5:
                for x in adv:
                    e(x)
            if kk == 3 and k == 5:
                for r in list(range(vXrd, vXrd+4)) + [vWA, vWB]:
                    e(f"v_add_u32 v{r}, s{sD}, v{r}")
    e(f"s_cbranch_scc1 L_C{typ}_g1")
    e("s_waitcnt lgkmcnt(0)")
    e("s_barrier")
    e.stamp("E1")
    order = [3, 4, 2, 0, 1, 5, 6] if KV else [0, 1, 2, 3, 4, 5, 6]
    RL, RS = 144, 160
    e(f"ds_read_b128 {r4(vXp)}, v26")
    for t in order:
        e(f"ds_read_b64 v[{EXR+4*t}:{EXR+4*t+1}], v25 offset:{t*256}")
    fl = mfmas(1)
    nfirst = 3 if KV else 4
    for t in order[:nfirst]:
        e(fl[t])
    e("s_waitcnt lgkmcnt(0)")
    e(f"v_lshrrev_b32 v{vT+4}, 16, v{vXp}")
    e(f"v_cndmask_b32 v{vXext}, v{vXp}, 0, s[{sHIm}:{sHIm+1}]")
    e(f"v_cndmask_b32 v{vXext+1}, v{vT+4}, 0, s[{sHIm}:{sHIm+1}]")
    if KV:
        for q in range(3):
            e(f"ds_read_b128 {r4(RS+4*q)}, v27 offset:{640+32*q}")
        for q in range(4):
            e(f"ds_read_b128 {r4(RL+4*q)}, v27 offset:{512+32*q}")
    else:
        e("s_nop 1")
    for t in order[:nfirst]:
        e(mf(t, r4(vXext), r4(EXR+4*t)))
    bg = []
    for t in order[nfirst:]:
        bg.append(fl[t])
    for t in order[nfirst:]:
        bg.append(mf(t, r4(vXext), r4(EXR+4*t)))

    def h_tile(t, o, n, bgq):
        a = A_(t)
        for j in range(8):
            e(f"v_max_f32 v{a+2*j}, 0, v{a+2*j}")
            e(f"v_max_f32 v{a+2*j+1}, 0, v{a+2*j+1}")
            e(f"v_cvt_pk_bf16_f32 v{o+j}, v{a+2*j}, v{a+2*j+1}")
            if bgq and j % 2 == 1:
                e(bgq.pop(0))
        e(f"s_add_u32 s{sT1}, s{sT0}, {n*4096}")
        e.vmop(f"buffer_store_dwordx4 {r4(o)}, v{vSt}, s[{S_WS}:{S_WS+3}], s{sT1} offen sc1", "hst")
        e.vmop(f"buffer_store_dwordx4 {r4(o+4)}, v{vSt}, s[{S_WS}:{S_WS+3}], s{sT1} offen offset:512 sc1", "hst")

    def phi(dst, acc, rl, tmp):
        e(f"v_fma_f32 v{tmp}, v{acc}, v{rl}, s{sC}")
        e(f"v_exp_f32 v{tmp+1}, v{tmp} clamp")
        e(f"v_max_f32 v{tmp}, s{sC}, v{tmp}")
        e(f"v_fma_f32 v{dst}, v{tmp}, s{sLn2}, v{tmp+1}")

    PQ = 224
    if KV:
        for m in bg[:4]:
            e(m)
        bg = bg[4:]
        e(f"ds_read_b128 {r4(RS+12)}, v27 offset:{640+96}")
        e("s_nop 3")
        e("s_waitcnt lgkmcnt(1)")
        Vp = [176, 184, 192]
        Kp = [200, 224, 232]
        for n, (t, dst) in enumerate([(3, Vp[0]), (4, Vp[1]), (2, Vp[2])]):
            a = A_(t)
            for j in range(8):
                if n == 0 and j == 6:
                    e("s_waitcnt lgkmcnt(0)")
                e(f"v_mul_f32 v{vT}, v{a+2*j}, v{RS+2*j}")
                e(f"v_mul_f32 v{vT+1}, v{a+2*j+1}, v{RS+2*j+1}")
                e(f"v_cvt_pk_bf16_f32 v{dst+j}, v{vT}, v{vT+1}")
                if bg and j % 2 == 0:
                    e(bg.pop(0))
        e(f"v_mov_b32 v{vT}, 0x3f803f80")
        for j in range(8):
            e(f"v_cndmask_b32 v{Vp[2]+j}, v{vT}, v{Vp[2]+j}, s[{sL16m}:{sL16m+1}]")
        preg = {(0, 0): A_(3), (0, 1): A_(4), (0, 2): RS, (1, 0): A_(0), (1, 1): 208, (1, 2): A_(1),
                (2, 1): A_(2), (2, 2): RL}
        pend_m = []
        for a_ in range(3):
            a = A_(a_)
            dst = Kp[a_]
            for j in range(8):
                phi(vT+4, a+2*j, RL+2*j, vT)
                phi(vT+5, a+2*j+1, RL+2*j+1, vT+2)
                e(f"v_cvt_pk_bf16_f32 v{dst+j}, v{vT+4}, v{vT+5}")
                if pend_m and j >= 1:
                    e(pend_m.pop(0))
            while pend_m:
                e(pend_m.pop(0))
            for h in range(2):
                for b in range(3):
                    if (a_, b) in preg:
                        base = preg[(a_, b)]
                        d = f"v[{base}:{base+15}]"
                        pend_m.append(f"v_mfma_f32_32x32x16_bf16 {d}, {r4(Kp[a_]+4*h)}, {r4(Vp[b]+4*h)}, {'0' if h == 0 else d}")
        e(f"v_mul_u32_u24 v{vT}, 21, v{vHi}")
        e(f"v_and_b32 v{vT+1}, 31, v{vLane}")
        while pend_m:
            e(pend_m.pop(0))
        e(f"v_add_lshl_u32 v{vT}, v{vT}, v{vT+1}, 4")
        e(f"v_add_lshl_u32 v{vT+1}, v{vHi}, v{vT+1}, 4")
        e(f"s_mul_i32 s{sT0}, s{sW}, 6784")
        e(f"s_add_u32 s{sT0}, s{sT0}, {CP_LDS}")
        e(f"v_add_u32 v{vT}, s{sT0}, v{vT}")
        e(f"v_add_u32 v{vT+1}, s{sT0}, v{vT+1}")
        for (a, b) in preg:
            base = preg[(a, b)]
            for q in range(4):
                C0 = 8*a + 2*q
                if C0 >= 20:
                    continue
                src = r4(base+4*q)
                heads = [C0 // 5, (C0+1) // 5]
                ebase = [0, 32, 48][b]
                mask = 0
                for hi in range(2):
                    for l in range(32):
                        if b == 2 and l < 16:
                            continue
                        eg = ebase + l
                        if eg // 20 == heads[hi]:
                            mask |= 1 << (32*hi + l)
                if mask:
                    e(f"s_mov_b32 exec_lo, {mask & 0xffffffff:#x}")
                    e(f"s_mov_b32 exec_hi, {mask >> 32:#x}")
                    va = vT if heads[0] == heads[1] else vT+1
                    e(f"ds_write_b128 v{va}, {src} offset:{16*(21*C0 + ebase - 20*heads[0])}")
                if b == 2:
                    e(f"s_mov_b32 exec_lo, 1")
                    e(f"s_mov_b32 exec_hi, 1")
                    e(f"ds_write_b128 v{vT}, {src} offset:{16*(21*C0+20)}")
        e("s_mov_b64 exec, -1")
        e(f"s_lshl_b32 s{sT0}, s{sG}, 13")
        e(f"s_add_u32 s{sT0}, s{sT0}, {32*4096}")
        e(f"s_add_u32 s{sT0}, s{sT0}, s{sACT}")
        e("s_waitcnt lgkmcnt(0)")
        e("s_barrier")
        e.stamp("E2")
        h_tile(5, 176, 0, [])
        h_tile(6, 184, 1, [])
        e.stamp("h_stored")
    else:
        e(f"s_lshl_b32 s{sT2}, s{sI}, 2")
        e(f"s_add_u32 s{sT2}, s{sT2}, s{sW}")
        e(f"s_lshl_b32 s{sT2}, s{sT2}, 7")
        e(f"s_add_u32 s{sT2}, s{sT2}, {RSTD_OFF}")
        e(f"s_cmp_eq_u32 s{sG}, 0")
        e(f"s_cselect_b32 s{sT2}, s{sT2}, {OOB}")
        e.vmop(f"buffer_store_dword v{vRstd}, v{vL31x4}, s[{S_WS}:{S_WS+3}], s{sT2} offen sc1", "hst")
        e(f"s_lshl_b32 s{sT0}, s{sG}, 14")
        e(f"s_add_u32 s{sT0}, s{sT0}, s{sACT}")
        e(bg.pop(0))
        e(bg.pop(0))
        for n in range(4):
            h_tile(n, 144 + 8*n if n < 3 else 204, n, bg)
        e.stamp("h_stored")
        for s in range(5):
            a = A_(4) + 8*s
            for j in range(4):
                phi(vT+4, a+2*j, vRl, vT)
                phi(vT+5, a+2*j+1, vRl, vT+2)
                e(f"v_cvt_pk_bf16_f32 v{PQ+4*s+j}, v{vT+4}, v{vT+5}")
            if s == HF:
                e.wait_vm({"hst"})
                e.flag_store(1)
                e.stamp("h_flag")
        e.stamp("pq_done")

    vA2, vB2 = 18, 19
    vG = 32
    vF = 56
    vGo, vLr, vXd, vRs, vLw, vRa = 104, 107, 112, 124, 110, 128
    e(f"s_lshl_b32 s{sT0}, s{sW}, 10")
    e(f"s_add_u32 s{sT0}, s{sT0}, {G2S[0]}")
    e(f"v_add_u32 v{vA2}, s{sT0}, v{vL16}")
    e(f"v_add_u32 v{vB2}, {G2S[0]}, v{vL16b}")
    for r in list(range(vG, vG+20)) + list(range(vF+24, vF+48)):
        e(f"v_mov_b32 v{r}, 0")
    e(f"s_lshl_b32 s{sT0}, s{sT64}, 6")
    e(f"s_lshl_b32 s{sT1}, s{sW}, 4")
    e(f"s_add_u32 s{sT0}, s{sT0}, s{sT1}")
    e(f"s_mul_i32 s{sT2}, s{sT0}, 1280")
    e(f"s_mul_i32 s{sT3}, s{sCc}, 160")
    e(f"s_add_u32 s{sT2}, s{sT2}, s{sT3}")
    e(f"s_lshl_b32 s{sA0}, s{sT0}, 2")
    e(f"s_add_u32 s{sA0}, s{sA0}, {RSTD_OFF}")
    e(f"s_mul_i32 s{sT1}, s{sW}, 5376")
    e(f"s_add_u32 s{sT1}, s{sT1}, {OUT_LDS}")
    for r in range(3):
        e(f"v_add_u32 v{vT}, {64*r}, v{vLane}")
        e(f"v_mul_u32_u24 v{vT+1}, 6554, v{vT}")
        e(f"v_lshrrev_b32 v{vT+1}, 16, v{vT+1}")
        e(f"v_mul_u32_u24 v{vT+2}, 10, v{vT+1}")
        e(f"v_sub_u32 v{vT+2}, v{vT}, v{vT+2}")
        e(f"v_mul_u32_u24 v{vT+3}, 1280, v{vT+1}")
        e(f"v_lshl_add_u32 v{vT+3}, v{vT+2}, 4, v{vT+3}")
        e(f"v_add_u32 v{vGo+r}, s{sT2}, v{vT+3}")
        e(f"v_mul_u32_u24 v{vT+3}, 336, v{vT+1}")
        e(f"v_lshl_add_u32 v{vT+3}, v{vT+2}, 5, v{vT+3}")
        e(f"v_add_u32 v{vLr+r}, s{sT1}, v{vT+3}")
        e(f"v_lshlrev_b32 v{vRa+r}, 2, v{vT+1}")
        if r == 2:
            e(f"v_mov_b32 v{vT+4}, {OOB}")
            e(f"v_cmp_gt_u32 vcc, 32, v{vLane}")
            e("s_nop 1")
            e(f"v_cndmask_b32 v{vGo+2}, v{vT+4}, v{vGo+2}, vcc")
            e(f"v_cndmask_b32 v{vRa+2}, v{vT+4}, v{vRa+2}, vcc")
            e(f"v_cndmask_b32 v{vLr+2}, v{vLr}, v{vLr+2}, vcc")
    e(f"v_and_b32 v{vT}, 15, v{vLane}")
    e(f"v_mul_u32_u24 v{vT}, 336, v{vT}")
    e(f"v_lshrrev_b32 v{vT+1}, 4, v{vLane}")
    e(f"v_lshl_add_u32 v{vT}, v{vT+1}, 4, v{vT}")
    e(f"v_add_u32 v{vLw}, s{sT1}, v{vT}")
    e(f"s_mov_b32 s{sSlot}, 0")

    def reads2(kk):
        f = vF + 24*(kk % 2)
        out = [f"ds_read_b128 {r4(f)}, v{vA2} offset:{kk*9216}"]
        for nu in range(5):
            out.append(f"ds_read_b128 {r4(f+4+4*nu)}, v{vB2} offset:{kk*9216+nu*1024}")
        return out

    def mfmas2(par):
        f = vF + 24*par
        return [f"v_mfma_f32_16x16x32_bf16 {r4(vG+4*nu)}, {r4(f+4+4*nu)}, {r4(f)}, {r4(vG+4*nu)}" for nu in range(5)]

    def g2_loop(name, count):
        if count == 0:
            return
        e(f"s_mov_b32 s{sCnt}, 0")
        e(".p2align 3")
        e.label(name)
        e("s_waitcnt lgkmcnt(0)")
        e("s_barrier")
        for kk in range(4):
            if kk:
                e("s_waitcnt lgkmcnt(0)")
            rd = reads2(kk)
            for x in rd[:2]:
                e(x)
            rd = rd[2:]
            for m in mfmas2((kk + 1) % 2):
                e(m)
                if rd:
                    e(rd.pop(0))
        e(f"s_mov_b32 s{sD}, {G2S[1]-G2S[0]}")
        e(f"s_cmp_eq_u32 s{sSlot}, 1")
        e(f"s_cselect_b32 s{sD}, {(G2S[2]-G2S[1]) & 0xffffffff:#x}, s{sD}")
        e(f"s_cmp_eq_u32 s{sSlot}, 2")
        e(f"s_cselect_b32 s{sD}, {G2S[0]-G2S[2]}, s{sD}")
        e(f"s_cselect_b32 s{sSlot}, -1, s{sSlot}")
        e(f"s_add_u32 s{sSlot}, s{sSlot}, 1")
        e(f"v_add_u32 v{vA2}, s{sD}, v{vA2}")
        e(f"v_add_u32 v{vB2}, s{sD}, v{vB2}")
        e(f"s_add_u32 s{sCnt}, s{sCnt}, 1")
        e(f"s_cmp_lt_u32 s{sCnt}, {count}")
        e(f"s_cbranch_scc1 {name}")

    def xloads():
        for r in range(3):
            e.vmop(f"buffer_load_dwordx4 {r4(vXd+4*r)}, v{vGo+r}, s[{S_X}:{S_X+3}], 0 offen", "x")
            e.vmop(f"buffer_load_dword v{vRs+r}, v{vRa+r}, s[{S_WS}:{S_WS+3}], s{sA0} offen sc1", "x")

    e.stamp("g2_start")
    if KV:
        g2_loop(f"L_C{typ}_g2a", 1)
        e.wait_vm({"hst"})
        e.flag_store(1)
        e.stamp("h_flag")
        g2_loop(f"L_C{typ}_g2b", 7)
        xloads()
        g2_loop(f"L_C{typ}_g2c", 9)
    else:
        g2_loop(f"L_C{typ}_g2a", OST + 1)
        e.stamp("g2_mid")
        OA = 132

        def fr(n):
            return 180 + 4*n if n < 11 else 244
        e(f"v_and_b32 v{vT}, 31, v{vLane}")
        e(f"v_mul_u32_u24 v{vT}, {KVT_P}, v{vT}")
        e(f"v_lshl_add_u32 v{vT}, v{vHi}, 4, v{vT}")
        e(f"v_add_u32 v{vT}, {KVT_LDS}, v{vT}")
        need = [(2, 0), (0, 0), (2, 1), (0, 1), (1, 1), (2, 2), (0, 2), (1, 2), (2, 3), (1, 3), (2, 4), (1, 4)]
        for n, (o, s) in enumerate(need):
            e(f"ds_read_b128 {r4(fr(n))}, v{vT} offset:{o*32*KVT_P+32*s}")
        first = {}
        for n, (o, s) in enumerate(need):
            e(f"s_waitcnt lgkmcnt({11-n})")
            d = f"v[{OA+16*o}:{OA+16*o+15}]"
            e(f"v_mfma_f32_32x32x16_bf16 {d}, {r4(fr(n))}, {r4(PQ+4*s)}, {'0' if o not in first else d}")
            first[o] = 1
        e(f"s_lshr_b32 s{sT0}, s{sG}, 1")
        e(f"s_mul_i32 s{sT0}, s{sT0}, {5*4096}")
        e(f"s_add_u32 s{sT0}, s{sT0}, {48*4096}")
        e(f"s_add_u32 s{sT0}, s{sT0}, s{sACT}")
        e(f"s_and_b32 s{sT1}, s{sG}, 1")
        e(f"s_mul_i32 s{sT2}, s{sT1}, {3*4096}")
        e(f"s_add_u32 s{sT2}, s{sT2}, s{sT0}")
        e(f"s_add_u32 s{sT3}, s{sT2}, 4096")
        e(f"s_lshl_b32 s{sT1}, s{sT1}, 9")
        e(f"s_add_u32 s{sT0}, s{sT0}, s{sT1}")
        e(f"s_add_u32 s{sT0}, s{sT0}, {2*4096}")
        e("s_nop 3")
        F = vT
        for h in range(4):
            e(f"v_add_f32 v{F+h}, {f32bits(1e-6):#x}, v{OA+32+h}")
        for h in range(4):
            e(f"v_rcp_f32 v{F+h}, v{F+h}")
        e("s_nop 0")
        for h in range(4):
            e(f"v_mul_f32 v{F+h}, v{F+h}, v{vSd}")
        e(f"v_cndmask_b32 v{F+4}, v{F}, v{F+1}, s[{sHIm}:{sHIm+1}]")
        e(f"v_cndmask_b32 v{F+5}, v{F+2}, v{F+3}, s[{sHIm}:{sHIm+1}]")
        OP = 180
        k = 0
        dests = [(sT2, 0), (sT2, 512), (sT3, 0), (sT3, 512), (sT0, 0)]
        for o in range(3):
            for q in range(4):
                if o == 2 and q < 2:
                    continue
                C0 = 8*o + 2*q if o < 2 else 16 + 2*(q-2)
                if C0 // 5 == (C0+1) // 5:
                    f = F + C0 // 5
                else:
                    f = F + 4 + (0 if C0 == 4 else 1)
                a = OA + 16*o + 4*q
                for r in range(4):
                    e(f"v_mul_f32 v{a+r}, v{a+r}, v{f}")
                e(f"v_cvt_pk_bf16_f32 v{OP+k}, v{a}, v{a+1}")
                e(f"v_cvt_pk_bf16_f32 v{OP+k+1}, v{a+2}, v{a+3}")
                k += 2
                if k % 4 == 0:
                    sg, off = dests[k//4 - 1]
                    e.vmop(f"buffer_store_dwordx4 {r4(OP+k-4)}, v{vSt}, s[{S_WS}:{S_WS+3}], s{sg} offen offset:{off} sc1", "ost")
        e.stamp("o_stored")
        g2_loop(f"L_C{typ}_g2b", 1)
        e.wait_vm({"ost"})
        e.flag_store(2)
        e.stamp("o_flag")
        xloads()
        g2_loop(f"L_C{typ}_g2c", 17 - OST - 2)
    e("s_waitcnt lgkmcnt(0)")
    for m in mfmas2(1):
        e(m)
    e.stamp("g2_done")
    e("s_nop 7")
    for nu in range(5):
        e(f"ds_write_b128 v{vLw}, {r4(vG+4*nu)} offset:{nu*64}")
    e("s_waitcnt lgkmcnt(0)")
    RB = 132
    for r in range(3):
        for h in range(2):
            e(f"ds_read_b128 {r4(RB+r*8+h*4)}, v{vLr+r} offset:{h*16}")
    e.wait_vm({"x"})
    for r in range(3):
        e(f"s_waitcnt lgkmcnt({2*(2-r)})")
        b = RB + r*8
        o = RB + 24 + 4*r
        for k in range(4):
            xr = vXd + 4*r + k
            e(f"v_lshlrev_b32 v{vT}, 16, v{xr}")
            e(f"v_and_b32 v{vT+1}, s{sHiMask}, v{xr}")
            e(f"v_fma_f32 v{vT}, v{b+2*k}, v{vRs+r}, v{vT}")
            e(f"v_fma_f32 v{vT+1}, v{b+2*k+1}, v{vRs+r}, v{vT+1}")
            e(f"v_cvt_pk_bf16_f32 v{o+k}, v{vT}, v{vT+1}")
        e(f"buffer_store_dwordx4 {r4(o)}, v{vGo+r}, s[{S_OUT}:{S_OUT+3}], 0 offen")
    e.stamp("end")
    e.stamp("end_real", True)
    e.stamp_flush()
    e("s_endpgm")
    return e


def helper_path(typ):
    KV = typ == "KV"
    e = Em("H" + typ)
    WB_OFF, IA, IB, tiles = image_cfg(KV)
    vXsrc = 18
    vWsrcA = 22
    vWsrcB = 27
    vC1 = 30
    vThree = 31
    vC2 = 32
    vCs = 40
    vRPa = 44
    vOOB, vOne = 45, 46
    vPRa, vPQa, vPVa, vPKa, vInA = 47, 48, 49, 50, 51
    vN16_1, vN16_2, vN32_2, vInN = 52, 53, 54, 55
    vTid = 56
    vR = 57
    vU = 58
    vD = 64
    vRs = vD + 40
    vXa = vD + 72
    vSx = vD + 80
    vXd_ = vD + 84
    vPL = vD + 100
    KA = vD + 104
    sTa, sTb = 96, 97
    sP0, sP1, sP2 = 44, 45, 46
    sCa, sCb, sR2, sR3 = 47, 50, 51, 56
    sL2 = 57
    nA, nB = (5, 2) if KV else (4, 3)

    e.label(f"L_H{typ}")
    e.stamp("start_real", True)
    e.stamp("start")
    e(f"v_lshrrev_b32 v{vT}, 3, v{vLane}")
    e(f"v_and_b32 v{vT+1}, 7, v{vLane}")
    e(f"v_lshrrev_b32 v{vT+2}, 1, v{vT}")
    e(f"v_xor_b32 v{vT+1}, v{vT+1}, v{vT+2}")
    e(f"v_xor_b32 v{vT+2}, 4, v{vT+1}")
    e(f"v_mul_u32_u24 v{vT}, 1280, v{vT}")
    e(f"v_lshl_add_u32 v{vXsrc}, v{vT+1}, 4, v{vT}")
    e(f"v_lshl_add_u32 v{vXsrc+1}, v{vT+2}, 4, v{vT}")
    e(f"v_add_u32 v{vXsrc+1}, {8*1280}, v{vXsrc+1}")
    e(f"v_add_u32 v{vXsrc+2}, {16*1280}, v{vXsrc}")
    e(f"v_add_u32 v{vXsrc+3}, {16*1280}, v{vXsrc+1}")
    e(f"s_lshl_b32 s{sT0}, s{sI}, 2")
    e(f"s_add_u32 s{sT0}, s{sT0}, s{sW}")
    e(f"s_mul_i32 s{sXoff}, s{sT0}, {32*1280}")
    e(f"s_add_u32 s{sXlim}, s{sXoff}, 1280")
    e(f"s_lshl_b32 s{sT0}, s{sRot}, 7")
    e(f"s_add_u32 s{sXoff}, s{sXoff}, s{sT0}")
    e(f"s_lshl_b32 s{sLx}, s{sW}, 12")
    e(f"s_lshl_b32 s{sT1}, s{sRot}, 2")
    e(f"s_add_u32 s{sT1}, s{sT1}, s{sW}")
    e(f"v_mov_b32 v{vOOB}, {OOB}")

    def rowmajor_src(dst, n, div, magic, pitch, kind):
        for u in range(n):
            e(f"v_add_u32 v{vT}, {64*u}, v{vLane}")
            e(f"v_mul_u32_u24 v{vT+1}, {magic}, v{vT}")
            e(f"v_lshrrev_b32 v{vT+1}, 16, v{vT+1}")
            e(f"v_mul_u32_u24 v{vT+2}, {div}, v{vT+1}")
            e(f"v_sub_u32 v{vT+2}, v{vT}, v{vT+2}")
            e(f"v_cmp_lt_u32 vcc, 9, v{vT+2}")
            e(f"v_mul_u32_u24 v{vT+1}, {pitch}, v{vT+1}")
            e(f"v_lshl_add_u32 v{vT+1}, v{vT+2}, 4, v{vT+1}")
            if kind == "kv":
                e(f"v_cndmask_b32 v{vT+3}, v{vT+6}, v{vT+4}, vcc")
                e(f"v_cmp_lt_u32 vcc, 11, v{vT+2}")
                e(f"v_add_u32 v{vT+1}, s{sT0}, v{vT+1}")
                e(f"s_nop 0")
                e(f"v_cndmask_b32 v{vT+3}, v{vT+3}, v{vT+5}, vcc")
                e(f"v_add_u32 v{dst+u}, v{vT+1}, v{vT+3}")
            else:
                e(f"v_add_u32 v{vT+1}, s{sT0}, v{vT+1}")
                e(f"v_cndmask_b32 v{dst+u}, v{vT+1}, v{vOOB}, vcc")

    def block_base():
        e(f"v_lshrrev_b32 v{vT}, 2, v{vLane}")
        e(f"v_and_b32 v{vT}, 7, v{vT}")
        e(f"v_mul_u32_u24 v{vT}, 3072, v{vT}")
        e(f"v_and_b32 v{vT+1}, 3, v{vLane}")
        e(f"v_lshl_add_u32 v{vT}, v{vT+1}, 4, v{vT}")
        e(f"v_lshl_add_u32 v{vT}, v{vHi}, 6, v{vT}")

    if KV:
        block_base()
        e(f"s_mul_i32 s{sT0}, s{sG}, 384")
        e(f"v_add_u32 v{vWsrcB}, s{sT0}, v{vT}")
        e(f"v_add_u32 v{vWsrcB+1}, {8*3072}, v{vWsrcB}")
        e(f"s_mul_i32 s{sT0}, s{sG}, 160")
        e(f"v_mov_b32 v{vT+4}, 2528")
        e(f"v_mov_b32 v{vT+5}, 2368")
        e(f"v_mov_b32 v{vT+6}, 1280")
        rowmajor_src(vWsrcA, 5, 20, 3277, 3840, "kv")
        e(f"s_mul_i32 s{sWoffA}, s{sT1}, {16*3840}")
        e(f"s_mul_i32 s{sWoffB}, s{sT1}, {16*3072}")
        e(f"s_mul_i32 s{sLa}, s{sW}, 5120")
        e(f"s_lshl_b32 s{sLb}, s{sW}, 11")
    else:
        block_base()
        e(f"s_mul_i32 s{sT0}, s{sG}, 384")
        e(f"s_add_u32 s{sT0}, s{sT0}, 128")
        e(f"v_add_u32 v{vWsrcA}, s{sT0}, v{vT}")
        e(f"v_add_u32 v{vWsrcA+1}, 128, v{vWsrcA}")
        e(f"v_add_u32 v{vWsrcA+2}, {8*3072}, v{vWsrcA}")
        e(f"v_add_u32 v{vWsrcA+3}, {8*3072+128}, v{vWsrcA}")
        e(f"s_mul_i32 s{sT0}, s{sG}, 160")
        rowmajor_src(vWsrcB, 3, 12, 5462, 3840, "q")
        e(f"s_mul_i32 s{sWoffA}, s{sT1}, {16*3072}")
        e(f"s_mul_i32 s{sWoffB}, s{sT1}, {16*3840}")
        e(f"s_lshl_b32 s{sLa}, s{sW}, 12")
        e(f"s_mul_i32 s{sLb}, s{sW}, 3072")
    e("s_waitcnt lgkmcnt(0)")
    e.srds(["X", "WQKV", "W1"])
    SW_A = S_WQKV if KV else S_W1
    SW_B = S_W1 if KV else S_WQKV
    stepA = 64 * (3840 if KV else 3072)
    stepB = 64 * (3072 if KV else 3840)

    def g1_dmas(s):
        if s >= 10:
            return []
        base = (s % 3) * SLOT1
        g = []
        for b in range(4):
            g.append([f"s_add_u32 m0, s{sLx}, {base + b*1024}", "s_nop 0",
                      (f"buffer_load_dwordx4 v{vXsrc+b}, s[{S_X}:{S_X+3}], s{sXoff} offen lds", ("st", s))])
        for u in range(nA):
            g.append([f"s_add_u32 m0, s{sLa}, {base + WA_OFF + u*1024}", "s_nop 0",
                      (f"buffer_load_dwordx4 v{vWsrcA+u}, s[{SW_A}:{SW_A+3}], s{sWoffA} offen lds", ("st", s))])
        for u in range(nB):
            g.append([f"s_add_u32 m0, s{sLb}, {base + WB_OFF + u*1024}", "s_nop 0",
                      (f"buffer_load_dwordx4 v{vWsrcB+u}, s[{SW_B}:{SW_B+3}], s{sWoffB} offen lds", ("st", s))])
        g[-1] = g[-1] + [
            f"s_add_u32 s{sXoff}, s{sXoff}, 128", f"s_add_u32 s{sWoffA}, s{sWoffA}, {stepA}", f"s_add_u32 s{sWoffB}, s{sWoffB}, {stepB}",
            f"s_cmp_ge_u32 s{sXoff}, s{sXlim}", f"s_cselect_b32 s{sTw}, 1280, 0", f"s_sub_u32 s{sXoff}, s{sXoff}, s{sTw}",
            f"s_cmp_ge_u32 s{sWoffA}, {10*stepA}", f"s_cselect_b32 s{sTw}, {10*stepA}, 0", f"s_sub_u32 s{sWoffA}, s{sWoffA}, s{sTw}",
            f"s_cmp_ge_u32 s{sWoffB}, {10*stepB}", f"s_cselect_b32 s{sTw}, {10*stepB}, 0", f"s_sub_u32 s{sWoffB}, s{sWoffB}, s{sTw}"]
        return g

    e.op(g1_dmas(0))
    e.stamp("st0_issued")

    e.capture()
    e.srds(["WS", "DBG"])
    e.para()
    lane_parts(e, KV, vU, vU+1, vT)
    e(f"v_mov_b32 v{vR}, v{vT}")
    e(f"s_lshl_b32 s{sT0}, s{sW}, {6 if KV else 9}")
    e(f"s_add_u32 s{sT0}, s{sT0}, {WA_OFF}")
    e(f"v_add_u32 v{vC1}, s{sT0}, v{vU}")
    e.para()
    if KV:
        e(f"s_cmp_lt_u32 s{sW}, 2")
        e(f"s_cselect_b64 s[94:95], -1, 0")
        e(f"s_lshl_b32 s{sT0}, s{sW}, 9")
        e(f"s_add_u32 s{sT0}, s{sT0}, {WB_OFF}")
        e(f"v_add_u32 v{vU+1}, s{sT0}, v{vU+1}")
        e(f"v_add_u32 v{vU}, {WA_OFF + 256}, v{vU}")
        for kk in range(4):
            e.para()
            for s in range(2):
                e(f"v_add_u32 v{vU+2}, {kk*IA['kk']+s*IA['s']}, v{vU}")
                e(f"v_add_u32 v{vU+3}, {kk*IB['kk']+s*IB['s']}, v{vU+1}")
                e(f"v_cndmask_b32 v{vC2+2*kk+s}, v{vU+2}, v{vU+3}, s[94:95]")
    else:
        e(f"s_min_u32 s{sT0}, s{sW}, 2")
        e(f"s_lshl_b32 s{sT0}, s{sT0}, 6")
        e(f"s_add_u32 s{sT0}, s{sT0}, {WB_OFF}")
        e(f"v_add_u32 v{vC2}, s{sT0}, v{vU+1}")
    e.para()
    e(f"v_and_b32 v{vT+1}, 31, v{vLane}")
    e(f"v_lshrrev_b32 v{vT+3}, 1, v{vT+1}")
    e(f"v_and_b32 v{vT+3}, 7, v{vT+3}")
    e(f"v_xor_b32 v{vT+3}, v{vT+3}, v{vHi}")
    e(f"v_lshlrev_b32 v{vT+1}, 7, v{vT+1}")
    e(f"v_add_u32 v{vT+1}, s{sLx}, v{vT+1}")
    for kk in range(4):
        e(f"v_xor_b32 v{vT+4}, {2*kk}, v{vT+3}")
        e(f"v_lshl_add_u32 v{vXa+kk}, v{vT+4}, 4, v{vT+1}")
    e.para()
    e(f"s_lshl_b32 s{sT1}, s{sW}, 5")
    e(f"s_add_u32 s{sT1}, s{sT1}, s{sT64}")
    e(f"s_sub_u32 s76, s{sT1}, 48")
    e(f"s_mul_i32 s77, s76, 13108")
    e(f"s_lshr_b32 s77, s77, 16")
    e(f"s_mul_i32 s78, s77, 5")
    e(f"s_sub_u32 s78, s76, s78")
    e(f"s_lshl_b32 s79, s78, 1")
    e(f"s_cmp_lt_u32 s78, 3")
    e(f"s_cselect_b32 s{sT2}, 0, 1")
    e(f"s_sub_u32 s79, s79, s{sT2}")
    e(f"s_add_u32 s{sT2}, s79, 1")
    e(f"s_cmp_eq_u32 s78, 2")
    e(f"s_cselect_b32 s{sT2}, 9, s{sT2}")
    e(f"s_mul_i32 s77, s77, 10")
    e(f"s_add_u32 s79, s79, s77")
    e(f"s_add_u32 s{sT2}, s{sT2}, s77")
    e.para()
    e(f"s_lshr_b32 s76, s{sT1}, 2")
    e(f"s_mul_i32 s76, s76, 12")
    e(f"s_and_b32 s77, s{sT1}, 3")
    e(f"s_lshl_b32 s77, s77, 1")
    e(f"s_add_u32 s76, s76, s77")
    e(f"s_add_u32 s76, s76, 4")
    e(f"s_sub_u32 s77, s{sT1}, 32")
    e(f"s_lshr_b32 s77, s77, 1")
    e(f"s_mul_i32 s77, s77, 12")
    e(f"s_and_b32 s78, s{sT1}, 1")
    e(f"s_lshl_b32 s78, s78, 1")
    e(f"s_add_u32 s77, s77, s78")
    e(f"s_cmp_lt_u32 s{sT1}, 32")
    e(f"s_cselect_b32 s76, s76, s77")
    e(f"s_add_u32 s77, s76, 1")
    e(f"s_cmp_lt_u32 s{sT1}, 48")
    e(f"s_cselect_b32 s79, s76, s79")
    e(f"s_cselect_b32 s{sT2}, s77, s{sT2}")
    e(f"s_cselect_b32 s{S_RP}, s54, s48")
    e(f"s_cselect_b32 s{S_RP+1}, s55, s49")
    e(f"s_mov_b32 s{S_RP+2}, {640*1280}")
    e(f"s_cselect_b32 s{S_RP+2}, {1536*1280}, s{S_RP+2}")
    e(f"s_mov_b32 s{S_RP+3}, 0x00020000")
    e.para()
    e(f"s_mul_i32 s76, s{sCc}, 160")
    e(f"s_mul_i32 s79, s79, {16*1280}")
    e(f"s_mul_i32 s{sT2}, s{sT2}, {16*1280}")
    e(f"s_sub_u32 s{sT2}, s{sT2}, {16*1280}")
    e(f"s_add_u32 s79, s79, s76")
    e(f"s_add_u32 s{sT2}, s{sT2}, s76")
    e(f"s_mul_i32 s{sRPd}, s{sCc}, 68")
    e(f"s_add_u32 s{sRPd}, s{sRPd}, s{sT1}")
    e(f"s_mul_i32 s{sRPd}, s{sRPd}, 5120")
    e(f"s_add_u32 s{sRPd}, s{sRPd}, {W2R_OFF}")
    e(f"s_cmp_lt_u32 s{sT1}, 68")
    e(f"s_cselect_b32 s79, s79, {OOB}")
    e(f"s_cselect_b32 s{sT2}, s{sT2}, {OOB}")
    e(f"s_cselect_b32 s{sRPd}, s{sRPd}, {OOB}")
    e(f"s_mul_i32 s{sRPl}, s{sW}, 5120")
    e(f"s_add_u32 s{sRPl}, s{sRPl}, {RP_LDS}")
    e(f"v_mov_b32 v{vT+3}, s79")
    e(f"v_mov_b32 v{vT+4}, s{sT2}")
    for u in range(5):
        e.para()
        e(f"v_add_u32 v{vU}, {64*u}, v{vLane}")
        e(f"v_mul_u32_u24 v{vT+1}, 6554, v{vU}")
        e(f"v_lshrrev_b32 v{vT+1}, 16, v{vT+1}")
        e(f"v_mul_u32_u24 v{vT+2}, 10, v{vT+1}")
        e(f"v_sub_u32 v{vT+2}, v{vU}, v{vT+2}")
        e(f"v_cmp_lt_u32 vcc, 15, v{vT+1}")
        e(f"v_mul_u32_u24 v{vT+1}, 1280, v{vT+1}")
        e(f"v_lshl_add_u32 v{vT+1}, v{vT+2}, 4, v{vT+1}")
        e(f"v_cndmask_b32 v{vT+5}, v{vT+3}, v{vT+4}, vcc")
        e(f"v_add_u32 v{vRs+u}, v{vT+1}, v{vT+5}")
    setup1 = e.end_capture()
    rp_dma = [[f"s_add_u32 m0, s{sRPl}, {u*1024}", "s_nop 0",
               (f"buffer_load_dwordx4 v{vRs+u}, s[{S_RP}:{S_RP+3}], 0 offen lds", "rp")] for u in range(5)]

    e.capture()
    e(f"v_lshrrev_b32 v{vU}, 4, v{vLane}")
    e(f"v_and_b32 v{vU}, 1, v{vU}")
    e(f"v_lshl_add_u32 v{vU}, v{vU}, 2, v{vR}")
    e(f"v_lshl_add_u32 v{vU}, v{vHi}, 4, v{vU}")
    e(f"v_mul_u32_u24 v{vU}, 160, v{vU}")
    e(f"v_and_b32 v{vT+1}, 3, v{vLane}")
    e(f"v_lshl_add_u32 v{vU}, v{vT+1}, 3, v{vU}")
    e(f"v_add_u32 v{vRPa}, s{sRPl}, v{vU}")
    e(f"v_subrev_u32 v{vTid}, 256, v0")
    e(f"v_mov_b32 v{vOne}, 1")
    e(f"v_mov_b32 v{vThree}, 3")
    e(f"v_cmp_gt_u32 vcc, 2, v{vTid}")
    e(f"v_lshlrev_b32 v{vT+1}, 7, v{vLane}")
    e(f"v_mov_b32 v{vT+3}, 128")
    e(f"v_cndmask_b32 v{vInA}, v{vOOB}, v{vT+1}, vcc")
    e(f"v_cndmask_b32 v{vInN}, 0, v{vT+3}, vcc")
    e(f"s_lshl_b32 s{sTa}, s{sW}, 7")
    if KV:
        e(f"s_add_u32 s{sTb}, s{sW}, 5")
        e(f"s_cmp_lt_u32 s{sW}, 2")
        e(f"s_cselect_b32 s{sTb}, s{sTb}, 4")
    else:
        e(f"s_min_u32 s{sTb}, s{sW}, 2")
        e(f"s_add_u32 s{sTb}, s{sTb}, 4")
    e(f"s_lshl_b32 s{sTb}, s{sTb}, 7")
    setup2 = e.end_capture()

    e.capture()
    e(f"s_lshr_b32 s{sT0}, s{sT64}, 1")
    e(f"s_lshl_b32 s{sT0}, s{sT0}, 11")
    e(f"s_and_b32 s{sT1}, s{sT64}, 1")
    e(f"s_lshl_b32 s{sT1}, s{sT1}, 5")
    e(f"s_add_u32 s{sT0}, s{sT0}, s{sT1}")
    e(f"s_add_u32 s{sT0}, s{sT0}, {FLG_OFF}")
    e(f"v_lshrrev_b32 v{vT+1}, 1, v{vLane}")
    e(f"v_and_b32 v{vT+3}, 1, v{vLane}")
    e(f"v_lshlrev_b32 v{vT+3}, 4, v{vT+3}")
    e(f"v_add_u32 v{vT+3}, s{sT0}, v{vT+3}")
    e(f"v_lshl_add_u32 v{vT+4}, v{vT+1}, 8, v{vT+3}")
    e(f"v_add_u32 v{vT+5}, 128, v{vT+4}")
    e(f"v_cmp_gt_u32 vcc, 16, v{vLane}")
    e(f"v_mov_b32 v{vT+3}, 2")
    e("s_nop 0")
    e(f"v_cndmask_b32 v{vPVa}, v{vOOB}, v{vT+4}, vcc")
    e(f"v_cndmask_b32 v{vPQa}, v{vOOB}, v{vT+5}, vcc")
    e(f"v_cndmask_b32 v{vN16_1}, 0, v{vOne}, vcc")
    e(f"v_cndmask_b32 v{vN16_2}, 0, v{vT+3}, vcc")
    e(f"v_cndmask_b32 v{vN32_2}, v{vT+3}, 0, s[{sHIm}:{sHIm+1}]")
    e.para()
    e(f"s_lshr_b32 s{sT0}, s{sCc}, 2")
    e(f"s_lshl_b32 s{sT0}, s{sT0}, 3")
    e(f"s_and_b32 s{sT1}, s{sCc}, 3")
    e(f"s_add_u32 s{sT0}, s{sT0}, s{sT1}")
    e(f"s_lshl_b32 s{sT0}, s{sT0}, 7")
    e(f"s_add_u32 s{sT0}, s{sT0}, {FLG_OFF + 64}")
    e(f"v_and_b32 v{vT+1}, 15, v{vLane}")
    e(f"v_lshlrev_b32 v{vT+1}, 11, v{vT+1}")
    e(f"v_and_b32 v{vT+3}, 16, v{vLane}")
    e(f"v_lshl_add_u32 v{vT+1}, v{vT+3}, 5, v{vT+1}")
    e(f"v_add_u32 v{vT+1}, s{sT0}, v{vT+1}")
    e(f"v_cndmask_b32 v{vPRa}, v{vT+1}, v{vOOB}, s[{sHIm}:{sHIm+1}]")
    e.para()
    e(f"s_mul_i32 s{sA0}, s{sT64}, 68")
    e(f"s_add_u32 s{sA0}, s{sA0}, s{sW}")
    e(f"s_lshl_b32 s{sA0}, s{sA0}, 12")
    e(f"s_mul_i32 s{sB0}, s{sCc}, 68")
    e(f"s_add_u32 s{sB0}, s{sB0}, s{sW}")
    e(f"s_mul_i32 s{sB0}, s{sB0}, 5120")
    e(f"s_add_u32 s{sB0}, s{sB0}, {W2R_OFF}")
    e(f"s_mul_i32 s{sL2}, s{sW}, 9216")
    e.para()
    e(f"s_and_b32 s{sT0}, s{sT64}, 7")
    e(f"s_and_b32 s{sT1}, s{sCc}, 3")
    if ROT2:
        e(f"s_lshl_b32 s{sCa}, s{sT1}, 1")
        e(f"s_add_u32 s{sCa}, s{sCa}, s{sT0}")
        e(f"s_and_b32 s{sCa}, s{sCa}, 7")
        e(f"s_add_u32 s{sR2}, s{sT0}, s{sT1}")
        e(f"s_add_u32 s{sR3}, s{sT0}, s{sT1}")
        e(f"s_and_b32 s{sR2}, s{sR2}, 3")
        for _ in range(2):
            e(f"s_sub_u32 s{sT2}, s{sR3}, 5")
            e(f"s_cmp_ge_u32 s{sR3}, 5")
            e(f"s_cselect_b32 s{sR3}, s{sT2}, s{sR3}")
    else:
        e(f"s_mov_b32 s{sCa}, 0")
        e(f"s_mov_b32 s{sR2}, 0")
        e(f"s_mov_b32 s{sR3}, 0")
    e(f"s_mov_b32 s{sCb}, s{sCa}")
    e(f"s_add_u32 s{sR2}, s{sR2}, 8")
    e(f"s_add_u32 s{sR3}, s{sR3}, 12")
    e.para()
    e(f"v_mul_u32_u24 v{vU}, 5120, v{vHi}")
    e(f"v_lshl_add_u32 v{vPL+1}, v{vL31x4}, 1, v{vU}")
    e(f"v_add_u32 v{vPL}, v{vL31x4}, v{vU}")
    e(f"v_add_u32 v{vPL+2}, 4096, v{vPL}")
    e(f"v_add_u32 v{vPL+3}, 4096, v{vPL+1}")
    e(f"s_mul_i32 s{sP0}, s{sI}, 10240")
    e(f"s_lshl_b32 s{sT1}, s{sW}, 8")
    e(f"s_add_u32 s{sP0}, s{sP0}, s{sT1}")
    e(f"s_add_u32 s{sP0}, s{sP0}, {STP_OFF}")
    e(f"s_mul_i32 s{sP1}, s{sJ}, 10240")
    e(f"s_add_u32 s{sP1}, s{sP1}, {CSP_OFF}")
    e(f"s_add_u32 s{sP2}, s{sP1}, s{sTb}")
    e(f"s_add_u32 s{sP1}, s{sP1}, s{sTa}")
    if not KV:
        e.para()
        e(f"s_lshl_b32 s{sT0}, s{sG}, 8")
        e(f"s_add_u32 s{sT0}, s{sT0}, {FLG_OFF + 64}")
        e(f"v_lshrrev_b32 v{vT+1}, 2, v{vLane}")
        e(f"v_lshlrev_b32 v{vT+1}, 11, v{vT+1}")
        e(f"v_and_b32 v{vT+3}, 3, v{vLane}")
        e(f"v_lshl_add_u32 v{vT+1}, v{vT+3}, 4, v{vT+1}")
        e(f"v_add_u32 v{vPKa}, s{sT0}, v{vT+1}")
        for rnd in range(2):
            e.para()
            A1 = KA + 2*rnd
            A2 = A1 + 1
            e(f"v_add_u32 v{vT}, {256*rnd}, v{vTid}")
            e(f"v_mul_u32_u24 v{vT+1}, 3121, v{vT}")
            e(f"v_lshrrev_b32 v{vT+1}, 16, v{vT+1}")
            e(f"v_mul_u32_u24 v{vT+2}, 21, v{vT+1}")
            e(f"v_sub_u32 v{vT+2}, v{vT}, v{vT+2}")
            e(f"v_mul_u32_u24 v{vT+3}, 13108, v{vT+1}")
            e(f"v_lshrrev_b32 v{vT+3}, 16, v{vT+3}")
            e(f"v_mul_u32_u24 v{vT+4}, 20, v{vT+3}")
            e(f"v_add_u32 v{vT+4}, v{vT+4}, v{vT+2}")
            e(f"v_add_u32 v{vT+5}, 16, v{vT+4}")
            e(f"v_cmp_lt_u32 vcc, 63, v{vT+4}")
            e(f"v_add_u32 v{vT+3}, 64, v{vT+3}")
            e("s_nop 0")
            e(f"v_cndmask_b32 v{vT+4}, v{vT+4}, v{vT+5}, vcc")
            e(f"v_cmp_eq_u32 vcc, 20, v{vT+2}")
            e(f"v_add_u32 v{vT+5}, 4, v{vT+3}")
            e("s_nop 0")
            e(f"v_cndmask_b32 v{vT+5}, v{vT+4}, v{vT+5}, vcc")
            e(f"v_cndmask_b32 v{vT+4}, v{vT+4}, v{vT+3}, vcc")
            e(f"v_lshrrev_b32 v{vT+2}, 2, v{vT+1}")
            e(f"v_lshlrev_b32 v{vT+2}, 5, v{vT+2}")
            e(f"v_and_b32 v{vT+3}, 1, v{vT+1}")
            e(f"v_lshl_add_u32 v{vT+2}, v{vT+3}, 4, v{vT+2}")
            e(f"v_and_b32 v{vT+3}, 2, v{vT+1}")
            e(f"v_lshl_add_u32 v{vT+2}, v{vT+3}, 2, v{vT+2}")
            e(f"v_add_u32 v{vT+2}, {KVT_LDS}, v{vT+2}")
            e(f"v_mad_u32_u24 v{A1}, v{vT+4}, s{sKVTP}, v{vT+2}")
            e(f"v_mad_u32_u24 v{A2}, v{vT+5}, s{sKVTP}, v{vT+2}")
        e.para()
        vK1, vK2 = KA + 4, KA + 5
        e(f"v_mov_b32 v{vT}, {KVT_LDS + 100*KVT_P}")
        e(f"v_cmp_gt_u32 vcc, 164, v{vTid}")
        e(f"v_lshlrev_b32 v{vK1}, 4, v{vTid}")
        e(f"v_add_u32 v{vK2}, 4096, v{vK1}")
        e(f"v_cndmask_b32 v{KA+2}, v{vT}, v{KA+2}, vcc")
        e(f"v_cndmask_b32 v{KA+3}, v{vT}, v{KA+3}, vcc")
        e(f"v_cndmask_b32 v{vK2}, v{vOOB}, v{vK2}, vcc")
    setup3 = e.end_capture()
    e.merge(g1_dmas(1), setup1 + setup2 + setup3)
    e.stamp("st1_issued")

    def xhalf(c, tmp):
        return [f"v_mov_b32 v{tmp}, v{c}", "s_nop 1", f"v_permlane32_swap_b32 v{c}, v{tmp}", "s_nop 1", f"v_add_f32 v{c}, v{c}, v{tmp}"]

    def partial_reads():
        rd = [f"ds_read_b128 {r4(vXd_+4*kk)}, v{vXa+kk}" for kk in range(4)]
        for kk in range(4):
            for h in range(2):
                d = vD + 4*kk + 2*h
                rd.append(f"ds_read_b64_tr_b16 v[{d}:{d+1}], v{vC1} offset:{kk*IA['kk'] + h*IA['s']}")
        for kk in range(4):
            for h in range(2):
                d = vD + 16 + 4*kk + 2*h
                if KV:
                    rd.append(f"ds_read_b64_tr_b16 v[{d}:{d+1}], v{vC2+2*kk+h}")
                else:
                    rd.append(f"ds_read_b64_tr_b16 v[{d}:{d+1}], v{vC2} offset:{kk*IB['kk'] + h*IB['s']}")
        return rd

    def partial_valu():
        P = [[f"v_mov_b32 v{vSx+r}, 0" for r in range(4)] + [f"v_mov_b32 v{vCs+r}, 0" for r in range(4)]]
        for r in range(0, 16, 2):
            x = vXd_ + r
            a = vU
            P.append([f"v_lshlrev_b32 v{a}, 16, v{x}", f"v_and_b32 v{a+1}, s{sHiMask}, v{x}",
                      f"v_lshlrev_b32 v{a+2}, 16, v{x+1}", f"v_and_b32 v{a+3}, s{sHiMask}, v{x+1}",
                      f"v_add_f32 v{vSx}, v{vSx}, v{a}", f"v_add_f32 v{vSx+1}, v{vSx+1}, v{a+1}",
                      f"v_fmac_f32 v{vSx+2}, v{a}, v{a}", f"v_fmac_f32 v{vSx+3}, v{a+1}, v{a+1}",
                      f"v_add_f32 v{vSx}, v{vSx}, v{a+2}", f"v_add_f32 v{vSx+1}, v{vSx+1}, v{a+3}",
                      f"v_fmac_f32 v{vSx+2}, v{a+2}, v{a+2}", f"v_fmac_f32 v{vSx+3}, v{a+3}, v{a+3}"])
        for r in range(16):
            x, y = vD + r, vD + 16 + r
            a = vU
            P.append([f"v_lshlrev_b32 v{a}, 16, v{x}", f"v_and_b32 v{a+1}, s{sHiMask}, v{x}",
                      f"v_lshlrev_b32 v{a+2}, 16, v{y}", f"v_and_b32 v{a+3}, s{sHiMask}, v{y}",
                      f"v_add_f32 v{vCs}, v{vCs}, v{a}", f"v_add_f32 v{vCs+1}, v{vCs+1}, v{a+1}",
                      f"v_add_f32 v{vCs+2}, v{vCs+2}, v{a+2}", f"v_add_f32 v{vCs+3}, v{vCs+3}, v{a+3}"])
        P.append([f"v_add_f32 v{vSx}, v{vSx}, v{vSx+1}", f"v_add_f32 v{vSx+1}, v{vSx+2}, v{vSx+3}",
                  f"v_add_f32 v{vCs}, v{vCs}, v{vCs+1}", f"v_add_f32 v{vCs+2}, v{vCs+2}, v{vCs+3}"])
        for c in (vSx, vSx+1, vCs, vCs+2):
            P.append(xhalf(c, vU) + [f"v_max_u32 v{c}, 1, v{c}"])
        return P

    def partial_publish():
        slot_offsets(e, sT0, sT3)
        e(f"s_lshl_b32 s{sT1}, s{sW}, 8")
        e(f"s_add_u32 s{sT0}, s{sT0}, s{sT1}")
        e(f"v_lshlrev_b32 v{vU}, 1, v{vL31x4}")
        e(f"v_cndmask_b32 v{vU}, v{vU}, v{vOOB}, s[{sHIm}:{sHIm+1}]")
        e(f"v_cndmask_b32 v{vU+1}, v{vL31x4}, v{vOOB}, s[{sHIm}:{sHIm+1}]")
        e.vmop(f"buffer_store_dwordx2 v[{vSx}:{vSx+1}], v{vU}, s[{S_WS}:{S_WS+3}], s{sT0} offen sc1", "pp")
        e(f"s_add_u32 s{sT1}, s{sT3}, s{sTa}")
        e(f"s_add_u32 s{sT2}, s{sT3}, s{sTb}")
        e.vmop(f"buffer_store_dword v{vCs}, v{vU+1}, s[{S_WS}:{S_WS+3}], s{sT1} offen sc1", "pp")
        e.vmop(f"buffer_store_dword v{vCs+2}, v{vU+1}, s[{S_WS}:{S_WS+3}], s{sT2} offen sc1", "pp")

    def partial_loads(track):
        for k in range(5):
            vs, vc, off = (vPL+1, vPL, f" offset:{k*1024}") if k < 4 else (vPL+3, vPL+2, "")
            for ins in (f"buffer_load_dwordx2 v[{vD+2*k}:{vD+2*k+1}], v{vs}, s[{S_WS}:{S_WS+3}], s{sP0} offen{off} sc1",
                        f"buffer_load_dword v{vD+10+k}, v{vc}, s[{S_WS}:{S_WS+3}], s{sP1} offen{off} sc1",
                        f"buffer_load_dword v{vD+16+k}, v{vc}, s[{S_WS}:{S_WS+3}], s{sP2} offen{off} sc1"):
                if track:
                    e.vmop(ins, "pl")
                else:
                    e(ins)

    def partial_validate():
        regs = list(range(vD, vD+15)) + list(range(vD+16, vD+21))
        e.wait_vm({"pl"})
        e(f"s_mov_b32 s{sSpin}, 0")
        e.label(f"L_pv{typ}")
        e(f"v_min_u32 v{vU}, v{regs[0]}, v{regs[1]}")
        for k in range(2, 20, 2):
            e(f"v_min3_u32 v{vU}, v{vU}, v{regs[k]}, v{regs[k+1]}")
        e(f"v_cmp_eq_u32 vcc, 0, v{vU}")
        e(f"s_add_u32 s{sSpin}, s{sSpin}, 1")
        e(f"s_cmp_lt_u32 s{sSpin}, 0x20000")
        e(f"s_cselect_b64 s[94:95], -1, 0")
        e(f"s_and_b64 vcc, vcc, s[94:95]")
        e(f"s_cbranch_vccz L_pvok{typ}")
        e("s_sleep 2")
        partial_loads(False)
        e("s_waitcnt vmcnt(0)")
        e(f"s_branch L_pv{typ}")
        e.label(f"L_pvok{typ}")

    def partial_finish():
        for k in range(1, 5):
            e(f"v_add_f32 v{vD}, v{vD}, v{vD+2*k}")
            e(f"v_add_f32 v{vD+1}, v{vD+1}, v{vD+2*k+1}")
            e(f"v_add_f32 v{vD+10}, v{vD+10}, v{vD+10+k}")
            e(f"v_add_f32 v{vD+16}, v{vD+16}, v{vD+16+k}")
        cs = (vD, vD+1, vD+10, vD+16)
        for n, c in enumerate(cs):
            e(f"v_mov_b32 v{vU+n}, v{c}")
        e("s_nop 1")
        for n, c in enumerate(cs):
            e(f"v_permlane32_swap_b32 v{c}, v{vU+n}")
        e("s_nop 1")
        for n, c in enumerate(cs):
            e(f"v_add_f32 v{c}, v{c}, v{vU+n}")
        O = vD + 24
        e(f"v_mul_f32 v{vT+5}, {f32bits(1.0/640):#x}, v{vD}")
        e(f"v_mul_f32 v{vT+4}, {f32bits(1.0/640):#x}, v{vD+1}")
        e(f"v_fma_f32 v{vT+4}, -v{vT+5}, v{vT+5}, v{vT+4}")
        e(f"v_max_f32 v{vT+4}, 0, v{vT+4}")
        e(f"v_cvt_pk_bf16_f32 v{vT+2}, v{vT+5}, v{vT+4}")
        e(f"v_lshlrev_b32 v{vT+3}, 16, v{vT+2}")
        e(f"v_and_b32 v{vT+4}, s{sHiMask}, v{vT+2}")
        e(f"v_add_f32 v{vT+4}, {f32bits(1e-5):#x}, v{vT+4}")
        e(f"v_cvt_pk_bf16_f32 v{vT+4}, v{vT+4}, v{vT+4}")
        e(f"v_and_b32 v{vT+4}, s{sHiMask}, v{vT+4}")
        e(f"v_sqrt_f32 v{vT+4}, v{vT+4}")
        e(f"v_xor_b32 v{vT+2}, 0x80000000, v{vT+3}")
        e(f"v_cvt_pk_bf16_f32 v{vT+4}, v{vT+4}, v{vT+4}")
        e(f"v_and_b32 v{O+2}, s{sHiMask}, v{vT+4}")
        e(f"v_rcp_f32 v{O+1}, v{O+2}")
        e(f"v_lshrrev_b32 v{vT+4}, 16, v{vT+2}")
        e(f"v_mul_f32 v{O+3}, {f32bits(LOG2E):#x}, v{O+1}")
        e(f"v_or_b32 v{O}, v{vT+2}, v{vT+4}")
        e(f"s_mul_i32 s{sT0}, s{sW}, 768")
        e(f"s_add_u32 s{sT0}, s{sT0}, {STAT_LDS}")
        e(f"v_lshl_add_u32 v{vT+1}, v{vL31x4}, 2, s{sT0}")
        e(f"v_add_u32 v{vT+2}, s{sT0}, v{vL31x4}")
        e(f"ds_write_b128 v{vT+1}, {r4(O)}")
        if KV:
            e(f"ds_write_b32 v{vT+2}, v{O+3} offset:512")
            e(f"ds_write_b32 v{vT+2}, v{O+1} offset:640")
        for k, c in enumerate((vD+10, vD+16)):
            x = vD + 28 + 2*k
            e(f"v_and_b32 v{vU}, s{sHiMask}, v{c}")
            e(f"v_sub_f32 v{vU}, v{c}, v{vU}")
            e(f"v_lshrrev_b32 v{c}, 16, v{c}")
            e(f"v_and_or_b32 v{x}, v{vU}, s{sHiMask}, v{c}")
            e(f"v_and_b32 v{vU+1}, s{sHiMask}, v{vU}")
            e(f"v_sub_f32 v{vU+1}, v{vU}, v{vU+1}")
            e(f"v_lshrrev_b32 v{x+1}, 16, v{vU+1}")
            e(f"s_lshl_b32 s{sT0}, s{sTa if k == 0 else sTb}, 1")
            e(f"s_add_u32 s{sT0}, s{sT0}, {EXT_LDS}")
            e(f"v_lshl_add_u32 v{vT+1}, v{vL31x4}, 1, s{sT0}")
            e(f"ds_write_b64 v{vT+1}, v[{x}:{x+1}]")

    def cursor(cur, s):
        if s == 7:
            return [f"s_mov_b32 s{cur}, s{sR2}"]
        if s == 11:
            return [f"s_mov_b32 s{cur}, s{sR3}"]
        lim, lo = (8, 0) if s < 7 else ((12, 8) if s < 11 else (17, 12))
        return [f"s_add_u32 s{cur}, s{cur}, 1", f"s_cmp_eq_u32 s{cur}, {lim}", f"s_cselect_b32 s{cur}, {lo}, s{cur}"]

    def a_dmas(s):
        base = G2S[s % 3]
        g = [f"s_lshl_b32 s{sA}, s{sCa}, 14", f"s_add_u32 s{sA}, s{sA}, s{sA0}", f"s_add_u32 m0, s{sL2}, {base}", "s_nop 0"]
        for m in range(4):
            g.append((f"buffer_load_dwordx4 v{vL16}, s[{S_WS}:{S_WS+3}], s{sA} offen offset:{1024*m} sc1 lds", ("g2", s)))
        return g + cursor(sCa, s)

    def b_dmas(s):
        base = G2S[s % 3] + 4096
        g = [f"s_mul_i32 s{sB}, s{sCb}, {4*5120}", f"s_add_u32 s{sB}, s{sB}, s{sB0}", f"s_add_u32 m0, s{sL2}, {base}", "s_nop 0"]
        for nu in range(4):
            g.append((f"buffer_load_dwordx4 v{vL16}, s[{S_WS}:{S_WS+3}], s{sB} offen offset:{1024*nu} sc1 lds", ("g2", s)))
        g += [f"s_add_u32 m0, s{sL2}, {base + 4096}", "s_nop 0",
              (f"buffer_load_dwordx4 v{vL16b}, s[{S_WS}:{S_WS+3}], s{sB} offen sc1 lds", ("g2", s))]
        return g + cursor(sCb, s)

    PV = partial_valu()
    n3 = len(PV) // 3
    for s in range(10):
        e.c(f"--- G1 stage {s} ---")
        tags = {("st", s)}
        if s == 6:
            tags.add("rps")
        e.wait_vm(tags, lgkm=0)
        e("s_barrier")
        if STAMP:
            e.stamp(f"B{s}")
        dm = g1_dmas(s + 2)
        va = []
        if s == 0:
            for x in partial_reads():
                e(x)
            e.op(dm.pop(0))
            e.op(dm.pop(0))
            e("s_waitcnt lgkmcnt(0)")
            va = PV[:n3]
            dm = dm + rp_dma
        if s == 1:
            va = PV[n3:2*n3]
        if s == 2:
            va = PV[2*n3:]
        if s == 3:
            assert not e.pending("rp")
            for nu in range(5):
                for h in range(2):
                    e(f"ds_read_b64_tr_b16 v[{vD+48+4*nu+2*h}:{vD+48+4*nu+2*h+1}], v{vRPa} offset:{32*nu+1280*h}")
            partial_publish()
            e("s_waitcnt lgkmcnt(0)")
            st = []
            for nu in range(5):
                if nu < 4:
                    st.append([(f"buffer_store_dwordx4 {r4(vD+48+4*nu)}, v{vL16}, s[{S_WS}:{S_WS+3}], s{sRPd} offen offset:{1024*nu} sc1", "rps")])
                else:
                    st.append([(f"buffer_store_dwordx4 {r4(vD+48+4*nu)}, v{vL16b}, s[{S_WS}:{S_WS+3}], s{sRPd} offen sc1", "rps")])
            dm = dm + st
            dm.append([(f"buffer_load_dword v{vPoll}, v{vInA}, s[{S_DBG}:{S_DBG+3}], 0 offen sc1", "pin")])
        if s == 6:
            e.flag_store(2)
        e.merge(dm, va)
        if s == 5:
            e.poll_check(vInA, S_DBG, vInN, "pin")
        if s == 7:
            e.poll_issue(vPRa, S_WS, "pr")
        if s == 8:
            partial_loads(True)
            if not KV:
                e(f"v_lshlrev_b32 v{vT}, 4, v{vTid}")
                e(f"v_add_u32 v{vT}, {KVT_LDS}, v{vT}")
                for r in range(4):
                    e(f"v_mov_b32 v{vT+2+r}, 0")
                for q in range(5):
                    e(f"ds_write_b128 v{vT}, v[{vT+2}:{vT+5}] offset:{q*4096}")
            e.poll_check(vPRa, S_WS, vN32_2, "pr")
            e.op(b_dmas(0))
        if s == 9:
            e.op(b_dmas(1))
            partial_validate()
            partial_finish()
            e(f"s_and_b32 s{sT0}, s{sT64}, 7")
            e(f"s_mul_i32 s{sT0}, s{sT0}, {340*128}")
            e(f"s_mul_i32 s{sT1}, s{sCc}, {68*5120}")
            e(f"s_add_u32 s{sT0}, s{sT0}, s{sT1}")
            e(f"s_add_u32 s{sT0}, s{sT0}, {W2R_OFF}")
            e(f"v_lshlrev_b32 v{vU}, 7, v{vTid}")
            e(f"v_add_u32 v{vU+1}, {256*128}, v{vU}")
            e(f"v_cmp_gt_u32 vcc, 84, v{vTid}")
            e.vmop(f"buffer_load_dword v{vD+40}, v{vU}, s[{S_WS}:{S_WS+3}], s{sT0} offen sc1", "tp")
            e(f"v_cndmask_b32 v{vU+1}, v{vOOB}, v{vU+1}, vcc")
            e.vmop(f"buffer_load_dword v{vD+41}, v{vU+1}, s[{S_WS}:{S_WS+3}], s{sT0} offen sc1", "tp")
    e("s_waitcnt lgkmcnt(0)")
    e("s_barrier")
    e.stamp("E1")

    e.op(b_dmas(2))
    if KV:
        e(f"v_lshlrev_b32 v{vU}, 2, v{vTid}")
        e(f"v_add_u32 v{vU+1}, {CP_LDS}, v{vU}")
        e(f"v_add_u32 v{vU+2}, 4096, v{vU}")
        e(f"v_add_u32 v{vU+3}, {6*1024}, v{vU}")
        e(f"v_cmp_gt_u32 vcc, 144, v{vTid}")
        e(f"s_lshl_b32 s{sT1}, s{sG}, 13")
        e(f"s_add_u32 s{sT1}, s{sT1}, {KVA_OFF}")
        e(f"v_cndmask_b32 v{vU+3}, v{vOOB}, v{vU+3}, vcc")
        e("s_barrier")
        e.stamp("E2")
        for k in range(7):
            for ww in range(4):
                e(f"ds_read_b32 v{vD+4*k+ww}, v{vU+1} offset:{ww*6784+k*1024}")
        for k in range(7):
            e(f"s_waitcnt lgkmcnt({min(15, 4*(6-k))})")
            b = vD + 4*k
            e(f"v_add_f32 v{b}, v{b}, v{b+1}")
            e(f"v_add_f32 v{b+2}, v{b+2}, v{b+3}")
            e(f"v_add_f32 v{b}, v{b}, v{b+2}")
            if k < 4:
                e.vmop(f"buffer_atomic_add_f32 v{b}, v{vU}, s[{S_WS}:{S_WS+3}], s{sT1} offen offset:{k*1024}", "kva")
            elif k < 6:
                e.vmop(f"buffer_atomic_add_f32 v{b}, v{vU+2}, s[{S_WS}:{S_WS+3}], s{sT1} offen offset:{(k-4)*1024}", "kva")
            else:
                e.vmop(f"buffer_atomic_add_f32 v{b}, v{vU+3}, s[{S_WS}:{S_WS+3}], s{sT1} offen", "kva")
    e.poll_issue(vPQa, S_WS, "pq")
    if KV:
        e.wait_vm({"kva"})
        e.flag_store(3)
        e.stamp("kv_flag")
    e.poll_check(vPQa, S_WS, vN16_1, "pq")
    e.stamp("PQ_ok")
    for s in range(3):
        e.op(a_dmas(s))

    KS = OST - 1
    for s in range(17):
        e.c(f"--- G2 stage {s} ---")
        e.wait_vm({("g2", s)}, lgkm=0)
        e("s_barrier")
        if STAMP and s in (0, 1, 2, 3, 4, 5, 6, 8, 10, 12, 14, 16):
            e.stamp(f"G{s}")
        n = s + 2
        if not KV and s == KS:
            e.poll_check(vPKa, S_WS, vThree, "pk", dst=vD+20)
            e.stamp("PK_ok")
            e(f"s_lshl_b32 s{sT0}, s{sG}, 13")
            e(f"s_add_u32 s{sT0}, s{sT0}, {KVA_OFF}")
            for rnd in range(2):
                e.vmop(f"buffer_load_dwordx4 {r4(vD+4*rnd)}, v{KA+4+rnd}, s[{S_WS}:{S_WS+3}], s{sT0} offen sc1", "kv")
        if s >= 1 and n < 17:
            if n == 8:
                e.poll_check(vPVa, S_WS, vN16_1, "pv")
                e.stamp("PV_ok")
            if n == 12:
                e.poll_check(vPQa, S_WS, vN16_2, "po")
                e.stamp("PO_ok")
            e.op(a_dmas(n))
            e.op(b_dmas(n))
            if n == 7:
                e.poll_issue(vPVa, S_WS, "pv")
            if n == 11:
                e.poll_issue(vPQa, S_WS, "po")
        if not KV:
            if s == KS - 1:
                e.poll_issue(vPKa, S_WS, "pk", dst=vD+20)
            if s == KS:
                e.wait_vm({"kv"})
                for rnd in range(2):
                    b = vD + 4*rnd
                    e(f"v_cvt_pk_bf16_f32 v{vD+8+2*rnd}, v{b}, v{b+1}")
                    e(f"v_cvt_pk_bf16_f32 v{vD+9+2*rnd}, v{b+2}, v{b+3}")
                    e(f"ds_write_b64 v{KA+2*rnd}, v[{vD+8+2*rnd}:{vD+9+2*rnd}]")
                    e(f"ds_write_b64 v{KA+1+2*rnd}, v[{vD+8+2*rnd}:{vD+9+2*rnd}]")
                e.stamp("KVT_done")
    e.stamp("end")
    e.stamp("end_real", True)
    e.stamp_flush()
    e("s_endpgm")
    e.label(f"L_H{typ}_end")
    return e


def gen():
    e = Em("top")
    K = NAME + "_kernel"
    e.L.append(f".globl {K}\n.p2align 8\n.type {K},@function\n{K}:")
    e("s_load_dwordx4 s[44:47], s[0:1], 0")
    e("s_load_dwordx2 s[48:49], s[0:1], 16")
    e("s_load_dwordx4 s[52:55], s[0:1], 32")
    e("s_load_dwordx2 s[50:51], s[0:1], 48")
    e("s_load_dwordx2 s[56:57], s[0:1], 56")
    e("s_load_dwordx2 s[58:59], s[0:1], 64")
    e("s_cmp_ge_u32 s2, 256")
    e("s_cbranch_scc1 L_exit")
    e(f"v_and_b32 v{vLane}, 63, v0")
    e(f"v_lshrrev_b32 v{vT}, 6, v0")
    e(f"v_lshrrev_b32 v{vHi}, 5, v{vLane}")
    e(f"v_readfirstlane_b32 s{sT3}, v{vT}")
    e(f"v_and_b32 v{vL31x4}, 31, v{vLane}")
    e(f"v_lshlrev_b32 v{vL31x4}, 2, v{vL31x4}")
    if STAMP:
        e(f"v_mov_b32 v{vStamp}, 0")
    e(f"s_and_b32 s{sT0}, s2, 1")
    e(f"s_lshl_b32 s{sT0}, s{sT0}, 3")
    e(f"s_bfe_u32 s{sT2}, s2, 0x30003")
    e(f"s_add_u32 s{sI}, s{sT0}, s{sT2}")
    e(f"s_bfe_u32 s{sT0}, s2, 0x20001")
    e(f"s_lshl_b32 s{sT0}, s{sT0}, 2")
    e(f"s_lshr_b32 s{sT1}, s2, 6")
    e(f"s_add_u32 s{sJ}, s{sT0}, s{sT1}")
    e(f"s_lshr_b32 s{sG}, s{sJ}, 1")
    e(f"s_and_b32 s{sT0}, s2, 3")
    e(f"s_lshl_b32 s{sT0}, s{sT0}, 3")
    e(f"s_add_u32 s{sT64}, s{sT0}, s{sT2}")
    e(f"s_bfe_u32 s{sT0}, s2, 0x10002")
    e(f"s_lshl_b32 s{sT0}, s{sT0}, 2")
    e(f"s_add_u32 s{sCc}, s{sT0}, s{sT1}")
    e(f"s_and_b32 s{sW}, s{sT3}, 3")
    e(f"s_lshr_b32 s{sRole}, s{sT3}, 2")
    e(f"s_mul_i32 s{sRot}, s{sJ}, 3")
    e(f"s_add_u32 s{sRot}, s{sRot}, s{sI}")
    e(f"s_mul_i32 s{sT2}, s{sRot}, 205")
    e(f"s_lshr_b32 s{sT2}, s{sT2}, 11")
    e(f"s_mul_i32 s{sT2}, s{sT2}, 10")
    e(f"s_sub_u32 s{sRot}, s{sRot}, s{sT2}")
    e(f"s_lshl_b32 s{sFlag}, s{sI}, 4")
    e(f"s_add_u32 s{sFlag}, s{sFlag}, s{sJ}")
    e(f"s_lshl_b32 s{sFlag}, s{sFlag}, 3")
    e(f"s_add_u32 s{sFlag}, s{sFlag}, s{sT3}")
    e(f"s_lshl_b32 s{sFlag}, s{sFlag}, 4")
    e(f"s_add_u32 s{sFlag}, s{sFlag}, {FLG_OFF}")
    e(f"v_mov_b32 v{vT}, {OOB}")
    e(f"v_cmp_eq_u32 vcc, 0, v{vLane}")
    e(f"v_lshlrev_b32 v{vL16}, 4, v{vLane}")
    e(f"v_add_u32 v{vL16b}, 4096, v{vL16}")
    e(f"v_cndmask_b32 v{vFl0}, v{vT}, 0, vcc")
    e(f"s_mov_b32 s{sKVTP}, 176")
    e(f"s_mov_b32 s{sC}, {f32bits(1e-6/LN2):#x}")
    e(f"s_mov_b32 s{sLn2}, {f32bits(LN2):#x}")
    e(f"s_mov_b32 s{sHiMask}, 0xffff0000")
    e(f"s_mov_b32 s{sHIm}, 0")
    e(f"s_mov_b32 s{sHIm+1}, -1")
    e(f"s_mov_b32 s{sL16m}, 0xffff0000")
    e(f"s_mov_b32 s{sL16m+1}, 0xffff0000")
    e(f"s_and_b32 s{sT0}, s{sJ}, 1")
    e(f"s_lshl_b32 s{sT0}, s{sT0}, 1")
    e(f"s_add_u32 s{sT0}, s{sT0}, s{sRole}")
    e(f"s_cmp_eq_u32 s{sT0}, 1")
    e("s_cbranch_scc1 L_HKV")
    e(f"s_cmp_eq_u32 s{sT0}, 2")
    e("s_cbranch_scc1 L_CQ")
    e(f"s_cmp_eq_u32 s{sT0}, 3")
    e("s_cbranch_scc1 L_HQ")
    body = "".join(p.text() for p in [compute_path("KV"), helper_path("KV"), compute_path("Q"), helper_path("Q")])
    return e.text() + body + "L_exit:\n    s_endpgm\n"


def main():
    K = NAME + "_kernel"
    out = ["; generated by gen/gen5.py -- LN + linear attention + FFN, one persistent kernel (256 workgroups x 8 waves)",
           "; @launch grid=(256,1,1) block=(512,1,1) lds=163840",
           '.amdgcn_target "amdgcn-amd-amdhsa--gfx950"', ".text", gen(),
           '.section .rodata,"a"', ".p2align 6",
           f""".amdhsa_kernel {K}
  .amdhsa_next_free_vgpr 256
  .amdhsa_next_free_sgpr 102
  .amdhsa_accum_offset 256
  .amdhsa_group_segment_fixed_size 0
  .amdhsa_kernarg_size 72
  .amdhsa_user_sgpr_count 2
  .amdhsa_user_sgpr_kernarg_segment_ptr 1
  .amdhsa_system_sgpr_workgroup_id_x 1
.end_amdhsa_kernel
"""]
    return "\n".join(out)


if __name__ == "__main__":
    p = sys.argv[1] if len(sys.argv) > 1 else f"cdna_kernels/{NAME}.s"
    open(p, "w").write(main())
    print("wrote", p)
```

```python
import sys, struct, os

NAME = "parallel_sum__linear_attn_block__dense_activation_relu__prompt"

ACT_OFF = 0
W2R_OFF = 0x900000
KVA_OFF = 0xC00000
RSTD_OFF = 0xD00000
FLG_OFF = 0xD10000
STP_OFF = 0xD20000
CSP_OFF = 0xD50000
STAMP_OFF = 0xD80000
WS_SIZE = 0xE00000
OOB = 0x40000000
STAMP = os.environ.get("STAMP", "0") == "1"
ROT2 = int(os.environ.get("ROT2", "1"))
HF = int(os.environ.get("HF", "2"))
SLP = int(os.environ.get("SLP", "4"))
KVF = int(os.environ.get("KVF", "14"))
OST = int(os.environ.get("OST", "3"))

def f32bits(x):
    return struct.unpack("<I", struct.pack("<f", x))[0]

LOG2E = 1.4426950408889634
LN2 = 0.6931471805599453

SLOT1 = 45056
WA_OFF = 16384
SLOT2 = 36864
G2S = [90112, 0, 45056]
CP_LDS = 16384
CPW = [0, 6784, 13568, 45056]
OUT_LDS = 90112
RP_LDS = 135168
KVT_LDS = 135168
STAT_LDS = 156672
EXT_LDS = 159744
KVT_P = 176

S_X, S_WQKV, S_W1, S_WS, S_DBG, S_RP, S_CODE, S_OUT = 8, 12, 16, 20, 24, 28, 32, 84
sW, sI, sG, sT0, sT1, sT2, sT3, sXlim = 36, 37, 38, 39, 40, 41, 42, 43
sXoff, sWoffA, sWoffB = 60, 61, 62
sLx, sLa, sLb = 63, 64, 75
sC, sLn2, sHiMask = 65, 66, 67
sACT = 68
sTw = 69
sHIm = 70
sL16m = 72
sFlag = 74
sRPl, sRPd = 77, 78
sKVTP, sSpin, sRot = 81, 82, 83
sJ, sT64, sCc, sA, sB, sCnt = 88, 89, 90, 91, 92, 93
sSlot, sD = 96, 97
sA0, sB0 = 76, 79
sRole = 80
vLane, vHi, vL31x4, vFl0, vL16, vL16b, vStamp, vPoll, vPollN = 1, 2, 3, 4, 5, 6, 7, 8, 9
vT = 10


class Em:
    def __init__(self, lab):
        self.L = []
        self.vm = []
        self.stamps = []
        self.nlab = 0
        self.lab = lab
        self.cap = None

    def __call__(self, s):
        for line in s.split("\n"):
            if self.cap is not None:
                self.cap[-1].append(line)
            else:
                self.L.append("    " + line)

    def capture(self):
        self.cap = [[]]

    def para(self):
        if self.cap is not None and self.cap[-1]:
            self.cap.append([])

    def end_capture(self):
        c = [p for p in self.cap if p]
        self.cap = None
        return c

    def label(self, s):
        self.L.append(s + ":")

    def c(self, s):
        self.L.append("    ; " + s)

    def vmop(self, s, tag):
        assert self.cap is None
        self(s)
        self.vm.append(tag)
        assert len(self.vm) <= 63, self.vm

    def op(self, o):
        if isinstance(o, tuple):
            self.vmop(o[0], o[1])
        elif isinstance(o, list):
            for x in o:
                self.op(x)
        else:
            self(o)

    def merge(self, dm, paras):
        dm, paras = list(dm), list(paras)
        while dm or paras:
            if dm:
                self.op(dm.pop(0))
            k = -(-len(paras) // (len(dm) + 1)) if paras else 0
            for _ in range(k):
                self.op(paras.pop(0))

    def vm_n(self, tags):
        last = -1
        for k, t in enumerate(self.vm):
            if t in tags:
                last = k
        n = len(self.vm) - 1 - last
        self.vm = self.vm[last + 1:]
        return n

    def wait_vm(self, tags, lgkm=None):
        n = self.vm_n(tags)
        if lgkm is None:
            self(f"s_waitcnt vmcnt({n})")
        else:
            self(f"s_waitcnt vmcnt({n}) lgkmcnt({lgkm})")

    def pending(self, tag):
        return tag in self.vm

    def stamp(self, name, real=False):
        if not STAMP:
            return
        k = len(self.stamps)
        self.stamps.append(name)
        assert k < 60
        self("s_waitcnt lgkmcnt(0)")
        self(("s_memrealtime" if real else "s_memtime") + " s[98:99]")
        self("s_waitcnt lgkmcnt(0)")
        self(f"v_writelane_b32 v{vStamp}, s98, {k}")

    def stamp_flush(self):
        if not STAMP:
            return
        self(f"s_lshl_b32 s98, s2, 3")
        self(f"s_add_u32 s98, s98, s{sW}")
        self(f"s_lshl_b32 s99, s{sRole}, 2")
        self(f"s_add_u32 s98, s98, s99")
        self(f"s_lshl_b32 s98, s98, 8")
        self(f"s_add_u32 s98, s98, {STAMP_OFF}")
        self(f"v_lshlrev_b32 v{vT}, 2, v{vLane}")
        self(f"buffer_store_dword v{vStamp}, v{vT}, s[{S_WS}:{S_WS+3}], s98 offen")
        print(f"stamps: {self.lab}:" + ",".join(self.stamps))

    def flag_store(self, val):
        self(f"v_mov_b32 v{vPollN}, {val}")
        self.vmop(f"buffer_store_dword v{vPollN}, v{vFl0}, s[{S_WS}:{S_WS+3}], s{sFlag} offen sc1", "flag")

    def poll_issue(self, vaddr, srd, tag, dst=None):
        self.vmop(f"buffer_load_dword v{dst or vPoll}, v{vaddr}, s[{srd}:{srd+3}], 0 offen sc1", tag)

    def poll_check(self, vaddr, srd, vneed, tag, dst=None):
        dst = dst or vPoll
        self.nlab += 1
        k = f"{self.lab}{self.nlab}"
        self.wait_vm({tag})
        self(f"v_cmp_lt_u32 vcc, v{dst}, v{vneed}")
        self(f"s_mov_b32 s{sSpin}, 0")
        self("s_nop 3")
        self(f"s_cbranch_vccz L_ok{k}")
        self.label(f"L_sp{k}")
        self(f"s_sleep {SLP}")
        self(f"buffer_load_dword v{dst}, v{vaddr}, s[{srd}:{srd+3}], 0 offen sc1")
        self("s_waitcnt vmcnt(0)")
        self(f"v_cmp_lt_u32 vcc, v{dst}, v{vneed}")
        self(f"s_add_u32 s{sSpin}, s{sSpin}, 1")
        self(f"s_cmp_lt_u32 s{sSpin}, 0x40000")
        self(f"s_cselect_b64 s[94:95], -1, 0")
        self(f"s_and_b64 vcc, vcc, s[94:95]")
        self(f"s_cbranch_vccnz L_sp{k}")
        self.label(f"L_ok{k}")

    def srds(self, lst):
        tab = {"X": (S_X, 44, 2048*1280), "WQKV": (S_WQKV, 46, 640*3840), "W1": (S_W1, 52, 640*3072),
               "WS": (S_WS, 58, WS_SIZE), "DBG": (S_DBG, 56, 256), "OUT": (S_OUT, 50, 2048*1280)}
        for k in lst:
            srd, p, sz = tab[k]
            self(f"s_mov_b32 s{srd}, s{p}")
            self(f"s_mov_b32 s{srd+1}, s{p+1}")
            self(f"s_mov_b32 s{srd+2}, {sz}")
            self(f"s_mov_b32 s{srd+3}, 0x00020000")

    def text(self):
        return "\n".join(self.L) + "\n"


def r4(b):
    return f"v[{b}:{b+3}]"


def image_cfg(KV):
    if KV:
        WB_OFF = WA_OFF + 20480
        A = dict(kk=5120, s=1280, t=lambda t: t*64)
        B = dict(kk=2048, s=256, t=lambda t: t*512)
        tiles = [("A", t) for t in range(5)] + [("B", t) for t in range(2)]
    else:
        WB_OFF = WA_OFF + 16384
        A = dict(kk=4096, s=256, t=lambda t: (t >> 1)*1024 + (t & 1)*512)
        B = dict(kk=3072, s=768, t=lambda t: t*64)
        tiles = [("A", t) for t in range(4)] + [("B", t) for t in range(3)]
    return WB_OFF, A, B, tiles


def lane_parts(e, KV, dA, dB, t):
    e(f"v_lshrrev_b32 v{t}, 2, v{vLane}")
    e(f"v_and_b32 v{t}, 3, v{t}")
    e(f"v_and_b32 v{t+1}, 3, v{vLane}")
    e(f"v_lshlrev_b32 v{t+1}, 3, v{t+1}")
    e(f"v_and_b32 v{t+2}, 16, v{vLane}")
    e(f"v_lshl_add_u32 v{t+1}, v{t+2}, 1, v{t+1}")
    e(f"v_lshl_add_u32 v{t+2}, v{vHi}, 3, v{t}")
    if KV:
        e(f"v_mul_u32_u24 v{dA}, 320, v{t+2}")
        e(f"v_add_u32 v{dA}, v{dA}, v{t+1}")
        e(f"v_lshl_add_u32 v{dB}, v{t}, 6, v{t+1}")
        e(f"v_lshl_add_u32 v{dB}, v{vHi}, 10, v{dB}")
    else:
        e(f"v_lshl_add_u32 v{dA}, v{t}, 6, v{t+1}")
        e(f"v_lshl_add_u32 v{dA}, v{vHi}, 11, v{dA}")
        e(f"v_mul_u32_u24 v{dB}, 192, v{t+2}")
        e(f"v_add_u32 v{dB}, v{dB}, v{t+1}")


def slot_offsets(e, d_st, d_cs):
    e(f"s_mul_i32 s{d_st}, s{sI}, 10")
    e(f"s_add_u32 s{d_st}, s{d_st}, s{sRot}")
    e(f"s_lshl_b32 s{d_st}, s{d_st}, 10")
    e(f"s_add_u32 s{d_st}, s{d_st}, {STP_OFF}")
    e(f"s_cmp_lt_u32 s{sJ}, 10")
    e(f"s_cselect_b32 s{d_st}, s{d_st}, {OOB}")
    e(f"s_mul_i32 s{d_cs}, s{sJ}, 10")
    e(f"s_add_u32 s{d_cs}, s{d_cs}, s{sRot}")
    e(f"s_lshl_b32 s{d_cs}, s{d_cs}, 10")
    e(f"s_add_u32 s{d_cs}, s{d_cs}, {CSP_OFF}")
    e(f"s_cmp_lt_u32 s{sI}, 10")
    e(f"s_cselect_b32 s{d_cs}, s{d_cs}, {OOB}")


def compute_path(typ):
    KV = typ == "KV"
    e = Em("C" + typ)
    WB_OFF, IA, IB, tiles = image_cfg(KV)
    vXrd = 18
    vWA, vWB = 22, 23
    vSt = 24
    vAcc = 32
    vWf = 144
    vXf = 200
    vXext = 244
    vXp, vRstd, vSd, vRl = 248, 249, 250, 251
    corient = [KV and t < 5 for t in range(7)]
    A_ = lambda t: vAcc + 16*t

    e.label(f"L_C{typ}")
    e.stamp("start_real", True)
    e.stamp("start")
    e(f"s_getpc_b64 s[{S_CODE}:{S_CODE+1}]")
    e.label(f"L_C{typ}_pc")
    e(f"s_mov_b32 s{S_CODE+2}, L_S{typ}_end-L_C{typ}_pc")
    e(f"s_mov_b32 s{S_CODE+3}, 0x00020000")
    e(f"v_lshlrev_b32 v{vT}, 7, v0")
    e.vmop(f"buffer_load_dword v255, v{vT}, s[{S_CODE}:{S_CODE+3}], 0 offen", "pf")
    for r in range(4):
        e(f"v_mov_b32 v{vAcc+r}, 0")
    slot_offsets(e, sT0, sT1)
    e(f"s_cmp_eq_u32 s{sW}, 0")
    e(f"s_cselect_b32 s{sT0}, s{sT0}, {OOB}")
    e(f"s_cselect_b32 s{sT1}, s{sT1}, {OOB}")
    e(f"s_and_b32 s{sT2}, s{sFlag}, 0xffffff80")
    e(f"v_mov_b32 v{vT+1}, {OOB}")
    e(f"v_cmp_gt_u32 vcc, 8, v0")
    if KV:
        e(f"s_lshl_b32 s{sT3}, s{sG}, 13")
        e(f"s_lshl_b32 s{sTw}, s{sI}, 10")
        e(f"s_add_u32 s{sT3}, s{sT3}, s{sTw}")
        e(f"s_add_u32 s{sT3}, s{sT3}, {KVA_OFF}")
        e(f"s_cmp_lt_u32 s{sI}, 7")
        e(f"s_cselect_b32 s{sT3}, s{sT3}, {OOB}")
        e(f"s_cmp_eq_u32 s{sW}, 0")
        e(f"s_cselect_b32 s{sT3}, s{sT3}, {OOB}")
    e(f"v_cndmask_b32 v{vT}, v{vT+1}, v{vL16}, vcc")
    e("s_waitcnt lgkmcnt(0)")
    e.srds(["WS"])
    e.vmop(f"buffer_store_dword v{vAcc}, v{vT}, s[{S_WS}:{S_WS+3}], s{sT2} offen sc1", "z")
    e.vmop(f"buffer_store_dwordx4 {r4(vAcc)}, v{vL16}, s[{S_WS}:{S_WS+3}], s{sT0} offen sc1", "z")
    e.vmop(f"buffer_store_dwordx4 {r4(vAcc)}, v{vL16}, s[{S_WS}:{S_WS+3}], s{sT1} offen sc1", "z")
    if KV:
        e.vmop(f"buffer_store_dwordx4 {r4(vAcc)}, v{vL16}, s[{S_WS}:{S_WS+3}], s{sT3} offen sc1", "z")
    e.srds(["X", "OUT", "DBG"])
    e(f"v_and_b32 v{vT}, 31, v{vLane}")
    e(f"v_lshrrev_b32 v{vT+1}, 1, v{vT}")
    e(f"v_and_b32 v{vT+1}, 7, v{vT+1}")
    e(f"v_xor_b32 v{vT+1}, v{vT+1}, v{vHi}")
    e(f"v_lshlrev_b32 v{vT}, 7, v{vT}")
    e(f"s_lshl_b32 s{sT0}, s{sW}, 12")
    e(f"v_add_u32 v{vT}, s{sT0}, v{vT}")
    for kk in range(4):
        e(f"v_xor_b32 v{vT+2}, {2*kk}, v{vT+1}")
        e(f"v_lshl_add_u32 v{vXrd+kk}, v{vT+2}, 4, v{vT}")
    lane_parts(e, KV, vWA, vWB, vT)
    e(f"v_add_u32 v{vWA}, {WA_OFF}, v{vWA}")
    e(f"v_add_u32 v{vWB}, {WB_OFF}, v{vWB}")
    e(f"v_and_b32 v{vT}, 15, v{vLane}")
    e(f"v_lshlrev_b32 v{vT}, 4, v{vT}")
    e(f"v_lshl_add_u32 v{vT}, v{vHi}, 8, v{vT}")
    e(f"v_and_b32 v{vT+1}, 16, v{vLane}")
    e(f"v_lshl_add_u32 v{vT}, v{vT+1}, 6, v{vT}")
    e(f"s_and_b32 s{sT0}, s{sW}, 1")
    e(f"s_lshl_b32 s{sT0}, s{sT0}, 11")
    e(f"v_add_u32 v{vSt}, s{sT0}, v{vT}")
    e(f"s_lshr_b32 s{sT0}, s{sW}, 1")
    e(f"s_lshl_b32 s{sT1}, s{sI}, 1")
    e(f"s_add_u32 s{sT0}, s{sT0}, s{sT1}")
    e(f"s_mul_i32 s{sACT}, s{sT0}, {68*4096}")
    EXR = 212
    for r in list(range(vAcc+4, vAcc+112)) + list(range(vWf+28, vWf+56)) + list(range(vXf+4, vXf+8)) + \
            [EXR+4*t+k for t in range(7) for k in (2, 3)] + [vXext+2, vXext+3]:
        e(f"v_mov_b32 v{r}, 0")
    e(f"v_lshlrev_b32 v25, 1, v{vL31x4}")
    e(f"v_add_u32 v25, {EXT_LDS}, v25")
    e(f"s_mul_i32 s{sT0}, s{sW}, 768")
    e(f"s_add_u32 s{sT0}, s{sT0}, {STAT_LDS}")
    e(f"v_lshl_add_u32 v26, v{vL31x4}, 2, s{sT0}")
    e(f"v_lshl_add_u32 v27, v{vHi}, 4, s{sT0}")
    e(f"s_and_b32 s{sT0}, s2, 1")
    e(f"s_lshl_b32 s{sT0}, s{sT0}, 7")
    e(f"v_mov_b32 v{vT}, s{sT0}")
    e(f"v_mov_b32 v{vT+1}, {OOB}")
    e(f"v_cmp_eq_u32 vcc, 0, v0")
    e(f"v_mov_b32 v{vT+2}, 1")
    e(f"s_mov_b32 s{sCnt}, 0")
    e(f"s_mov_b32 s{sSlot}, 0")
    e(f"v_cndmask_b32 v{vT}, v{vT+1}, v{vT}, vcc")
    e.wait_vm({"z"})
    e.vmop(f"buffer_atomic_add v{vT+2}, v{vT}, s[{S_DBG}:{S_DBG+3}], 0 offen", "init")

    P1 = [0, 1, 2, 3, 4] if KV else [0, 1, 2, 3]
    P2 = [5, 6] if KV else [4, 5, 6]

    def reads(kk, TL):
        out = [f"ds_read_b128 {r4(vXf+4*(kk % 2))}, v{vXrd+kk}"]
        for t in TL:
            img, ti = tiles[t]
            I = IA if img == "A" else IB
            va = vWA if img == "A" else vWB
            for s in range(2):
                d = vWf + (kk % 2)*28 + 4*t + 2*s
                out.append(f"ds_read_b64_tr_b16 v[{d}:{d+1}], v{va} offset:{kk*I['kk'] + s*I['s'] + I['t'](ti)}")
        return out

    def mf(t, x, w):
        acc = f"v[{A_(t)}:{A_(t)+15}]"
        if corient[t]:
            return f"v_mfma_f32_32x32x16_bf16 {acc}, {x}, {w}, {acc}"
        return f"v_mfma_f32_32x32x16_bf16 {acc}, {w}, {x}, {acc}"

    def mfm(par, t):
        return mf(t, r4(vXf + 4*par), r4(vWf + par*28 + 4*t))

    def g1_loop(name, TL, count=10):
        e(f"s_mov_b32 s{sCnt}, 0")
        e(".p2align 3")
        e.label(name)
        e("s_waitcnt lgkmcnt(0)")
        e("s_barrier")
        adv = [f"s_add_u32 s{sSlot}, s{sSlot}, 1", f"s_cmp_eq_u32 s{sSlot}, 3", f"s_cselect_b32 s{sSlot}, 0, s{sSlot}",
               f"s_mov_b32 s{sD}, {SLOT1}", f"s_cselect_b32 s{sD}, {(-2*SLOT1) & 0xffffffff:#x}, s{sD}",
               f"s_add_u32 s{sCnt}, s{sCnt}, 1", f"s_cmp_lt_u32 s{sCnt}, {count}"]
        per = 4 if len(TL) >= 4 else 8
        for kk in range(4):
            if kk:
                e("s_waitcnt lgkmcnt(0)")
            rd = reads(kk, TL)
            for k, t in enumerate(TL):
                e(mfm((kk + 1) % 2, t))
                for _ in range(per):
                    if rd:
                        e(rd.pop(0))
            assert not rd
            if kk == 2:
                for x in adv:
                    e(x)
            if kk == 3:
                for r in list(range(vXrd, vXrd+4)) + [vWA, vWB]:
                    e(f"v_add_u32 v{r}, s{sD}, v{r}")
        e(f"s_cbranch_scc1 {name}")

    def h_tile(t, o, n, bgq):
        a = A_(t)
        for j in range(8):
            e(f"v_max_f32 v{a+2*j}, 0, v{a+2*j}")
            e(f"v_max_f32 v{a+2*j+1}, 0, v{a+2*j+1}")
            e(f"v_cvt_pk_bf16_f32 v{o+j}, v{a+2*j}, v{a+2*j+1}")
            if bgq and j % 2 == 1:
                e(bgq.pop(0))
        e(f"s_add_u32 s{sT1}, s{sT0}, {n*4096}")
        e.vmop(f"buffer_store_dwordx4 {r4(o)}, v{vSt}, s[{S_WS}:{S_WS+3}], s{sT1} offen sc1", "hst")
        e.vmop(f"buffer_store_dwordx4 {r4(o+4)}, v{vSt}, s[{S_WS}:{S_WS+3}], s{sT1} offen offset:512 sc1", "hst")

    def phi(dst, acc, rl, tmp):
        e(f"v_fma_f32 v{tmp}, v{acc}, v{rl}, s{sC}")
        e(f"v_exp_f32 v{tmp+1}, v{tmp} clamp")
        e(f"v_max_f32 v{tmp}, s{sC}, v{tmp}")
        e(f"v_fma_f32 v{dst}, v{tmp}, s{sLn2}, v{tmp+1}")

    g1_loop(f"L_C{typ}_p1", P1)
    e("s_waitcnt lgkmcnt(0)")
    e("s_barrier")
    e.stamp("E1")
    order = [3, 4, 2, 0, 1, 5, 6] if KV else [0, 1, 2, 3, 4, 5, 6]
    RL, RS = 144, 160
    e(f"ds_read_b128 {r4(vXp)}, v26")
    for t in order:
        e(f"ds_read_b64 v[{EXR+4*t}:{EXR+4*t+1}], v25 offset:{t*256}")
    for t in order:
        if t in P1:
            e(mfm(1, t))
    e("s_waitcnt lgkmcnt(0)")
    e(f"v_lshrrev_b32 v{vT+4}, 16, v{vXp}")
    e(f"v_cndmask_b32 v{vXext}, v{vXp}, 0, s[{sHIm}:{sHIm+1}]")
    e(f"v_cndmask_b32 v{vXext+1}, v{vT+4}, 0, s[{sHIm}:{sHIm+1}]")
    if KV:
        for q in range(4):
            e(f"ds_read_b128 {r4(RS+4*q)}, v27 offset:{640+32*q}")
        for q in range(4):
            e(f"ds_read_b128 {r4(RL+4*q)}, v27 offset:{512+32*q}")
    else:
        e("s_nop 1")
    ex = [mf(t, r4(vXext), r4(EXR+4*t)) for t in order]
    for m in ex[:3]:
        e(m)
    bg = ex[3:]

    PQ = 224
    if KV:
        e("s_nop 8")
        e("s_waitcnt lgkmcnt(4)")
        Vp = [176, 184, 192]
        Kp = [200, 224, 232]
        for n, (t, dst) in enumerate([(3, Vp[0]), (4, Vp[1]), (2, Vp[2])]):
            a = A_(t)
            for j in range(8):
                e(f"v_mul_f32 v{vT}, v{a+2*j}, v{RS+2*j}")
                e(f"v_mul_f32 v{vT+1}, v{a+2*j+1}, v{RS+2*j+1}")
                e(f"v_cvt_pk_bf16_f32 v{dst+j}, v{vT}, v{vT+1}")
                if bg and j % 2 == 0:
                    e(bg.pop(0))
        e(f"v_mov_b32 v{vT}, 0x3f803f80")
        for j in range(8):
            e(f"v_cndmask_b32 v{Vp[2]+j}, v{vT}, v{Vp[2]+j}, s[{sL16m}:{sL16m+1}]")
        e("s_waitcnt lgkmcnt(0)")
        preg = {(0, 0): A_(3), (0, 1): A_(4), (0, 2): RS, (1, 0): A_(0), (1, 1): 208, (1, 2): A_(1),
                (2, 1): A_(2), (2, 2): RL}
        vCa, vCb = 28, 29
        e(f"v_mul_u32_u24 v{vCa}, 21, v{vHi}")
        e(f"v_and_b32 v{vCb}, 31, v{vLane}")
        e(f"v_add_lshl_u32 v{vCa}, v{vCa}, v{vCb}, 4")
        e(f"v_add_lshl_u32 v{vCb}, v{vHi}, v{vCb}, 4")
        e(f"s_mul_i32 s{sT0}, s{sW}, 6784")
        e(f"s_cmp_eq_u32 s{sW}, 3")
        e(f"s_cselect_b32 s{sT0}, {CPW[3]}, s{sT0}")
        e(f"s_add_u32 s{sT0}, s{sT0}, {CP_LDS}")
        e(f"v_add_u32 v{vCa}, s{sT0}, v{vCa}")
        e(f"v_add_u32 v{vCb}, s{sT0}, v{vCb}")

        def cwrites(a, b):
            out = []
            base = preg[(a, b)]
            for q in range(4):
                C0 = 8*a + 2*q
                if C0 >= 20:
                    continue
                src = r4(base+4*q)
                heads = [C0 // 5, (C0+1) // 5]
                ebase = [0, 32, 48][b]
                mask = 0
                for hi in range(2):
                    for l in range(32):
                        if b == 2 and l < 16:
                            continue
                        eg = ebase + l
                        if eg // 20 == heads[hi]:
                            mask |= 1 << (32*hi + l)
                if mask:
                    va = vCa if heads[0] == heads[1] else vCb
                    out.append([f"s_mov_b32 exec_lo, {mask & 0xffffffff:#x}", f"s_mov_b32 exec_hi, {mask >> 32:#x}",
                                f"ds_write_b128 v{va}, {src} offset:{16*(21*C0 + ebase - 20*heads[0])}"])
                if b == 2:
                    out.append([f"s_mov_b32 exec_lo, 1", f"s_mov_b32 exec_hi, 1",
                                f"ds_write_b128 v{vCa}, {src} offset:{16*(21*C0+20)}"])
            return out

        pend_m = []
        pend_w = []
        for a_ in range(3):
            a = A_(a_)
            dst = Kp[a_]
            if a_ == 2:
                pend_w = [w for b in range(3) for w in cwrites(0, b)]
            for j in range(8):
                phi(vT+4, a+2*j, RL+2*j, vT)
                phi(vT+5, a+2*j+1, RL+2*j+1, vT+2)
                e(f"v_cvt_pk_bf16_f32 v{dst+j}, v{vT+4}, v{vT+5}")
                if pend_m and j >= 1:
                    e(pend_m.pop(0))
                if pend_w and j >= 1:
                    for _ in range(2):
                        if pend_w:
                            e.op(pend_w.pop(0))
                    e("s_mov_b64 exec, -1")
            while pend_m:
                e(pend_m.pop(0))
            for h in range(2):
                for b in range(3):
                    if (a_, b) in preg:
                        base = preg[(a_, b)]
                        d = f"v[{base}:{base+15}]"
                        pend_m.append(f"v_mfma_f32_32x32x16_bf16 {d}, {r4(Kp[a_]+4*h)}, {r4(Vp[b]+4*h)}, {'0' if h == 0 else d}")
        e("s_nop 1")
        while pend_m:
            e(pend_m.pop(0))
        for w in pend_w:
            e.op(w)
        for b in range(3):
            for w in cwrites(1, b):
                e.op(w)
        for b in (1, 2):
            for w in cwrites(2, b):
                e.op(w)
        e("s_mov_b64 exec, -1")
        e.stamp("kv_done")
    else:
        e(f"s_lshl_b32 s{sT2}, s{sI}, 2")
        e(f"s_add_u32 s{sT2}, s{sT2}, s{sW}")
        e(f"s_lshl_b32 s{sT2}, s{sT2}, 7")
        e(f"s_add_u32 s{sT2}, s{sT2}, {RSTD_OFF}")
        e(f"s_cmp_eq_u32 s{sG}, 0")
        e(f"s_cselect_b32 s{sT2}, s{sT2}, {OOB}")
        e.vmop(f"buffer_store_dword v{vRstd}, v{vL31x4}, s[{S_WS}:{S_WS+3}], s{sT2} offen sc1", "hst")
        e(f"s_lshl_b32 s{sT0}, s{sG}, 14")
        e(f"s_add_u32 s{sT0}, s{sT0}, s{sACT}")
        e(bg.pop(0))
        e("s_nop 1")
        for n in range(4):
            h_tile(n, [144, 152, 172, 180][n], n, bg)
        e.stamp("h_stored")
    for r in [vWf + 28 + 4*t + k for t in P2 for k in range(4)] + list(range(vXf+4, vXf+8)):
        e(f"v_mov_b32 v{r}, 0")
    if KV:
        g1_loop(f"L_C{typ}_p2", P2)
    else:
        g1_loop(f"L_C{typ}_p2a", P2, HF)
        e.wait_vm({"hst"})
        e.flag_store(1)
        e.stamp("h_flag")
        g1_loop(f"L_C{typ}_p2b", P2, 10 - HF)
    e("s_waitcnt lgkmcnt(0)")
    e("s_barrier")
    e.stamp("E3")
    for t in P2:
        e(mfm(1, t))
    if KV:
        e(f"s_lshl_b32 s{sT0}, s{sG}, 13")
        e(f"s_add_u32 s{sT0}, s{sT0}, {32*4096}")
        e(f"s_add_u32 s{sT0}, s{sT0}, s{sACT}")
        e("s_nop 7")
        h_tile(5, 176, 0, [])
        h_tile(6, 184, 1, [])
        e.stamp("h_stored")
    else:
        e("s_nop 9")
        for s in range(5):
            a = A_(4) + 8*s
            for j in range(4):
                phi(vT+4, a+2*j, vRl, vT)
                phi(vT+5, a+2*j+1, vRl, vT+2)
                e(f"v_cvt_pk_bf16_f32 v{PQ+4*s+j}, v{vT+4}, v{vT+5}")
        e.stamp("pq_done")

    vA2, vB2 = 18, 19
    vG = 32
    vF2 = [52, 76, 100, 124]
    vGo, vLr, vXd, vRs, vLw, vRa = 216, 219, 148, 252, 222, 244
    e(f"s_lshl_b32 s{sT0}, s{sW}, 10")
    e(f"s_add_u32 s{sT0}, s{sT0}, {G2S[0]}")
    e(f"v_add_u32 v{vA2}, s{sT0}, v{vL16}")
    e(f"v_add_u32 v{vB2}, {G2S[0]}, v{vL16b}")
    for r in list(range(vG, vG+20)) + list(range(vF2[2], vF2[2]+24)) + list(range(vF2[3], vF2[3]+24)):
        e(f"v_mov_b32 v{r}, 0")
    e(f"s_mov_b32 s{sSlot}, 0")

    def reads2(kk):
        f = vF2[kk]
        out = [f"ds_read_b128 {r4(f)}, v{vA2} offset:{kk*9216}"]
        for nu in range(5):
            out.append(f"ds_read_b128 {r4(f+4+4*nu)}, v{vB2} offset:{kk*9216+nu*1024}")
        return out

    def mfmas2(kk):
        f = vF2[kk]
        return [f"v_mfma_f32_16x16x32_bf16 {r4(vG+4*nu)}, {r4(f+4+4*nu)}, {r4(f)}, {r4(vG+4*nu)}" for nu in range(5)]

    def g2_loop(name, count):
        if count == 0:
            return
        e(f"s_mov_b32 s{sCnt}, 0")
        e(".p2align 3")
        e.label(name)
        e("s_waitcnt lgkmcnt(0)")
        e("s_barrier")
        for half in range(2):
            rd = reads2(2*half) + reads2(2*half+1)
            mm = mfmas2(2*(1-half)) + mfmas2(2*(1-half)+1)
            if half == 1:
                e("s_waitcnt lgkmcnt(6)")
            for x in rd[:2]:
                e(x)
            rd = rd[2:]
            for k, m in enumerate(mm):
                if half == 1 and k == 5:
                    e("s_waitcnt lgkmcnt(7)")
                e(m)
                if rd:
                    e(rd.pop(0))
        e(f"s_mov_b32 s{sD}, {G2S[1]-G2S[0]}")
        e(f"s_cmp_eq_u32 s{sSlot}, 1")
        e(f"s_cselect_b32 s{sD}, {(G2S[2]-G2S[1]) & 0xffffffff:#x}, s{sD}")
        e(f"s_cmp_eq_u32 s{sSlot}, 2")
        e(f"s_cselect_b32 s{sD}, {G2S[0]-G2S[2]}, s{sD}")
        e(f"s_cselect_b32 s{sSlot}, -1, s{sSlot}")
        e(f"s_add_u32 s{sSlot}, s{sSlot}, 1")
        e(f"v_add_u32 v{vA2}, s{sD}, v{vA2}")
        e(f"v_add_u32 v{vB2}, s{sD}, v{vB2}")
        e(f"s_add_u32 s{sCnt}, s{sCnt}, 1")
        e(f"s_cmp_lt_u32 s{sCnt}, {count}")
        e(f"s_cbranch_scc1 {name}")

    def fin_setup():
        e(f"s_lshl_b32 s{sT0}, s{sT64}, 6")
        e(f"s_lshl_b32 s{sT1}, s{sW}, 4")
        e(f"s_add_u32 s{sT0}, s{sT0}, s{sT1}")
        e(f"s_mul_i32 s{sT2}, s{sT0}, 1280")
        e(f"s_mul_i32 s{sT3}, s{sCc}, 160")
        e(f"s_add_u32 s{sT2}, s{sT2}, s{sT3}")
        e(f"s_lshl_b32 s{sA0}, s{sT0}, 2")
        e(f"s_add_u32 s{sA0}, s{sA0}, {RSTD_OFF}")
        e(f"s_mul_i32 s{sT1}, s{sW}, 5376")
        e(f"s_add_u32 s{sT1}, s{sT1}, {OUT_LDS}")
        for r in range(3):
            e(f"v_add_u32 v{vT}, {64*r}, v{vLane}")
            e(f"v_mul_u32_u24 v{vT+1}, 6554, v{vT}")
            e(f"v_lshrrev_b32 v{vT+1}, 16, v{vT+1}")
            e(f"v_mul_u32_u24 v{vT+2}, 10, v{vT+1}")
            e(f"v_sub_u32 v{vT+2}, v{vT}, v{vT+2}")
            e(f"v_mul_u32_u24 v{vT+3}, 1280, v{vT+1}")
            e(f"v_lshl_add_u32 v{vT+3}, v{vT+2}, 4, v{vT+3}")
            e(f"v_add_u32 v{vGo+r}, s{sT2}, v{vT+3}")
            e(f"v_mul_u32_u24 v{vT+3}, 336, v{vT+1}")
            e(f"v_lshl_add_u32 v{vT+3}, v{vT+2}, 5, v{vT+3}")
            e(f"v_add_u32 v{vLr+r}, s{sT1}, v{vT+3}")
            e(f"v_lshlrev_b32 v{vRa+r}, 2, v{vT+1}")
            if r == 2:
                e(f"v_mov_b32 v{vT+4}, {OOB}")
                e(f"v_cmp_gt_u32 vcc, 32, v{vLane}")
                e("s_nop 1")
                e(f"v_cndmask_b32 v{vGo+2}, v{vT+4}, v{vGo+2}, vcc")
                e(f"v_cndmask_b32 v{vRa+2}, v{vT+4}, v{vRa+2}, vcc")
                e(f"v_cndmask_b32 v{vLr+2}, v{vLr}, v{vLr+2}, vcc")
        e(f"v_and_b32 v{vT}, 15, v{vLane}")
        e(f"v_mul_u32_u24 v{vT}, 336, v{vT}")
        e(f"v_lshrrev_b32 v{vT+1}, 4, v{vLane}")
        e(f"v_lshl_add_u32 v{vT}, v{vT+1}, 4, v{vT}")
        e(f"v_add_u32 v{vLw}, s{sT1}, v{vT}")

    def xloads():
        fin_setup()
        for r in range(3):
            e.vmop(f"buffer_load_dwordx4 {r4(vXd+4*r)}, v{vGo+r}, s[{S_X}:{S_X+3}], 0 offen", "x")
            e.vmop(f"buffer_load_dword v{vRs+r}, v{vRa+r}, s[{S_WS}:{S_WS+3}], s{sA0} offen sc1", "x")

    e.stamp("g2_start")
    if KV:
        g2_loop(f"L_C{typ}_g2a", 1)
        e.wait_vm({"hst"})
        e.flag_store(1)
        e.stamp("h_flag")
        g2_loop(f"L_C{typ}_g2b", 7)
        xloads()
        g2_loop(f"L_C{typ}_g2c", 9)
    else:
        g2_loop(f"L_C{typ}_g2a", OST + 1)
        e.stamp("g2_mid")
        OA = 148

        def fr(n):
            return 52 + 4*n
        e(f"v_and_b32 v{vT}, 31, v{vLane}")
        e(f"v_mul_u32_u24 v{vT}, {KVT_P}, v{vT}")
        e(f"v_lshl_add_u32 v{vT}, v{vHi}, 4, v{vT}")
        e(f"v_add_u32 v{vT}, {KVT_LDS}, v{vT}")
        need = [(2, 0), (0, 0), (2, 1), (0, 1), (1, 1), (2, 2), (0, 2), (1, 2), (2, 3), (1, 3), (2, 4), (1, 4)]
        for n, (o, s) in enumerate(need):
            e(f"ds_read_b128 {r4(fr(n))}, v{vT} offset:{o*32*KVT_P+32*s}")
        first = {}
        for n, (o, s) in enumerate(need):
            e(f"s_waitcnt lgkmcnt({11-n})")
            d = f"v[{OA+16*o}:{OA+16*o+15}]"
            e(f"v_mfma_f32_32x32x16_bf16 {d}, {r4(fr(n))}, {r4(PQ+4*s)}, {'0' if o not in first else d}")
            first[o] = 1
        e(f"s_lshr_b32 s{sT0}, s{sG}, 1")
        e(f"s_mul_i32 s{sT0}, s{sT0}, {5*4096}")
        e(f"s_add_u32 s{sT0}, s{sT0}, {48*4096}")
        e(f"s_add_u32 s{sT0}, s{sT0}, s{sACT}")
        e(f"s_and_b32 s{sT1}, s{sG}, 1")
        e(f"s_mul_i32 s{sT2}, s{sT1}, {3*4096}")
        e(f"s_add_u32 s{sT2}, s{sT2}, s{sT0}")
        e(f"s_add_u32 s{sT3}, s{sT2}, 4096")
        e(f"s_lshl_b32 s{sT1}, s{sT1}, 9")
        e(f"s_add_u32 s{sT0}, s{sT0}, s{sT1}")
        e(f"s_add_u32 s{sT0}, s{sT0}, {2*4096}")
        e("s_nop 3")
        F = vT
        for h in range(4):
            e(f"v_add_f32 v{F+h}, {f32bits(1e-6):#x}, v{OA+32+h}")
        for h in range(4):
            e(f"v_rcp_f32 v{F+h}, v{F+h}")
        e("s_nop 0")
        for h in range(4):
            e(f"v_mul_f32 v{F+h}, v{F+h}, v{vSd}")
        e(f"v_cndmask_b32 v{F+4}, v{F}, v{F+1}, s[{sHIm}:{sHIm+1}]")
        e(f"v_cndmask_b32 v{F+5}, v{F+2}, v{F+3}, s[{sHIm}:{sHIm+1}]")
        OP = 196
        k = 0
        dests = [(sT2, 0), (sT2, 512), (sT3, 0), (sT3, 512), (sT0, 0)]
        for o in range(3):
            for q in range(4):
                if o == 2 and q < 2:
                    continue
                C0 = 8*o + 2*q if o < 2 else 16 + 2*(q-2)
                if C0 // 5 == (C0+1) // 5:
                    f = F + C0 // 5
                else:
                    f = F + 4 + (0 if C0 == 4 else 1)
                a = OA + 16*o + 4*q
                for r in range(4):
                    e(f"v_mul_f32 v{a+r}, v{a+r}, v{f}")
                e(f"v_cvt_pk_bf16_f32 v{OP+k}, v{a}, v{a+1}")
                e(f"v_cvt_pk_bf16_f32 v{OP+k+1}, v{a+2}, v{a+3}")
                k += 2
                if k % 4 == 0:
                    sg, off = dests[k//4 - 1]
                    e.vmop(f"buffer_store_dwordx4 {r4(OP+k-4)}, v{vSt}, s[{S_WS}:{S_WS+3}], s{sg} offen offset:{off} sc1", "ost")
        e.stamp("o_stored")
        g2_loop(f"L_C{typ}_g2b", 1)
        e.wait_vm({"ost"})
        e.flag_store(2)
        e.stamp("o_flag")
        xloads()
        g2_loop(f"L_C{typ}_g2c", 17 - OST - 2)
    e("s_waitcnt lgkmcnt(0)")
    for m in mfmas2(2) + mfmas2(3):
        e(m)
    e.stamp("g2_done")
    e("s_nop 7")
    for nu in range(5):
        e(f"ds_write_b128 v{vLw}, {r4(vG+4*nu)} offset:{nu*64}")
    e("s_waitcnt lgkmcnt(0)")
    RB = 160
    for r in range(3):
        for h in range(2):
            e(f"ds_read_b128 {r4(RB+r*8+h*4)}, v{vLr+r} offset:{h*16}")
    e.wait_vm({"x"})
    for r in range(3):
        e(f"s_waitcnt lgkmcnt({2*(2-r)})")
        b = RB + r*8
        o = RB + 24 + 4*r
        for k in range(4):
            xr = vXd + 4*r + k
            e(f"v_lshlrev_b32 v{vT}, 16, v{xr}")
            e(f"v_and_b32 v{vT+1}, s{sHiMask}, v{xr}")
            e(f"v_fma_f32 v{vT}, v{b+2*k}, v{vRs+r}, v{vT}")
            e(f"v_fma_f32 v{vT+1}, v{b+2*k+1}, v{vRs+r}, v{vT+1}")
            e(f"v_cvt_pk_bf16_f32 v{o+k}, v{vT}, v{vT+1}")
        e(f"buffer_store_dwordx4 {r4(o)}, v{vGo+r}, s[{S_OUT}:{S_OUT+3}], 0 offen")
    e.stamp("end")
    e.stamp("end_real", True)
    e.stamp_flush()
    e("s_endpgm")
    return e


class HR:
    vC1 = 30
    vC2 = 32
    vCs = 40
    vOOB = 45
    vR = 57
    vU = 58
    vD = 64
    vXa = 96
    vSx = 100
    vXd = 104
    sTa, sTb = 96, 97


def tile_ids(e, KV, hw, dA, dB):
    e(f"s_lshl_b32 s{dA}, s{hw}, 7")
    if KV:
        e(f"s_add_u32 s{dB}, s{hw}, 5")
        e(f"s_cmp_lt_u32 s{hw}, 2")
        e(f"s_cselect_b32 s{dB}, s{dB}, 4")
    else:
        e(f"s_min_u32 s{dB}, s{hw}, 2")
        e(f"s_add_u32 s{dB}, s{dB}, 4")
    e(f"s_lshl_b32 s{dB}, s{dB}, 7")


def partial_setup(e, KV):
    H = HR
    WB_OFF, IA, IB, tiles = image_cfg(KV)
    vU = H.vU
    lane_parts(e, KV, vU, vU+1, vT)
    e(f"v_mov_b32 v{H.vR}, v{vT}")
    e(f"s_lshl_b32 s{sT0}, s{sW}, {6 if KV else 9}")
    e(f"s_add_u32 s{sT0}, s{sT0}, {WA_OFF}")
    e(f"v_add_u32 v{H.vC1}, s{sT0}, v{vU}")
    e.para()
    if KV:
        e(f"s_cmp_lt_u32 s{sW}, 2")
        e(f"s_cselect_b64 s[94:95], -1, 0")
        e(f"s_lshl_b32 s{sT0}, s{sW}, 9")
        e(f"s_add_u32 s{sT0}, s{sT0}, {WB_OFF}")
        e(f"v_add_u32 v{vU+1}, s{sT0}, v{vU+1}")
        e(f"v_add_u32 v{vU}, {WA_OFF + 256}, v{vU}")
        for kk in range(4):
            e.para()
            for s in range(2):
                e(f"v_add_u32 v{vU+2}, {kk*IA['kk']+s*IA['s']}, v{vU}")
                e(f"v_add_u32 v{vU+3}, {kk*IB['kk']+s*IB['s']}, v{vU+1}")
                e(f"v_cndmask_b32 v{H.vC2+2*kk+s}, v{vU+2}, v{vU+3}, s[94:95]")
    else:
        e(f"s_min_u32 s{sT0}, s{sW}, 2")
        e(f"s_lshl_b32 s{sT0}, s{sT0}, 6")
        e(f"s_add_u32 s{sT0}, s{sT0}, {WB_OFF}")
        e(f"v_add_u32 v{H.vC2}, s{sT0}, v{vU+1}")
    e.para()
    e(f"v_and_b32 v{vT+1}, 31, v{vLane}")
    e(f"v_lshrrev_b32 v{vT+3}, 1, v{vT+1}")
    e(f"v_and_b32 v{vT+3}, 7, v{vT+3}")
    e(f"v_xor_b32 v{vT+3}, v{vT+3}, v{vHi}")
    e(f"v_lshlrev_b32 v{vT+1}, 7, v{vT+1}")
    e(f"s_lshl_b32 s{sT0}, s{sW}, 12")
    e(f"v_add_u32 v{vT+1}, s{sT0}, v{vT+1}")
    for kk in range(4):
        e(f"v_xor_b32 v{vT+4}, {2*kk}, v{vT+3}")
        e(f"v_lshl_add_u32 v{H.vXa+kk}, v{vT+4}, 4, v{vT+1}")
    e.para()
    tile_ids(e, KV, sW, H.sTa, H.sTb)
    e.para()


def partial_reads(KV):
    H = HR
    WB_OFF, IA, IB, tiles = image_cfg(KV)
    rd = [f"ds_read_b128 {r4(H.vXd+4*kk)}, v{H.vXa+kk}" for kk in range(4)]
    for kk in range(4):
        for h in range(2):
            d = H.vD + 4*kk + 2*h
            rd.append(f"ds_read_b64_tr_b16 v[{d}:{d+1}], v{H.vC1} offset:{kk*IA['kk'] + h*IA['s']}")
    for kk in range(4):
        for h in range(2):
            d = H.vD + 16 + 4*kk + 2*h
            if KV:
                rd.append(f"ds_read_b64_tr_b16 v[{d}:{d+1}], v{H.vC2+2*kk+h}")
            else:
                rd.append(f"ds_read_b64_tr_b16 v[{d}:{d+1}], v{H.vC2} offset:{kk*IB['kk'] + h*IB['s']}")
    return rd


def partial_valu():
    H = HR
    vSx, vCs, a = H.vSx, H.vCs, H.vU
    P = [[f"v_mov_b32 v{vSx+r}, 0" for r in range(4)] + [f"v_mov_b32 v{vCs+r}, 0" for r in range(4)]]
    for r in range(0, 16, 2):
        x = H.vXd + r
        P.append([f"v_lshlrev_b32 v{a}, 16, v{x}", f"v_and_b32 v{a+1}, s{sHiMask}, v{x}",
                  f"v_lshlrev_b32 v{a+2}, 16, v{x+1}", f"v_and_b32 v{a+3}, s{sHiMask}, v{x+1}",
                  f"v_add_f32 v{vSx}, v{vSx}, v{a}", f"v_add_f32 v{vSx+1}, v{vSx+1}, v{a+1}",
                  f"v_fmac_f32 v{vSx+2}, v{a}, v{a}", f"v_fmac_f32 v{vSx+3}, v{a+1}, v{a+1}",
                  f"v_add_f32 v{vSx}, v{vSx}, v{a+2}", f"v_add_f32 v{vSx+1}, v{vSx+1}, v{a+3}",
                  f"v_fmac_f32 v{vSx+2}, v{a+2}, v{a+2}", f"v_fmac_f32 v{vSx+3}, v{a+3}, v{a+3}"])
    for r in range(16):
        x, y = H.vD + r, H.vD + 16 + r
        P.append([f"v_lshlrev_b32 v{a}, 16, v{x}", f"v_and_b32 v{a+1}, s{sHiMask}, v{x}",
                  f"v_lshlrev_b32 v{a+2}, 16, v{y}", f"v_and_b32 v{a+3}, s{sHiMask}, v{y}",
                  f"v_add_f32 v{vCs}, v{vCs}, v{a}", f"v_add_f32 v{vCs+1}, v{vCs+1}, v{a+1}",
                  f"v_add_f32 v{vCs+2}, v{vCs+2}, v{a+2}", f"v_add_f32 v{vCs+3}, v{vCs+3}, v{a+3}"])
    cs = (vSx, vSx+1, vCs, vCs+2)
    P.append([f"v_add_f32 v{vSx}, v{vSx}, v{vSx+1}", f"v_add_f32 v{vSx+1}, v{vSx+2}, v{vSx+3}",
              f"v_add_f32 v{vCs}, v{vCs}, v{vCs+1}", f"v_add_f32 v{vCs+2}, v{vCs+2}, v{vCs+3}"] +
             [f"v_mov_b32 v{a+n}, v{c}" for n, c in enumerate(cs)] + ["s_nop 1"] +
             [f"v_permlane32_swap_b32 v{c}, v{a+n}" for n, c in enumerate(cs)] + ["s_nop 1"] +
             [f"v_add_f32 v{c}, v{c}, v{a+n}" for n, c in enumerate(cs)] +
             [f"v_max_u32 v{c}, 1, v{c}" for c in cs])
    return P


def partial_publish(e):
    H = HR
    vU = H.vU
    slot_offsets(e, sT0, sT3)
    e(f"s_lshl_b32 s{sT1}, s{sW}, 8")
    e(f"s_add_u32 s{sT0}, s{sT0}, s{sT1}")
    e(f"v_lshlrev_b32 v{vU}, 1, v{vL31x4}")
    e(f"v_cndmask_b32 v{vU}, v{vU}, v{H.vOOB}, s[{sHIm}:{sHIm+1}]")
    e(f"v_cndmask_b32 v{vU+1}, v{vL31x4}, v{H.vOOB}, s[{sHIm}:{sHIm+1}]")
    e.vmop(f"buffer_store_dwordx2 v[{H.vSx}:{H.vSx+1}], v{vU}, s[{S_WS}:{S_WS+3}], s{sT0} offen sc1", "pp")
    e(f"s_add_u32 s{sT1}, s{sT3}, s{H.sTa}")
    e(f"s_add_u32 s{sT2}, s{sT3}, s{H.sTb}")
    e.vmop(f"buffer_store_dword v{H.vCs}, v{vU+1}, s[{S_WS}:{S_WS+3}], s{sT1} offen sc1", "pp")
    e.vmop(f"buffer_store_dword v{H.vCs+2}, v{vU+1}, s[{S_WS}:{S_WS+3}], s{sT2} offen sc1", "pp")


def loader_path(typ):
    KV = typ == "KV"
    e = Em("L" + typ)
    H = HR
    WB_OFF, IA, IB, tiles = image_cfg(KV)
    vXsrc = 18
    vWsrcA = 22
    vWsrcB = 27
    vOOB = H.vOOB
    vL16c = 46
    sX2, sA2, sB2 = 77, 78, 48
    sCa, sCb, sR2, sR3 = 47, 50, 51, 56
    sL2 = 57
    sHW = 49
    nA, nB = (5, 2) if KV else (4, 3)
    pA, pB = (3840, 3072) if KV else (3072, 3840)
    lA, lB = (5120, 2048) if KV else (4096, 3072)

    e.label(f"L_L{typ}")
    e.stamp("start_real", True)
    e.stamp("start")
    e(f"v_lshrrev_b32 v{vT}, 3, v{vLane}")
    e(f"v_and_b32 v{vT+1}, 7, v{vLane}")
    e(f"v_lshrrev_b32 v{vT+2}, 1, v{vT}")
    e(f"v_xor_b32 v{vT+1}, v{vT+1}, v{vT+2}")
    e(f"v_xor_b32 v{vT+2}, 4, v{vT+1}")
    e(f"v_mul_u32_u24 v{vT}, 1280, v{vT}")
    e(f"v_lshl_add_u32 v{vXsrc}, v{vT+1}, 4, v{vT}")
    e(f"v_lshl_add_u32 v{vXsrc+1}, v{vT+2}, 4, v{vT}")
    e(f"v_add_u32 v{vXsrc+1}, {8*1280}, v{vXsrc+1}")
    e(f"v_add_u32 v{vXsrc+2}, {16*1280}, v{vXsrc}")
    e(f"v_add_u32 v{vXsrc+3}, {16*1280}, v{vXsrc+1}")
    e(f"s_lshl_b32 s{sT3}, s{sW}, 1")
    e(f"s_lshl_b32 s{sT0}, s{sI}, 2")
    e(f"s_add_u32 s{sT0}, s{sT0}, s{sT3}")
    e(f"s_mul_i32 s{sXoff}, s{sT0}, {32*1280}")
    e(f"s_add_u32 s{sXlim}, s{sXoff}, 1280")
    e(f"s_lshl_b32 s{sT0}, s{sRot}, 7")
    e(f"s_add_u32 s{sXoff}, s{sXoff}, s{sT0}")
    e(f"s_lshl_b32 s{sLx}, s{sT3}, 12")
    e(f"s_lshl_b32 s{sT1}, s{sRot}, 2")
    e(f"s_add_u32 s{sT1}, s{sT1}, s{sT3}")
    e(f"s_mul_i32 s{sWoffA}, s{sT1}, {16*pA}")
    e(f"s_mul_i32 s{sWoffB}, s{sT1}, {16*pB}")
    e(f"s_mul_i32 s{sLa}, s{sT3}, {lA}")
    e(f"s_mul_i32 s{sLb}, s{sT3}, {lB}")
    e(f"s_add_u32 s{sX2}, s{sXoff}, {32*1280}")
    e(f"s_add_u32 s{sA2}, s{sWoffA}, {16*pA}")
    e(f"v_mov_b32 v{vOOB}, {OOB}")

    def rowmajor_src(dst, n, div, magic, pitch, kind):
        for u in range(n):
            e(f"v_add_u32 v{vT}, {64*u}, v{vLane}")
            e(f"v_mul_u32_u24 v{vT+1}, {magic}, v{vT}")
            e(f"v_lshrrev_b32 v{vT+1}, 16, v{vT+1}")
            e(f"v_mul_u32_u24 v{vT+2}, {div}, v{vT+1}")
            e(f"v_sub_u32 v{vT+2}, v{vT}, v{vT+2}")
            e(f"v_cmp_lt_u32 vcc, 9, v{vT+2}")
            e(f"v_mul_u32_u24 v{vT+1}, {pitch}, v{vT+1}")
            e(f"v_lshl_add_u32 v{vT+1}, v{vT+2}, 4, v{vT+1}")
            if kind == "kv":
                e(f"v_cndmask_b32 v{vT+3}, v{vT+6}, v{vT+4}, vcc")
                e(f"v_cmp_lt_u32 vcc, 11, v{vT+2}")
                e(f"v_add_u32 v{vT+1}, s{sT0}, v{vT+1}")
                e(f"s_nop 0")
                e(f"v_cndmask_b32 v{vT+3}, v{vT+3}, v{vT+5}, vcc")
                e(f"v_add_u32 v{dst+u}, v{vT+1}, v{vT+3}")
            else:
                e(f"v_add_u32 v{vT+1}, s{sT0}, v{vT+1}")
                e(f"v_cndmask_b32 v{dst+u}, v{vT+1}, v{vOOB}, vcc")

    def block_base():
        e(f"v_lshrrev_b32 v{vT}, 2, v{vLane}")
        e(f"v_and_b32 v{vT}, 7, v{vT}")
        e(f"v_mul_u32_u24 v{vT}, 3072, v{vT}")
        e(f"v_and_b32 v{vT+1}, 3, v{vLane}")
        e(f"v_lshl_add_u32 v{vT}, v{vT+1}, 4, v{vT}")
        e(f"v_lshl_add_u32 v{vT}, v{vHi}, 6, v{vT}")

    if KV:
        block_base()
        e(f"s_mul_i32 s{sT0}, s{sG}, 384")
        e(f"v_add_u32 v{vWsrcB}, s{sT0}, v{vT}")
        e(f"v_add_u32 v{vWsrcB+1}, {8*3072}, v{vWsrcB}")
        e(f"s_mul_i32 s{sT0}, s{sG}, 160")
        e(f"v_mov_b32 v{vT+4}, 2528")
        e(f"v_mov_b32 v{vT+5}, 2368")
        e(f"v_mov_b32 v{vT+6}, 1280")
        rowmajor_src(vWsrcA, 5, 20, 3277, 3840, "kv")
    else:
        block_base()
        e(f"s_mul_i32 s{sT0}, s{sG}, 384")
        e(f"s_add_u32 s{sT0}, s{sT0}, 128")
        e(f"v_add_u32 v{vWsrcA}, s{sT0}, v{vT}")
        e(f"v_add_u32 v{vWsrcA+1}, 128, v{vWsrcA}")
        e(f"v_add_u32 v{vWsrcA+2}, {8*3072}, v{vWsrcA}")
        e(f"v_add_u32 v{vWsrcA+3}, {8*3072+128}, v{vWsrcA}")
        e(f"s_mul_i32 s{sT0}, s{sG}, 160")
        rowmajor_src(vWsrcB, 3, 12, 5462, 3840, "q")
    e("s_waitcnt lgkmcnt(0)")
    e.srds(["X", "WQKV", "W1", "WS"])
    e(f"s_add_u32 s{sB2}, s{sWoffB}, {16*pB}")
    SW_A = S_WQKV if KV else S_W1
    SW_B = S_W1 if KV else S_WQKV
    stepA, stepB = 64*pA, 64*pB

    def g1_dmas(s):
        if s >= 20:
            return []
        base = (s % 3) * SLOT1
        g = []
        for k in range(2):
            for b in range(4):
                g.append([f"s_add_u32 m0, s{sLx}, {base + k*4096 + b*1024}", "s_nop 0",
                          (f"buffer_load_dwordx4 v{vXsrc+b}, s[{S_X}:{S_X+3}], s{[sXoff, sX2][k]} offen lds", ("st", s))])
            if s < 10:
                for u in range(nA):
                    g.append([f"s_add_u32 m0, s{sLa}, {base + WA_OFF + k*lA + u*1024}", "s_nop 0",
                              (f"buffer_load_dwordx4 v{vWsrcA+u}, s[{SW_A}:{SW_A+3}], s{[sWoffA, sA2][k]} offen lds", ("st", s))])
            if s == 0 or s >= 10:
                for u in range(nB):
                    g.append([f"s_add_u32 m0, s{sLb}, {base + WB_OFF + k*lB + u*1024}", "s_nop 0",
                              (f"buffer_load_dwordx4 v{vWsrcB+u}, s[{SW_B}:{SW_B+3}], s{[sWoffB, sB2][k]} offen lds", ("st", s))])
        so, s2, st, p = (sWoffA, sA2, stepA, pA) if s < 10 else (sWoffB, sB2, stepB, pB)
        g[-1] = g[-1] + [
            f"s_add_u32 s{sXoff}, s{sXoff}, 128", f"s_add_u32 s{so}, s{so}, {st}",
            f"s_cmp_ge_u32 s{sXoff}, s{sXlim}", f"s_cselect_b32 s{sTw}, 1280, 0", f"s_sub_u32 s{sXoff}, s{sXoff}, s{sTw}",
            f"s_cmp_ge_u32 s{so}, {10*st}", f"s_cselect_b32 s{sTw}, {10*st}, 0", f"s_sub_u32 s{so}, s{so}, s{sTw}",
            f"s_add_u32 s{sX2}, s{sXoff}, {32*1280}", f"s_add_u32 s{s2}, s{so}, {16*p}"]
        return g

    e.capture()
    partial_setup(e, KV)
    e(f"s_lshl_b32 s{sT3}, s{sW}, 1")
    e(f"s_mul_i32 s{sA0}, s{sT64}, 68")
    e(f"s_add_u32 s{sA0}, s{sA0}, s{sT3}")
    e(f"s_lshl_b32 s{sA0}, s{sA0}, 12")
    e(f"s_mul_i32 s{sB0}, s{sCc}, 68")
    e(f"s_add_u32 s{sB0}, s{sB0}, s{sT3}")
    e(f"s_mul_i32 s{sB0}, s{sB0}, 5120")
    e(f"s_add_u32 s{sB0}, s{sB0}, {W2R_OFF}")
    e(f"s_mul_i32 s{sL2}, s{sT3}, 9216")
    e.para()
    if ROT2:
        e(f"s_and_b32 s{sT0}, s{sT64}, 3")
        e(f"s_lshl_b32 s{sT1}, s{sT0}, 1")
        e(f"s_add_u32 s{sCa}, s{sCc}, s{sT1}")
        e(f"s_and_b32 s{sCa}, s{sCa}, 7")
        e(f"s_add_u32 s{sR3}, s{sCc}, s{sT0}")
        e(f"s_and_b32 s{sR2}, s{sR3}, 3")
        for _ in range(2):
            e(f"s_sub_u32 s{sT2}, s{sR3}, 5")
            e(f"s_cmp_ge_u32 s{sR3}, 5")
            e(f"s_cselect_b32 s{sR3}, s{sT2}, s{sR3}")
    else:
        e(f"s_mov_b32 s{sCa}, 0")
        e(f"s_mov_b32 s{sR2}, 0")
        e(f"s_mov_b32 s{sR3}, 0")
    e(f"s_mov_b32 s{sCb}, s{sCa}")
    e(f"s_add_u32 s{sR2}, s{sR2}, 8")
    e(f"s_add_u32 s{sR3}, s{sR3}, 12")
    setup = e.end_capture()
    d0 = g1_dmas(0)
    e.op(d0[:10])
    e.merge(d0[10:], setup)
    e.stamp("st0_issued")
    e.op(g1_dmas(1))
    e.stamp("st1_issued")

    def cursor(cur, s):
        if s == 7:
            return [f"s_mov_b32 s{cur}, s{sR2}"]
        if s == 11:
            return [f"s_mov_b32 s{cur}, s{sR3}"]
        lim, lo = (8, 0) if s < 7 else ((12, 8) if s < 11 else (17, 12))
        return [f"s_add_u32 s{cur}, s{cur}, 1", f"s_cmp_eq_u32 s{cur}, {lim}", f"s_cselect_b32 s{cur}, {lo}, s{cur}"]

    def a_dmas(s):
        base = G2S[s % 3]
        g = [f"s_lshl_b32 s{sA}, s{sCa}, 14", f"s_add_u32 s{sA}, s{sA}, s{sA0}"]
        for k in range(2):
            g += [f"s_add_u32 m0, s{sL2}, {base + k*9216}", "s_nop 0"]
            for m in range(4):
                g.append((f"buffer_load_dwordx4 v{[vL16, vL16b][k]}, s[{S_WS}:{S_WS+3}], s{sA} offen offset:{1024*m} sc1 lds", ("g2", s)))
        return g + cursor(sCa, s)

    def b_dmas(s):
        base = G2S[s % 3] + 4096
        g = [f"s_mul_i32 s{sB}, s{sCb}, {4*5120}", f"s_add_u32 s{sB}, s{sB}, s{sB0}"]
        for k in range(2):
            g += [f"s_add_u32 m0, s{sL2}, {base + k*9216}", "s_nop 0"]
            for nu in range(4):
                g.append((f"buffer_load_dwordx4 v{vL16}, s[{S_WS}:{S_WS+3}], s{sB} offen offset:{1024*nu} sc1 lds", ("g2", s)))
            g += [f"s_add_u32 m0, s{sL2}, {base + k*9216 + 4096}", "s_nop 0",
                  (f"buffer_load_dwordx4 v{vL16b}, s[{S_WS}:{S_WS+3}], s{sB} offen sc1 lds", ("g2", s))]
            if k == 0:
                g.append(f"s_add_u32 s{sB}, s{sB}, 5120")
        return g + cursor(sCb, s)

    PV = partial_valu()
    n2 = len(PV) // 2
    for s in range(20):
        e.c(f"--- G1 stage {s} ---")
        e.wait_vm({("st", s)}, lgkm=0)
        e("s_barrier")
        if STAMP:
            e.stamp(f"B{s}")
        dm = g1_dmas(s + 2) if s != 10 else []
        va = []
        if s == 0:
            for x in partial_reads(KV):
                e(x)
            e.op(dm.pop(0))
            e.op(dm.pop(0))
            e("s_waitcnt lgkmcnt(0)")
            va = PV[:n2]
        if s == 1:
            va = PV[n2:]
        e.merge(dm, va)
        if s == 1:
            partial_publish(e)
        if s == 9:
            e("s_barrier")
            e.stamp("E1")
            e.op(g1_dmas(12))
        if s == 18:
            e.op(a_dmas(0))
            e.op(b_dmas(0))
        if s == 19:
            e.op(a_dmas(1))
    e("s_barrier")
    e.stamp("E3")
    e.op(b_dmas(1))
    e.op(a_dmas(2))
    e.op(b_dmas(2))
    for s in range(17):
        e.c(f"--- G2 stage {s} ---")
        e.wait_vm({("g2", s)})
        e("s_barrier")
        if STAMP:
            e.stamp(f"G{s}")
        n = s + 2
        if s >= 1 and n < 17:
            e.op(a_dmas(n))
            e.op(b_dmas(n))
    e.stamp("end")
    e.stamp("end_real", True)
    e.stamp_flush()
    e("s_endpgm")
    return e


def service_path(typ):
    KV = typ == "KV"
    e = Em("S" + typ)
    H = HR
    vOOB, vU, vD = H.vOOB, H.vU, H.vD
    vOne, vThree = 46, 31
    vPRa, vPQa, vPVa, vPKa, vInA = 47, 48, 49, 50, 51
    vN16_1, vN16_2, vN32_2, vInN = 52, 53, 54, 55
    vTid = 56
    vN32_3 = 44
    vRs = 120
    vRPa = 130
    vPL = 132
    KA = 136
    vRD = 160
    vP2 = 200
    sSW = 49
    sRd = [77, 78]
    S_RP2 = 12
    sP = [[44, 45, 46], [47, 50, 51]]
    sTi = [[60, 61], [62, 63]]

    e.label(f"L_S{typ}")
    e.stamp("start_real", True)
    e.stamp("start")
    e(f"v_mov_b32 v{vOOB}, {OOB}")
    e(f"s_sub_u32 s{sD}, s{sW}, 2")
    partial_setup(e, KV)
    e(f"s_sub_u32 s{sTw}, s{sW}, 2")
    e("s_waitcnt lgkmcnt(0)")
    e.srds(["WS", "DBG"])
    for n in range(2):
        srd = [S_RP, S_RP2][n]
        e(f"s_lshl_b32 s{sT1}, s{sTw}, 5")
        e(f"s_add_u32 s{sT1}, s{sT1}, s{sT64}")
        if n:
            e(f"s_add_u32 s{sT1}, s{sT1}, 64")
        e(f"s_sub_u32 s76, s{sT1}, 48")
        e(f"s_mul_i32 s60, s76, 13108")
        e(f"s_lshr_b32 s60, s60, 16")
        e(f"s_mul_i32 s61, s60, 5")
        e(f"s_sub_u32 s61, s76, s61")
        e(f"s_lshl_b32 s79, s61, 1")
        e(f"s_cmp_lt_u32 s61, 3")
        e(f"s_cselect_b32 s{sT2}, 0, 1")
        e(f"s_sub_u32 s79, s79, s{sT2}")
        e(f"s_add_u32 s{sT2}, s79, 1")
        e(f"s_cmp_eq_u32 s61, 2")
        e(f"s_cselect_b32 s{sT2}, 9, s{sT2}")
        e(f"s_mul_i32 s60, s60, 10")
        e(f"s_add_u32 s79, s79, s60")
        e(f"s_add_u32 s{sT2}, s{sT2}, s60")
        e(f"s_lshr_b32 s76, s{sT1}, 2")
        e(f"s_mul_i32 s76, s76, 12")
        e(f"s_and_b32 s60, s{sT1}, 3")
        e(f"s_lshl_b32 s60, s60, 1")
        e(f"s_add_u32 s76, s76, s60")
        e(f"s_add_u32 s76, s76, 4")
        e(f"s_sub_u32 s60, s{sT1}, 32")
        e(f"s_lshr_b32 s60, s60, 1")
        e(f"s_mul_i32 s60, s60, 12")
        e(f"s_and_b32 s61, s{sT1}, 1")
        e(f"s_lshl_b32 s61, s61, 1")
        e(f"s_add_u32 s60, s60, s61")
        e(f"s_cmp_lt_u32 s{sT1}, 32")
        e(f"s_cselect_b32 s76, s76, s60")
        e(f"s_add_u32 s60, s76, 1")
        e(f"s_cmp_lt_u32 s{sT1}, 48")
        e(f"s_cselect_b32 s79, s76, s79")
        e(f"s_cselect_b32 s{sT2}, s60, s{sT2}")
        e(f"s_cselect_b32 s{srd}, s54, s48")
        e(f"s_cselect_b32 s{srd+1}, s55, s49")
        e(f"s_mov_b32 s{srd+2}, {640*1280}")
        e(f"s_cselect_b32 s{srd+2}, {1536*1280}, s{srd+2}")
        e(f"s_mov_b32 s{srd+3}, 0x00020000")
        e(f"s_mul_i32 s76, s{sCc}, 160")
        e(f"s_mul_i32 s79, s79, {16*1280}")
        e(f"s_mul_i32 s{sT2}, s{sT2}, {16*1280}")
        e(f"s_sub_u32 s{sT2}, s{sT2}, {16*1280}")
        e(f"s_add_u32 s79, s79, s76")
        e(f"s_add_u32 s{sT2}, s{sT2}, s76")
        e(f"s_mul_i32 s{sRd[n]}, s{sCc}, 68")
        e(f"s_add_u32 s{sRd[n]}, s{sRd[n]}, s{sT1}")
        e(f"s_mul_i32 s{sRd[n]}, s{sRd[n]}, 5120")
        e(f"s_add_u32 s{sRd[n]}, s{sRd[n]}, {W2R_OFF}")
        e(f"s_cmp_lt_u32 s{sT1}, 68")
        e(f"s_cselect_b32 s79, s79, {OOB}")
        e(f"s_cselect_b32 s{sT2}, s{sT2}, {OOB}")
        e(f"s_cselect_b32 s{sRd[n]}, s{sRd[n]}, {OOB}")
        e(f"v_mov_b32 v{vT+3}, s79")
        e(f"v_mov_b32 v{vT+4}, s{sT2}")
        for u in range(5):
            e(f"v_add_u32 v{vU}, {64*u}, v{vLane}")
            e(f"v_mul_u32_u24 v{vT+1}, 6554, v{vU}")
            e(f"v_lshrrev_b32 v{vT+1}, 16, v{vT+1}")
            e(f"v_mul_u32_u24 v{vT+2}, 10, v{vT+1}")
            e(f"v_sub_u32 v{vT+2}, v{vU}, v{vT+2}")
            e(f"v_cmp_lt_u32 vcc, 15, v{vT+1}")
            e(f"v_mul_u32_u24 v{vT+1}, 1280, v{vT+1}")
            e(f"v_lshl_add_u32 v{vT+1}, v{vT+2}, 4, v{vT+1}")
            e(f"v_cndmask_b32 v{vT+5}, v{vT+3}, v{vT+4}, vcc")
            e(f"v_add_u32 v{vRs+5*n+u}, v{vT+1}, v{vT+5}")
    e(f"s_mov_b32 s{sSW}, s{sTw}")
    e(f"s_mul_i32 s{sLx}, s{sSW}, 10240")
    e(f"s_add_u32 s{sLa}, s{sLx}, {RP_LDS}")
    e(f"v_lshrrev_b32 v{vU}, 4, v{vLane}")
    e(f"v_and_b32 v{vU}, 1, v{vU}")
    e(f"v_lshl_add_u32 v{vU}, v{vU}, 2, v{H.vR}")
    e(f"v_lshl_add_u32 v{vU}, v{vHi}, 4, v{vU}")
    e(f"v_mul_u32_u24 v{vU}, 160, v{vU}")
    e(f"v_and_b32 v{vT+1}, 3, v{vLane}")
    e(f"v_lshl_add_u32 v{vU}, v{vT+1}, 3, v{vU}")
    e(f"v_add_u32 v{vRPa}, s{sLa}, v{vU}")
    e(f"v_subrev_u32 v{vTid}, 384, v0")
    e(f"v_mov_b32 v{vOne}, 1")
    e(f"v_mov_b32 v{vThree}, 3")
    e(f"v_cmp_gt_u32 vcc, 2, v{vTid}")
    e(f"v_lshlrev_b32 v{vT+1}, 7, v{vLane}")
    e(f"v_mov_b32 v{vT+3}, 128")
    e(f"v_cndmask_b32 v{vInA}, v{vOOB}, v{vT+1}, vcc")
    e(f"v_cndmask_b32 v{vInN}, 0, v{vT+3}, vcc")
    e(f"s_lshr_b32 s{sT0}, s{sT64}, 1")
    e(f"s_lshl_b32 s{sT0}, s{sT0}, 11")
    e(f"s_and_b32 s{sT1}, s{sT64}, 1")
    e(f"s_lshl_b32 s{sT1}, s{sT1}, 5")
    e(f"s_add_u32 s{sT0}, s{sT0}, s{sT1}")
    e(f"s_add_u32 s{sT0}, s{sT0}, {FLG_OFF}")
    e(f"v_lshrrev_b32 v{vT+1}, 1, v{vLane}")
    e(f"v_and_b32 v{vT+3}, 1, v{vLane}")
    e(f"v_lshlrev_b32 v{vT+3}, 4, v{vT+3}")
    e(f"v_add_u32 v{vT+3}, s{sT0}, v{vT+3}")
    e(f"v_lshl_add_u32 v{vT+4}, v{vT+1}, 8, v{vT+3}")
    e(f"v_add_u32 v{vT+5}, 128, v{vT+4}")
    e(f"v_cmp_gt_u32 vcc, 16, v{vTid}")
    e(f"v_mov_b32 v{vT+3}, 2")
    e("s_nop 0")
    e(f"v_cndmask_b32 v{vPVa}, v{vOOB}, v{vT+4}, vcc")
    e(f"v_cndmask_b32 v{vPQa}, v{vOOB}, v{vT+5}, vcc")
    e(f"v_cndmask_b32 v{vN16_1}, 0, v{vOne}, vcc")
    e(f"v_cndmask_b32 v{vN16_2}, 0, v{vT+3}, vcc")
    e(f"s_lshr_b32 s{sT0}, s{sCc}, 1")
    e(f"s_lshl_b32 s{sT0}, s{sT0}, 7")
    e(f"s_and_b32 s{sT1}, s{sCc}, 1")
    e(f"s_lshl_b32 s{sT1}, s{sT1}, 13")
    e(f"s_add_u32 s{sT0}, s{sT0}, s{sT1}")
    e(f"s_add_u32 s{sT0}, s{sT0}, {FLG_OFF + 96}")
    e(f"v_and_b32 v{vT+1}, 3, v{vLane}")
    e(f"v_lshlrev_b32 v{vT+1}, 11, v{vT+1}")
    e(f"v_and_b32 v{vT+4}, 4, v{vLane}")
    e(f"v_lshl_add_u32 v{vT+1}, v{vT+4}, 12, v{vT+1}")
    e(f"v_and_b32 v{vT+4}, 24, v{vLane}")
    e(f"v_lshl_add_u32 v{vT+1}, v{vT+4}, 6, v{vT+1}")
    e(f"v_add_u32 v{vT+1}, s{sT0}, v{vT+1}")
    e(f"v_cmp_gt_u32 vcc, 32, v{vTid}")
    e("s_nop 1")
    e(f"v_cndmask_b32 v{vPRa}, v{vOOB}, v{vT+1}, vcc")
    e(f"v_cndmask_b32 v{vN32_2}, 0, v{vT+3}, vcc")
    e(f"v_mul_u32_u24 v{vU}, 5120, v{vHi}")
    e(f"v_lshl_add_u32 v{vPL+1}, v{vL31x4}, 1, v{vU}")
    e(f"v_add_u32 v{vPL}, v{vL31x4}, v{vU}")
    e(f"v_add_u32 v{vPL+2}, 4096, v{vPL}")
    e(f"v_add_u32 v{vPL+3}, 4096, v{vPL+1}")
    for n in range(2):
        e(f"s_lshl_b32 s{sT3}, s{sSW}, 1")
        e(f"s_add_u32 s{sT3}, s{sT3}, {n}")
        tile_ids(e, KV, sT3, sTi[n][0], sTi[n][1])
        e(f"s_mul_i32 s{sP[n][0]}, s{sI}, 10240")
        e(f"s_lshl_b32 s{sT1}, s{sT3}, 8")
        e(f"s_add_u32 s{sP[n][0]}, s{sP[n][0]}, s{sT1}")
        e(f"s_add_u32 s{sP[n][0]}, s{sP[n][0]}, {STP_OFF}")
        e(f"s_mul_i32 s{sP[n][1]}, s{sJ}, 10240")
        e(f"s_add_u32 s{sP[n][1]}, s{sP[n][1]}, {CSP_OFF}")
        e(f"s_add_u32 s{sP[n][2]}, s{sP[n][1]}, s{sTi[n][1]}")
        e(f"s_add_u32 s{sP[n][1]}, s{sP[n][1]}, s{sTi[n][0]}")
    if not KV:
        e(f"s_lshl_b32 s{sT0}, s{sG}, 8")
        e(f"s_add_u32 s{sT0}, s{sT0}, {FLG_OFF + 96}")
        e(f"v_lshrrev_b32 v{vT+1}, 1, v{vLane}")
        e(f"v_lshlrev_b32 v{vT+1}, 11, v{vT+1}")
        e(f"v_and_b32 v{vT+3}, 1, v{vLane}")
        e(f"v_lshl_add_u32 v{vT+1}, v{vT+3}, 4, v{vT+1}")
        e(f"v_add_u32 v{vT+1}, s{sT0}, v{vT+1}")
        e(f"v_cndmask_b32 v{vPKa}, v{vT+1}, v{vOOB}, s[{sHIm}:{sHIm+1}]")
        e(f"v_cndmask_b32 v{vN32_3}, v{vThree}, 0, s[{sHIm}:{sHIm+1}]")
        for rnd in range(4):
            A1 = KA + 2*rnd
            A2 = A1 + 1
            e(f"v_add_u32 v{vT}, {128*rnd}, v{vTid}")
            e(f"v_mul_u32_u24 v{vT+1}, 3121, v{vT}")
            e(f"v_lshrrev_b32 v{vT+1}, 16, v{vT+1}")
            e(f"v_mul_u32_u24 v{vT+2}, 21, v{vT+1}")
            e(f"v_sub_u32 v{vT+2}, v{vT}, v{vT+2}")
            e(f"v_mul_u32_u24 v{vT+3}, 13108, v{vT+1}")
            e(f"v_lshrrev_b32 v{vT+3}, 16, v{vT+3}")
            e(f"v_mul_u32_u24 v{vT+4}, 20, v{vT+3}")
            e(f"v_add_u32 v{vT+4}, v{vT+4}, v{vT+2}")
            e(f"v_add_u32 v{vT+5}, 16, v{vT+4}")
            e(f"v_cmp_lt_u32 vcc, 63, v{vT+4}")
            e(f"v_add_u32 v{vT+3}, 64, v{vT+3}")
            e(f"v_lshlrev_b32 v{KA+8+rnd}, 4, v{vT}")
            e(f"v_cndmask_b32 v{vT+4}, v{vT+4}, v{vT+5}, vcc")
            e(f"v_cmp_eq_u32 vcc, 20, v{vT+2}")
            e(f"v_add_u32 v{vT+5}, 4, v{vT+3}")
            e("s_nop 0")
            e(f"v_cndmask_b32 v{vT+5}, v{vT+4}, v{vT+5}, vcc")
            e(f"v_cndmask_b32 v{vT+4}, v{vT+4}, v{vT+3}, vcc")
            e(f"v_lshrrev_b32 v{vT+2}, 2, v{vT+1}")
            e(f"v_lshlrev_b32 v{vT+2}, 5, v{vT+2}")
            e(f"v_and_b32 v{vT+3}, 1, v{vT+1}")
            e(f"v_lshl_add_u32 v{vT+2}, v{vT+3}, 4, v{vT+2}")
            e(f"v_and_b32 v{vT+3}, 2, v{vT+1}")
            e(f"v_lshl_add_u32 v{vT+2}, v{vT+3}, 2, v{vT+2}")
            e(f"v_add_u32 v{vT+2}, {KVT_LDS}, v{vT+2}")
            e(f"v_mad_u32_u24 v{A1}, v{vT+4}, s{sKVTP}, v{vT+2}")
            e(f"v_mad_u32_u24 v{A2}, v{vT+5}, s{sKVTP}, v{vT+2}")
        e(f"v_mov_b32 v{vT}, {KVT_LDS + 100*KVT_P}")
        e(f"v_cmp_gt_u32 vcc, 36, v{vTid}")
        e("s_nop 1")
        e(f"v_cndmask_b32 v{KA+6}, v{vT}, v{KA+6}, vcc")
        e(f"v_cndmask_b32 v{KA+7}, v{vT}, v{KA+7}, vcc")
        e(f"v_cndmask_b32 v{KA+11}, v{vOOB}, v{KA+11}, vcc")
    e.stamp("setup_done")

    def partial_loads(track):
        for n in range(2):
            D = vD + 24*n
            for k in range(5):
                vs, vc, off = (vPL+1, vPL, f" offset:{k*1024}") if k < 4 else (vPL+3, vPL+2, "")
                for ins in (f"buffer_load_dwordx2 v[{D+2*k}:{D+2*k+1}], v{vs}, s[{S_WS}:{S_WS+3}], s{sP[n][0]} offen{off} sc1",
                            f"buffer_load_dword v{D+10+k}, v{vc}, s[{S_WS}:{S_WS+3}], s{sP[n][1]} offen{off} sc1",
                            f"buffer_load_dword v{D+15+k}, v{vc}, s[{S_WS}:{S_WS+3}], s{sP[n][2]} offen{off} sc1"):
                    if track:
                        e.vmop(ins, "pl")
                    else:
                        e(ins)

    def partial_validate():
        regs = list(range(vD, vD+20)) + list(range(vD+24, vD+44))
        e.wait_vm({"pl"})
        e(f"s_mov_b32 s{sSpin}, 0")
        e.label(f"L_pv{typ}")
        e(f"v_min_u32 v{vU}, v{regs[0]}, v{regs[1]}")
        e(f"v_min_u32 v{vU+1}, v{regs[2]}, v{regs[3]}")
        for k in range(4, 40, 4):
            e(f"v_min3_u32 v{vU}, v{vU}, v{regs[k]}, v{regs[k+1]}")
            e(f"v_min3_u32 v{vU+1}, v{vU+1}, v{regs[k+2]}, v{regs[k+3]}")
        e(f"v_min_u32 v{vU}, v{vU}, v{vU+1}")
        e(f"v_cmp_eq_u32 vcc, 0, v{vU}")
        e(f"s_add_u32 s{sSpin}, s{sSpin}, 1")
        e(f"s_cmp_lt_u32 s{sSpin}, 0x20000")
        e(f"s_cselect_b64 s[94:95], -1, 0")
        e(f"s_and_b64 vcc, vcc, s[94:95]")
        e(f"s_cbranch_vccz L_pvok{typ}")
        e("s_sleep 2")
        partial_loads(False)
        e("s_waitcnt vmcnt(0)")
        e(f"s_branch L_pv{typ}")
        e.label(f"L_pvok{typ}")

    def partial_finish(n):
        D = vD + 24*n
        for k in range(1, 5):
            e(f"v_add_f32 v{D}, v{D}, v{D+2*k}")
            e(f"v_add_f32 v{D+1}, v{D+1}, v{D+2*k+1}")
            e(f"v_add_f32 v{D+10}, v{D+10}, v{D+10+k}")
            e(f"v_add_f32 v{D+15}, v{D+15}, v{D+15+k}")
        cs = (D, D+1, D+10, D+15)
        for k, c in enumerate(cs):
            e(f"v_mov_b32 v{vU+k}, v{c}")
        e("s_nop 1")
        for k, c in enumerate(cs):
            e(f"v_permlane32_swap_b32 v{c}, v{vU+k}")
        e("s_nop 1")
        for k, c in enumerate(cs):
            e(f"v_add_f32 v{c}, v{c}, v{vU+k}")
        O = D + 4
        e(f"v_mul_f32 v{vT+5}, {f32bits(1.0/640):#x}, v{D}")
        e(f"v_mul_f32 v{vT+4}, {f32bits(1.0/640):#x}, v{D+1}")
        e(f"v_fma_f32 v{vT+4}, -v{vT+5}, v{vT+5}, v{vT+4}")
        e(f"v_max_f32 v{vT+4}, 0, v{vT+4}")
        e(f"v_cvt_pk_bf16_f32 v{vT+2}, v{vT+5}, v{vT+4}")
        e(f"v_lshlrev_b32 v{vT+3}, 16, v{vT+2}")
        e(f"v_and_b32 v{vT+4}, s{sHiMask}, v{vT+2}")
        e(f"v_add_f32 v{vT+4}, {f32bits(1e-5):#x}, v{vT+4}")
        e(f"v_cvt_pk_bf16_f32 v{vT+4}, v{vT+4}, v{vT+4}")
        e(f"v_and_b32 v{vT+4}, s{sHiMask}, v{vT+4}")
        e(f"v_sqrt_f32 v{vT+4}, v{vT+4}")
        e(f"v_xor_b32 v{vT+2}, 0x80000000, v{vT+3}")
        e(f"v_cvt_pk_bf16_f32 v{vT+4}, v{vT+4}, v{vT+4}")
        e(f"v_and_b32 v{O+2}, s{sHiMask}, v{vT+4}")
        e(f"v_rcp_f32 v{O+1}, v{O+2}")
        e(f"v_lshrrev_b32 v{vT+4}, 16, v{vT+2}")
        e(f"v_mul_f32 v{O+3}, {f32bits(LOG2E):#x}, v{O+1}")
        e(f"v_or_b32 v{O}, v{vT+2}, v{vT+4}")
        e(f"s_mul_i32 s{sT0}, s{sSW}, 1536")
        e(f"s_add_u32 s{sT0}, s{sT0}, {STAT_LDS + 768*n}")
        e(f"v_lshl_add_u32 v{vT+1}, v{vL31x4}, 2, s{sT0}")
        e(f"v_add_u32 v{vT+2}, s{sT0}, v{vL31x4}")
        e(f"ds_write_b128 v{vT+1}, {r4(O)}")
        if KV:
            e(f"ds_write_b32 v{vT+2}, v{O+3} offset:512")
            e(f"ds_write_b32 v{vT+2}, v{O+1} offset:640")
        for k, c in enumerate((D+10, D+15)):
            x = D + 12 + 6*k
            e(f"v_and_b32 v{vU}, s{sHiMask}, v{c}")
            e(f"v_sub_f32 v{vU}, v{c}, v{vU}")
            e(f"v_lshrrev_b32 v{c}, 16, v{c}")
            e(f"v_and_or_b32 v{x}, v{vU}, s{sHiMask}, v{c}")
            e(f"v_and_b32 v{vU+1}, s{sHiMask}, v{vU}")
            e(f"v_sub_f32 v{vU+1}, v{vU}, v{vU+1}")
            e(f"v_lshrrev_b32 v{x+1}, 16, v{vU+1}")
            e(f"s_lshl_b32 s{sT0}, s{sTi[n][k]}, 1")
            e(f"s_add_u32 s{sT0}, s{sT0}, {EXT_LDS}")
            e(f"v_lshl_add_u32 v{vT+1}, v{vL31x4}, 1, s{sT0}")
            e(f"ds_write_b64 v{vT+1}, v[{x}:{x+1}]")

    def kv_atomics():
        e(f"v_lshlrev_b32 v{vU}, 2, v{vTid}")
        e(f"v_add_u32 v{vU+1}, {CP_LDS}, v{vU}")
        e(f"v_add_u32 v{vU+2}, 4096, v{vU}")
        e(f"v_add_u32 v{vU+3}, {13*512}, v{vU}")
        e(f"v_cmp_gt_u32 vcc, 16, v{vTid}")
        e(f"s_lshl_b32 s{sT1}, s{sG}, 13")
        e(f"s_add_u32 s{sT1}, s{sT1}, {KVA_OFF}")
        e(f"v_cndmask_b32 v{vU+3}, v{vOOB}, v{vU+3}, vcc")
        for k in range(14):
            for ww in range(4):
                e(f"ds_read_b32 v{vD+4*k+ww}, v{vU+1} offset:{CPW[ww]+k*512}")
        for k in range(14):
            e(f"s_waitcnt lgkmcnt({min(15, 4*(13-k))})")
            b = vD + 4*k
            e(f"v_add_f32 v{b}, v{b}, v{b+1}")
            e(f"v_add_f32 v{b+2}, v{b+2}, v{b+3}")
            e(f"v_add_f32 v{b}, v{b}, v{b+2}")
            if k < 8:
                e.vmop(f"buffer_atomic_add_f32 v{b}, v{vU}, s[{S_WS}:{S_WS+3}], s{sT1} offen offset:{k*512}", "kva")
            elif k < 13:
                e.vmop(f"buffer_atomic_add_f32 v{b}, v{vU+2}, s[{S_WS}:{S_WS+3}], s{sT1} offen offset:{(k-8)*512}", "kva")
            else:
                e.vmop(f"buffer_atomic_add_f32 v{b}, v{vU+3}, s[{S_WS}:{S_WS+3}], s{sT1} offen", "kva")

    PV = partial_valu()
    n2 = len(PV) // 2
    for s in range(20):
        e.c(f"--- G1 stage {s} ---")
        e("s_waitcnt lgkmcnt(0)")
        e("s_barrier")
        if s == 0:
            for x in partial_reads(KV):
                e(x)
            e("s_waitcnt lgkmcnt(0)")
            e.op(PV[:n2+4])
        if s == 1:
            e.op(PV[n2+4:])
            partial_publish(e)
            e.stamp("published")
        if s == 2:
            for n in range(2):
                for u in range(5):
                    e(f"s_add_u32 m0, s{sLa}, {n*5120 + u*1024}")
                    e("s_nop 0")
                    e.vmop(f"buffer_load_dwordx4 v{vRs+5*n+u}, s[{[S_RP, S_RP2][n]}:{[S_RP, S_RP2][n]+3}], 0 offen lds", "rp")
            e.poll_issue(vInA, S_DBG, "pin")
        if s == 4:
            e.poll_check(vInA, S_DBG, vInN, "pin")
            for n in range(2):
                for nu in range(5):
                    for h in range(2):
                        d = vRD + 20*n + 4*nu + 2*h
                        e(f"ds_read_b64_tr_b16 v[{d}:{d+1}], v{vRPa} offset:{n*5120+32*nu+1280*h}")
        if s in (5, 6):
            n = s - 5
            if s == 5:
                partial_loads(True)
            for nu in range(5):
                if nu < 4:
                    e.vmop(f"buffer_store_dwordx4 {r4(vRD+20*n+4*nu)}, v{vL16}, s[{S_WS}:{S_WS+3}], s{sRd[n]} offen offset:{1024*nu} sc1", "rps")
                else:
                    e.vmop(f"buffer_store_dwordx4 {r4(vRD+20*n+4*nu)}, v{vL16b}, s[{S_WS}:{S_WS+3}], s{sRd[n]} offen sc1", "rps")
        if s == 7:
            partial_validate()
            e.stamp("validated")
        if s == 8:
            partial_finish(0)
        if s == 9:
            partial_finish(1)
            e.wait_vm({"rps"}, lgkm=0)
            e("s_barrier")
            e.stamp("E1")
            e.flag_store(2)
            if not KV:
                e(f"v_lshlrev_b32 v{vT}, 4, v{vTid}")
                e(f"v_add_u32 v{vT}, {KVT_LDS}, v{vT}")
                for r in range(4):
                    e(f"v_mov_b32 v{vT+2+r}, 0")
                for q in range(10):
                    e(f"ds_write_b128 v{vT}, v[{vT+2}:{vT+5}] offset:{q*2048}")
        if KV and s == 10:
            kv_atomics()
        if KV and s == KVF:
            e.wait_vm({"kva"})
            e.flag_store(3)
            e.stamp("kv_flag")
        if s == 15:
            e.poll_issue(vPRa, S_WS, "pr")
            e.poll_issue(vPQa, S_WS, "pq", dst=vP2)
        if s == 17:
            e.poll_check(vPRa, S_WS, vN32_2, "pr")
            e.poll_check(vPQa, S_WS, vN16_1, "pq", dst=vP2)
            e.stamp("PQ_ok")
    e("s_barrier")
    KS = OST - 1
    for s in range(17):
        e.c(f"--- G2 stage {s} ---")
        e("s_waitcnt lgkmcnt(0)")
        e("s_barrier")
        if s == 4:
            e.poll_issue(vPVa, S_WS, "pv")
        if s == 5:
            e.poll_check(vPVa, S_WS, vN16_1, "pv")
            e.stamp("PV_ok")
        if s == 8:
            e.poll_issue(vPQa, S_WS, "po")
        if s == 9:
            e.poll_check(vPQa, S_WS, vN16_2, "po")
            e.stamp("PO_ok")
        if not KV:
            if s == KS - 2:
                e.poll_issue(vPKa, S_WS, "pk", dst=vP2)
            if s == KS - 1:
                e.poll_check(vPKa, S_WS, vN32_3, "pk", dst=vP2)
                e.stamp("PK_ok")
                e(f"s_lshl_b32 s{sT0}, s{sG}, 13")
                e(f"s_add_u32 s{sT0}, s{sT0}, {KVA_OFF}")
                for rnd in range(4):
                    e.vmop(f"buffer_load_dwordx4 {r4(vD+4*rnd)}, v{KA+8+rnd}, s[{S_WS}:{S_WS+3}], s{sT0} offen sc1", "kv")
            if s == KS:
                e.wait_vm({"kv"})
                for rnd in range(4):
                    b = vD + 4*rnd
                    e(f"v_cvt_pk_bf16_f32 v{vD+16+2*rnd}, v{b}, v{b+1}")
                    e(f"v_cvt_pk_bf16_f32 v{vD+17+2*rnd}, v{b+2}, v{b+3}")
                    e(f"ds_write_b64 v{KA+2*rnd}, v[{vD+16+2*rnd}:{vD+17+2*rnd}]")
                    e(f"ds_write_b64 v{KA+1+2*rnd}, v[{vD+16+2*rnd}:{vD+17+2*rnd}]")
                e.stamp("KVT_done")
    e.stamp("end")
    e.stamp("end_real", True)
    e.stamp_flush()
    e("s_endpgm")
    e.label(f"L_S{typ}_end")
    return e


def gen():
    e = Em("top")
    K = NAME + "_kernel"
    e.L.append(f".globl {K}\n.p2align 8\n.type {K},@function\n{K}:")
    e("s_load_dwordx4 s[44:47], s[0:1], 0")
    e("s_load_dwordx2 s[48:49], s[0:1], 16")
    e("s_load_dwordx4 s[52:55], s[0:1], 32")
    e("s_load_dwordx2 s[50:51], s[0:1], 48")
    e("s_load_dwordx2 s[56:57], s[0:1], 56")
    e("s_load_dwordx2 s[58:59], s[0:1], 64")
    e("s_cmp_ge_u32 s2, 256")
    e("s_cbranch_scc1 L_exit")
    e(f"v_and_b32 v{vLane}, 63, v0")
    e(f"v_lshrrev_b32 v{vT}, 6, v0")
    e(f"v_lshrrev_b32 v{vHi}, 5, v{vLane}")
    e(f"v_readfirstlane_b32 s{sT3}, v{vT}")
    e(f"v_and_b32 v{vL31x4}, 31, v{vLane}")
    e(f"v_lshlrev_b32 v{vL31x4}, 2, v{vL31x4}")
    if STAMP:
        e(f"v_mov_b32 v{vStamp}, 0")
    e(f"s_and_b32 s{sT0}, s2, 1")
    e(f"s_lshl_b32 s{sT0}, s{sT0}, 3")
    e(f"s_bfe_u32 s{sT2}, s2, 0x30003")
    e(f"s_add_u32 s{sI}, s{sT0}, s{sT2}")
    e(f"s_bfe_u32 s{sT0}, s2, 0x20001")
    e(f"s_lshl_b32 s{sT0}, s{sT0}, 2")
    e(f"s_lshr_b32 s{sT1}, s2, 6")
    e(f"s_add_u32 s{sJ}, s{sT0}, s{sT1}")
    e(f"s_lshr_b32 s{sG}, s{sJ}, 1")
    e(f"s_and_b32 s{sT0}, s2, 7")
    e(f"s_lshl_b32 s{sT0}, s{sT0}, 2")
    e(f"s_bfe_u32 s{sT64}, s2, 0x20003")
    e(f"s_add_u32 s{sT64}, s{sT64}, s{sT0}")
    e(f"s_lshr_b32 s{sCc}, s2, 5")
    e(f"s_and_b32 s{sW}, s{sT3}, 3")
    e(f"s_lshr_b32 s{sRole}, s{sT3}, 2")
    e(f"s_mul_i32 s{sRot}, s{sJ}, 3")
    e(f"s_add_u32 s{sRot}, s{sRot}, s{sI}")
    e(f"s_mul_i32 s{sT2}, s{sRot}, 205")
    e(f"s_lshr_b32 s{sT2}, s{sT2}, 11")
    e(f"s_mul_i32 s{sT2}, s{sT2}, 10")
    e(f"s_sub_u32 s{sRot}, s{sRot}, s{sT2}")
    e(f"s_lshl_b32 s{sFlag}, s{sI}, 4")
    e(f"s_add_u32 s{sFlag}, s{sFlag}, s{sJ}")
    e(f"s_lshl_b32 s{sFlag}, s{sFlag}, 3")
    e(f"s_add_u32 s{sFlag}, s{sFlag}, s{sT3}")
    e(f"s_lshl_b32 s{sFlag}, s{sFlag}, 4")
    e(f"s_add_u32 s{sFlag}, s{sFlag}, {FLG_OFF}")
    e(f"v_mov_b32 v{vT}, {OOB}")
    e(f"v_cmp_eq_u32 vcc, 0, v{vLane}")
    e(f"v_lshlrev_b32 v{vL16}, 4, v{vLane}")
    e(f"v_add_u32 v{vL16b}, 4096, v{vL16}")
    e(f"v_cndmask_b32 v{vFl0}, v{vT}, 0, vcc")
    e(f"s_mov_b32 s{sKVTP}, 176")
    e(f"s_mov_b32 s{sC}, {f32bits(1e-6/LN2):#x}")
    e(f"s_mov_b32 s{sLn2}, {f32bits(LN2):#x}")
    e(f"s_mov_b32 s{sHiMask}, 0xffff0000")
    e(f"s_mov_b32 s{sHIm}, 0")
    e(f"s_mov_b32 s{sHIm+1}, -1")
    e(f"s_mov_b32 s{sL16m}, 0xffff0000")
    e(f"s_mov_b32 s{sL16m+1}, 0xffff0000")
    e(f"s_and_b32 s{sT0}, s{sJ}, 1")
    e(f"s_lshl_b32 s{sT0}, s{sT0}, 2")
    e(f"s_lshr_b32 s{sT1}, s{sT3}, 1")
    e(f"s_add_u32 s{sT0}, s{sT0}, s{sT1}")
    e(f"s_cmp_eq_u32 s{sT0}, 2")
    e("s_cbranch_scc1 L_LKV")
    e(f"s_cmp_eq_u32 s{sT0}, 6")
    e("s_cbranch_scc1 L_LQ")
    e(f"s_cmp_eq_u32 s{sT0}, 3")
    e("s_cbranch_scc1 L_SKV")
    e(f"s_cmp_eq_u32 s{sT0}, 7")
    e("s_cbranch_scc1 L_SQ")
    e(f"s_cmp_ge_u32 s{sT0}, 4")
    e("s_cbranch_scc1 L_CQ")
    body = "".join(p.text() for p in [compute_path("KV"), loader_path("KV"), service_path("KV"),
                                      compute_path("Q"), loader_path("Q"), service_path("Q")])
    return e.text() + body + "L_exit:\n    s_endpgm\n"


def main():
    K = NAME + "_kernel"
    out = ["; generated by gen/gen7.py -- LN + linear attention + FFN, one persistent kernel (256 workgroups x 8 waves)",
           "; @launch grid=(256,1,1) block=(512,1,1) lds=163840",
           '.amdgcn_target "amdgcn-amd-amdhsa--gfx950"', ".text", gen(),
           '.section .rodata,"a"', ".p2align 6",
           f""".amdhsa_kernel {K}
  .amdhsa_next_free_vgpr 256
  .amdhsa_next_free_sgpr 102
  .amdhsa_accum_offset 256
  .amdhsa_group_segment_fixed_size 0
  .amdhsa_kernarg_size 72
  .amdhsa_user_sgpr_count 2
  .amdhsa_user_sgpr_kernarg_segment_ptr 1
  .amdhsa_system_sgpr_workgroup_id_x 1
.end_amdhsa_kernel
"""]
    return "\n".join(out)


if __name__ == "__main__":
    p = sys.argv[1] if len(sys.argv) > 1 else f"cdna_kernels/{NAME}.s"
    open(p, "w").write(main())
    print("wrote", p)
```

```python
import sys, struct, os

NAME = "parallel_sum__linear_attn_block__dense_activation_relu__prompt"

ACT_OFF = 0
W2R_OFF = 0x900000
KVA_OFF = 0xC00000
RSTD_OFF = 0xD00000
FLG_OFF = 0xD10000
STP_OFF = 0xD20000
CSP_OFF = 0xD50000
STAMP_OFF = 0xD80000
WS_SIZE = 0xE00000
OOB = 0x40000000
STAMP = os.environ.get("STAMP", "0") == "1"
DBGS = os.environ.get("DBGS", "0") == "1"
DBGW = int(os.environ.get("DBGW", "0"))
DBG_NAMES = ["start_real", "start", "st0_issued", "B0", "B1", "B5", "E1", "B10", "E3", "G0", "G6", "G12", "G16", "end", "end_real"]
ROT2 = int(os.environ.get("ROT2", "1"))
HF = int(os.environ.get("HF", "2"))
SLP = int(os.environ.get("SLP", "4"))
KVF = int(os.environ.get("KVF", "14"))
OST = int(os.environ.get("OST", "3"))

def f32bits(x):
    return struct.unpack("<I", struct.pack("<f", x))[0]

LOG2E = 1.4426950408889634
LN2 = 0.6931471805599453

SLOT1 = 45056
WA_OFF = 16384
SLOT2 = 36864
G2S = [90112, 0, 45056]
CP_LDS = 16384
CPW = [0, 6784, 13568, 45056]
OUT_LDS = 90112
RP_LDS = 135168
KVT_LDS = 135168
STAT_LDS = 156672
EXT_LDS = 159744
KVT_P = 176

S_X, S_WQKV, S_W1, S_WS, S_DBG, S_RP, S_CODE, S_OUT = 8, 12, 16, 20, 24, 28, 32, 84
sW, sI, sG, sT0, sT1, sT2, sT3, sXlim = 36, 37, 38, 39, 40, 41, 42, 43
sXoff, sWoffA, sWoffB = 60, 61, 62
sLx, sLa, sLb = 63, 64, 75
sC, sLn2, sHiMask = 65, 66, 67
sACT = 68
sTw = 69
sHIm = 70
sL16m = 72
sFlag = 74
sRPl, sRPd = 77, 78
sKVTP, sSpin, sRot = 81, 82, 83
sJ, sT64, sCc, sA, sB, sCnt = 88, 89, 90, 91, 92, 93
sSlot, sD = 96, 97
sA0, sB0 = 76, 79
sRole = 80
vLane, vHi, vL31x4, vFl0, vL16, vL16b, vStamp, vPoll, vPollN = 1, 2, 3, 4, 5, 6, 7, 8, 9
vT = 10


class Em:
    def __init__(self, lab):
        self.L = []
        self.vm = []
        self.stamps = []
        self.nlab = 0
        self.lab = lab
        self.cap = None

    def __call__(self, s):
        for line in s.split("\n"):
            if self.cap is not None:
                self.cap[-1].append(line)
            else:
                self.L.append("    " + line)

    def capture(self):
        self.cap = [[]]

    def para(self):
        if self.cap is not None and self.cap[-1]:
            self.cap.append([])

    def end_capture(self):
        c = [p for p in self.cap if p]
        self.cap = None
        return c

    def label(self, s):
        self.L.append(s + ":")

    def c(self, s):
        self.L.append("    ; " + s)

    def vmop(self, s, tag):
        assert self.cap is None
        self(s)
        self.vm.append(tag)
        assert len(self.vm) <= 63, self.vm

    def op(self, o):
        if isinstance(o, tuple):
            self.vmop(o[0], o[1])
        elif isinstance(o, list):
            for x in o:
                self.op(x)
        else:
            self(o)

    def merge(self, dm, paras):
        dm, paras = list(dm), list(paras)
        while dm or paras:
            if dm:
                self.op(dm.pop(0))
            k = -(-len(paras) // (len(dm) + 1)) if paras else 0
            for _ in range(k):
                self.op(paras.pop(0))

    def vm_n(self, tags):
        last = -1
        for k, t in enumerate(self.vm):
            if t in tags:
                last = k
        n = len(self.vm) - 1 - last
        self.vm = self.vm[last + 1:]
        return n

    def wait_vm(self, tags, lgkm=None):
        n = self.vm_n(tags)
        if lgkm is None:
            self(f"s_waitcnt vmcnt({n})")
        else:
            self(f"s_waitcnt vmcnt({n}) lgkmcnt({lgkm})")

    def pending(self, tag):
        return tag in self.vm

    def stamp(self, name, real=False):
        if DBGS:
            if self.lab[0] != "L" or name not in DBG_NAMES:
                return
            k = DBG_NAMES.index(name)
            self("s_waitcnt lgkmcnt(0)")
            self(("s_memtime" if name in ("start", "end") else "s_memrealtime") + " s[98:99]")
            self("s_waitcnt lgkmcnt(0)")
            self(f"v_writelane_b32 v{vStamp}, s98, {k}")
            return
        if not STAMP:
            return
        k = len(self.stamps)
        self.stamps.append(name)
        assert k < 60
        self("s_waitcnt lgkmcnt(0)")
        self(("s_memrealtime" if real else "s_memtime") + " s[98:99]")
        self("s_waitcnt lgkmcnt(0)")
        self(f"v_writelane_b32 v{vStamp}, s98, {k}")

    def stamp_flush(self):
        if DBGS:
            if self.lab[0] != "L":
                return
            self.srds(["DBG2"])
            self(f"v_lshlrev_b32 v{vT}, 2, v{vLane}")
            self(f"v_add_u32 v{vT}, 4, v{vT}")
            self(f"v_mov_b32 v{vT+1}, {OOB}")
            self(f"v_cmp_gt_u32 vcc, 15, v{vLane}")
            self("s_nop 1")
            self(f"v_cndmask_b32 v{vT}, v{vT+1}, v{vT}, vcc")
            self(f"s_cmp_eq_u32 s2, {DBGW}")
            self(f"s_cselect_b32 s98, 0, {OOB}")
            self(f"s_cmp_eq_u32 s{sW}, 0")
            self(f"s_cselect_b32 s98, s98, {OOB}")
            self(f"buffer_store_dword v{vStamp}, v{vT}, s[{S_DBG}:{S_DBG+3}], s98 offen")
            return
        if not STAMP:
            return
        self(f"s_lshl_b32 s98, s2, 3")
        self(f"s_add_u32 s98, s98, s{sW}")
        self(f"s_lshl_b32 s99, s{sRole}, 2")
        self(f"s_add_u32 s98, s98, s99")
        self(f"s_lshl_b32 s98, s98, 8")
        self(f"s_add_u32 s98, s98, {STAMP_OFF}")
        self(f"v_lshlrev_b32 v{vT}, 2, v{vLane}")
        self(f"buffer_store_dword v{vStamp}, v{vT}, s[{S_WS}:{S_WS+3}], s98 offen")
        print(f"stamps: {self.lab}:" + ",".join(self.stamps))

    def flag_store(self, val):
        self(f"v_mov_b32 v{vPollN}, {val}")
        self.vmop(f"buffer_store_dword v{vPollN}, v{vFl0}, s[{S_WS}:{S_WS+3}], s{sFlag} offen sc1", "flag")

    def poll_issue(self, vaddr, srd, tag, dst=None):
        self.vmop(f"buffer_load_dword v{dst or vPoll}, v{vaddr}, s[{srd}:{srd+3}], 0 offen sc1", tag)

    def poll_check(self, vaddr, srd, vneed, tag, dst=None):
        dst = dst or vPoll
        self.nlab += 1
        k = f"{self.lab}{self.nlab}"
        self.wait_vm({tag})
        self(f"v_cmp_lt_u32 vcc, v{dst}, v{vneed}")
        self(f"s_mov_b32 s{sSpin}, 0")
        self("s_nop 3")
        self(f"s_cbranch_vccz L_ok{k}")
        self.label(f"L_sp{k}")
        self(f"s_sleep {SLP}")
        self(f"buffer_load_dword v{dst}, v{vaddr}, s[{srd}:{srd+3}], 0 offen sc1")
        self("s_waitcnt vmcnt(0)")
        self(f"v_cmp_lt_u32 vcc, v{dst}, v{vneed}")
        self(f"s_add_u32 s{sSpin}, s{sSpin}, 1")
        self(f"s_cmp_lt_u32 s{sSpin}, 0x40000")
        self(f"s_cselect_b64 s[94:95], -1, 0")
        self(f"s_and_b64 vcc, vcc, s[94:95]")
        self(f"s_cbranch_vccnz L_sp{k}")
        self.label(f"L_ok{k}")

    def srds(self, lst):
        tab = {"X": (S_X, 44, 2048*1280), "WQKV": (S_WQKV, 46, 640*3840), "W1": (S_W1, 52, 640*3072),
               "WS": (S_WS, 58, WS_SIZE), "DBG": (S_DBG, 56, 256), "OUT": (S_OUT, 50, 2048*1280), "DBG2": (S_DBG, 100, 256)}
        for k in lst:
            srd, p, sz = tab[k]
            self(f"s_mov_b32 s{srd}, s{p}")
            self(f"s_mov_b32 s{srd+1}, s{p+1}")
            self(f"s_mov_b32 s{srd+2}, {sz}")
            self(f"s_mov_b32 s{srd+3}, 0x00020000")

    def text(self):
        return "\n".join(self.L) + "\n"


def r4(b):
    return f"v[{b}:{b+3}]"


def image_cfg(KV):
    if KV:
        WB_OFF = WA_OFF + 20480
        A = dict(kk=5120, s=1280, t=lambda t: t*64)
        B = dict(kk=2048, s=256, t=lambda t: t*512)
        tiles = [("A", t) for t in range(5)] + [("B", t) for t in range(2)]
    else:
        WB_OFF = WA_OFF + 16384
        A = dict(kk=4096, s=256, t=lambda t: (t >> 1)*1024 + (t & 1)*512)
        B = dict(kk=3072, s=768, t=lambda t: t*64)
        tiles = [("A", t) for t in range(4)] + [("B", t) for t in range(3)]
    return WB_OFF, A, B, tiles


def lane_parts(e, KV, dA, dB, t):
    e(f"v_lshrrev_b32 v{t}, 2, v{vLane}")
    e(f"v_and_b32 v{t}, 3, v{t}")
    e(f"v_and_b32 v{t+1}, 3, v{vLane}")
    e(f"v_lshlrev_b32 v{t+1}, 3, v{t+1}")
    e(f"v_and_b32 v{t+2}, 16, v{vLane}")
    e(f"v_lshl_add_u32 v{t+1}, v{t+2}, 1, v{t+1}")
    e(f"v_lshl_add_u32 v{t+2}, v{vHi}, 3, v{t}")
    if KV:
        e(f"v_mul_u32_u24 v{dA}, 320, v{t+2}")
        e(f"v_add_u32 v{dA}, v{dA}, v{t+1}")
        e(f"v_lshl_add_u32 v{dB}, v{t}, 6, v{t+1}")
        e(f"v_lshl_add_u32 v{dB}, v{vHi}, 10, v{dB}")
    else:
        e(f"v_lshl_add_u32 v{dA}, v{t}, 6, v{t+1}")
        e(f"v_lshl_add_u32 v{dA}, v{vHi}, 11, v{dA}")
        e(f"v_mul_u32_u24 v{dB}, 192, v{t+2}")
        e(f"v_add_u32 v{dB}, v{dB}, v{t+1}")


def slot_offsets(e, d_st, d_cs):
    e(f"s_mul_i32 s{d_st}, s{sI}, 10")
    e(f"s_add_u32 s{d_st}, s{d_st}, s{sRot}")
    e(f"s_lshl_b32 s{d_st}, s{d_st}, 10")
    e(f"s_add_u32 s{d_st}, s{d_st}, {STP_OFF}")
    e(f"s_cmp_lt_u32 s{sJ}, 10")
    e(f"s_cselect_b32 s{d_st}, s{d_st}, {OOB}")
    e(f"s_mul_i32 s{d_cs}, s{sJ}, 10")
    e(f"s_add_u32 s{d_cs}, s{d_cs}, s{sRot}")
    e(f"s_lshl_b32 s{d_cs}, s{d_cs}, 10")
    e(f"s_add_u32 s{d_cs}, s{d_cs}, {CSP_OFF}")
    e(f"s_cmp_lt_u32 s{sI}, 10")
    e(f"s_cselect_b32 s{d_cs}, s{d_cs}, {OOB}")


def compute_path(typ):
    KV = typ == "KV"
    e = Em("C" + typ)
    WB_OFF, IA, IB, tiles = image_cfg(KV)
    vXrd = 18
    vWA, vWB = 22, 23
    vSt = 24
    vAcc = 32
    vWf = 144
    vXf = 200
    vXext = 244
    vXp, vRstd, vSd, vRl = 248, 249, 250, 251
    corient = [KV and t < 5 for t in range(7)]
    A_ = lambda t: vAcc + 16*t

    e.label(f"L_C{typ}")
    e.stamp("start_real", True)
    e.stamp("start")
    e(f"s_getpc_b64 s[{S_CODE}:{S_CODE+1}]")
    e.label(f"L_C{typ}_pc")
    e(f"s_mov_b32 s{S_CODE+2}, L_S{typ}_end-L_C{typ}_pc")
    e(f"s_mov_b32 s{S_CODE+3}, 0x00020000")
    e(f"v_lshlrev_b32 v{vT}, 7, v0")
    e.vmop(f"buffer_load_dword v255, v{vT}, s[{S_CODE}:{S_CODE+3}], 0 offen", "pf")
    for r in range(4):
        e(f"v_mov_b32 v{vAcc+r}, 0")
    slot_offsets(e, sT0, sT1)
    e(f"s_cmp_eq_u32 s{sW}, 0")
    e(f"s_cselect_b32 s{sT0}, s{sT0}, {OOB}")
    e(f"s_cselect_b32 s{sT1}, s{sT1}, {OOB}")
    e(f"s_and_b32 s{sT2}, s{sFlag}, 0xffffff80")
    e(f"v_mov_b32 v{vT+1}, {OOB}")
    e(f"v_cmp_gt_u32 vcc, 8, v0")
    if KV:
        e(f"s_lshl_b32 s{sT3}, s{sG}, 13")
        e(f"s_lshl_b32 s{sTw}, s{sI}, 10")
        e(f"s_add_u32 s{sT3}, s{sT3}, s{sTw}")
        e(f"s_add_u32 s{sT3}, s{sT3}, {KVA_OFF}")
        e(f"s_cmp_lt_u32 s{sI}, 7")
        e(f"s_cselect_b32 s{sT3}, s{sT3}, {OOB}")
        e(f"s_cmp_eq_u32 s{sW}, 0")
        e(f"s_cselect_b32 s{sT3}, s{sT3}, {OOB}")
    e(f"v_cndmask_b32 v{vT}, v{vT+1}, v{vL16}, vcc")
    e("s_waitcnt lgkmcnt(0)")
    e.srds(["WS"])
    e.vmop(f"buffer_store_dword v{vAcc}, v{vT}, s[{S_WS}:{S_WS+3}], s{sT2} offen sc1", "z")
    e.vmop(f"buffer_store_dwordx4 {r4(vAcc)}, v{vL16}, s[{S_WS}:{S_WS+3}], s{sT0} offen sc1", "z")
    e.vmop(f"buffer_store_dwordx4 {r4(vAcc)}, v{vL16}, s[{S_WS}:{S_WS+3}], s{sT1} offen sc1", "z")
    if KV:
        e.vmop(f"buffer_store_dwordx4 {r4(vAcc)}, v{vL16}, s[{S_WS}:{S_WS+3}], s{sT3} offen sc1", "z")
    e.srds(["X", "OUT", "DBG"])
    e(f"v_and_b32 v{vT}, 31, v{vLane}")
    e(f"v_lshrrev_b32 v{vT+1}, 1, v{vT}")
    e(f"v_and_b32 v{vT+1}, 7, v{vT+1}")
    e(f"v_xor_b32 v{vT+1}, v{vT+1}, v{vHi}")
    e(f"v_lshlrev_b32 v{vT}, 7, v{vT}")
    e(f"s_lshl_b32 s{sT0}, s{sW}, 12")
    e(f"v_add_u32 v{vT}, s{sT0}, v{vT}")
    for kk in range(4):
        e(f"v_xor_b32 v{vT+2}, {2*kk}, v{vT+1}")
        e(f"v_lshl_add_u32 v{vXrd+kk}, v{vT+2}, 4, v{vT}")
    lane_parts(e, KV, vWA, vWB, vT)
    e(f"v_add_u32 v{vWA}, {WA_OFF}, v{vWA}")
    e(f"v_add_u32 v{vWB}, {WB_OFF}, v{vWB}")
    e(f"v_and_b32 v{vT}, 15, v{vLane}")
    e(f"v_lshlrev_b32 v{vT}, 4, v{vT}")
    e(f"v_lshl_add_u32 v{vT}, v{vHi}, 8, v{vT}")
    e(f"v_and_b32 v{vT+1}, 16, v{vLane}")
    e(f"v_lshl_add_u32 v{vT}, v{vT+1}, 6, v{vT}")
    e(f"s_and_b32 s{sT0}, s{sW}, 1")
    e(f"s_lshl_b32 s{sT0}, s{sT0}, 11")
    e(f"v_add_u32 v{vSt}, s{sT0}, v{vT}")
    e(f"s_lshr_b32 s{sT0}, s{sW}, 1")
    e(f"s_lshl_b32 s{sT1}, s{sI}, 1")
    e(f"s_add_u32 s{sT0}, s{sT0}, s{sT1}")
    e(f"s_mul_i32 s{sACT}, s{sT0}, {68*4096}")
    EXR = 212
    for r in list(range(vAcc+4, vAcc+112)) + list(range(vWf+28, vWf+56)) + list(range(vXf+4, vXf+8)) + \
            [EXR+4*t+k for t in range(7) for k in (2, 3)] + [vXext+2, vXext+3]:
        e(f"v_mov_b32 v{r}, 0")
    e(f"v_lshlrev_b32 v25, 1, v{vL31x4}")
    e(f"v_add_u32 v25, {EXT_LDS}, v25")
    e(f"s_mul_i32 s{sT0}, s{sW}, 768")
    e(f"s_add_u32 s{sT0}, s{sT0}, {STAT_LDS}")
    e(f"v_lshl_add_u32 v26, v{vL31x4}, 2, s{sT0}")
    e(f"v_lshl_add_u32 v27, v{vHi}, 4, s{sT0}")
    e(f"s_and_b32 s{sT0}, s2, 1")
    e(f"s_lshl_b32 s{sT0}, s{sT0}, 7")
    e(f"v_mov_b32 v{vT}, s{sT0}")
    e(f"v_mov_b32 v{vT+1}, {OOB}")
    e(f"v_cmp_eq_u32 vcc, 0, v0")
    e(f"v_mov_b32 v{vT+2}, 1")
    e(f"s_mov_b32 s{sCnt}, 0")
    e(f"s_mov_b32 s{sSlot}, 0")
    e(f"v_cndmask_b32 v{vT}, v{vT+1}, v{vT}, vcc")
    e.wait_vm({"z"})
    e.vmop(f"buffer_atomic_add v{vT+2}, v{vT}, s[{S_DBG}:{S_DBG+3}], 0 offen", "init")

    P1 = [0, 1, 2, 3, 4] if KV else [0, 1, 2, 3]
    P2 = [5, 6] if KV else [4, 5, 6]

    def reads(kk, TL):
        out = [f"ds_read_b128 {r4(vXf+4*(kk % 2))}, v{vXrd+kk}"]
        for t in TL:
            img, ti = tiles[t]
            I = IA if img == "A" else IB
            va = vWA if img == "A" else vWB
            for s in range(2):
                d = vWf + (kk % 2)*28 + 4*t + 2*s
                out.append(f"ds_read_b64_tr_b16 v[{d}:{d+1}], v{va} offset:{kk*I['kk'] + s*I['s'] + I['t'](ti)}")
        return out

    def mf(t, x, w):
        acc = f"v[{A_(t)}:{A_(t)+15}]"
        if corient[t]:
            return f"v_mfma_f32_32x32x16_bf16 {acc}, {x}, {w}, {acc}"
        return f"v_mfma_f32_32x32x16_bf16 {acc}, {w}, {x}, {acc}"

    def mfm(par, t):
        return mf(t, r4(vXf + 4*par), r4(vWf + par*28 + 4*t))

    def g1_loop(name, TL, count=10):
        e(f"s_mov_b32 s{sCnt}, 0")
        e(".p2align 3")
        e.label(name)
        e("s_waitcnt lgkmcnt(0)")
        e("s_barrier")
        adv = [f"s_add_u32 s{sSlot}, s{sSlot}, 1", f"s_cmp_eq_u32 s{sSlot}, 3", f"s_cselect_b32 s{sSlot}, 0, s{sSlot}",
               f"s_mov_b32 s{sD}, {SLOT1}", f"s_cselect_b32 s{sD}, {(-2*SLOT1) & 0xffffffff:#x}, s{sD}",
               f"s_add_u32 s{sCnt}, s{sCnt}, 1", f"s_cmp_lt_u32 s{sCnt}, {count}"]
        per = 4 if len(TL) >= 4 else 8
        for kk in range(4):
            if kk:
                e("s_waitcnt lgkmcnt(0)")
            rd = reads(kk, TL)
            for k, t in enumerate(TL):
                e(mfm((kk + 1) % 2, t))
                for _ in range(per):
                    if rd:
                        e(rd.pop(0))
            assert not rd
            if kk == 2:
                for x in adv:
                    e(x)
            if kk == 3:
                for r in list(range(vXrd, vXrd+4)) + [vWA, vWB]:
                    e(f"v_add_u32 v{r}, s{sD}, v{r}")
        e(f"s_cbranch_scc1 {name}")

    def h_tile(t, o, n, bgq):
        a = A_(t)
        for j in range(8):
            e(f"v_max_f32 v{a+2*j}, 0, v{a+2*j}")
            e(f"v_max_f32 v{a+2*j+1}, 0, v{a+2*j+1}")
            e(f"v_cvt_pk_bf16_f32 v{o+j}, v{a+2*j}, v{a+2*j+1}")
            if bgq and j % 2 == 1:
                e(bgq.pop(0))
        e(f"s_add_u32 s{sT1}, s{sT0}, {n*4096}")
        e.vmop(f"buffer_store_dwordx4 {r4(o)}, v{vSt}, s[{S_WS}:{S_WS+3}], s{sT1} offen sc1", "hst")
        e.vmop(f"buffer_store_dwordx4 {r4(o+4)}, v{vSt}, s[{S_WS}:{S_WS+3}], s{sT1} offen offset:512 sc1", "hst")

    def phi(dst, acc, rl, tmp):
        e(f"v_fma_f32 v{tmp}, v{acc}, v{rl}, s{sC}")
        e(f"v_exp_f32 v{tmp+1}, v{tmp} clamp")
        e(f"v_max_f32 v{tmp}, s{sC}, v{tmp}")
        e(f"v_fma_f32 v{dst}, v{tmp}, s{sLn2}, v{tmp+1}")

    g1_loop(f"L_C{typ}_p1", P1)
    e("s_waitcnt lgkmcnt(0)")
    e("s_barrier")
    e.stamp("E1")
    order = [3, 4, 2, 0, 1, 5, 6] if KV else [0, 1, 2, 3, 4, 5, 6]
    RL, RS = 144, 160
    e(f"ds_read_b128 {r4(vXp)}, v26")
    for t in order:
        e(f"ds_read_b64 v[{EXR+4*t}:{EXR+4*t+1}], v25 offset:{t*256}")
    for t in order:
        if t in P1:
            e(mfm(1, t))
    e("s_waitcnt lgkmcnt(0)")
    e(f"v_lshrrev_b32 v{vT+4}, 16, v{vXp}")
    e(f"v_cndmask_b32 v{vXext}, v{vXp}, 0, s[{sHIm}:{sHIm+1}]")
    e(f"v_cndmask_b32 v{vXext+1}, v{vT+4}, 0, s[{sHIm}:{sHIm+1}]")
    if KV:
        for q in range(4):
            e(f"ds_read_b128 {r4(RS+4*q)}, v27 offset:{640+32*q}")
        for q in range(4):
            e(f"ds_read_b128 {r4(RL+4*q)}, v27 offset:{512+32*q}")
    else:
        e("s_nop 1")
    ex = [mf(t, r4(vXext), r4(EXR+4*t)) for t in order]
    for m in ex[:3]:
        e(m)
    bg = ex[3:]

    PQ = 224
    if KV:
        e("s_nop 8")
        e("s_waitcnt lgkmcnt(4)")
        Vp = [176, 184, 192]
        Kp = [200, 224, 232]
        for n, (t, dst) in enumerate([(3, Vp[0]), (4, Vp[1]), (2, Vp[2])]):
            a = A_(t)
            for j in range(8):
                e(f"v_mul_f32 v{vT}, v{a+2*j}, v{RS+2*j}")
                e(f"v_mul_f32 v{vT+1}, v{a+2*j+1}, v{RS+2*j+1}")
                e(f"v_cvt_pk_bf16_f32 v{dst+j}, v{vT}, v{vT+1}")
                if bg and j % 2 == 0:
                    e(bg.pop(0))
        e(f"v_mov_b32 v{vT}, 0x3f803f80")
        for j in range(8):
            e(f"v_cndmask_b32 v{Vp[2]+j}, v{vT}, v{Vp[2]+j}, s[{sL16m}:{sL16m+1}]")
        e("s_waitcnt lgkmcnt(0)")
        preg = {(0, 0): A_(3), (0, 1): A_(4), (0, 2): RS, (1, 0): A_(0), (1, 1): 208, (1, 2): A_(1),
                (2, 1): A_(2), (2, 2): RL}
        vCa, vCb = 28, 29
        e(f"v_mul_u32_u24 v{vCa}, 21, v{vHi}")
        e(f"v_and_b32 v{vCb}, 31, v{vLane}")
        e(f"v_add_lshl_u32 v{vCa}, v{vCa}, v{vCb}, 4")
        e(f"v_add_lshl_u32 v{vCb}, v{vHi}, v{vCb}, 4")
        e(f"s_mul_i32 s{sT0}, s{sW}, 6784")
        e(f"s_cmp_eq_u32 s{sW}, 3")
        e(f"s_cselect_b32 s{sT0}, {CPW[3]}, s{sT0}")
        e(f"s_add_u32 s{sT0}, s{sT0}, {CP_LDS}")
        e(f"v_add_u32 v{vCa}, s{sT0}, v{vCa}")
        e(f"v_add_u32 v{vCb}, s{sT0}, v{vCb}")

        def cwrites(a, b):
            out = []
            base = preg[(a, b)]
            for q in range(4):
                C0 = 8*a + 2*q
                if C0 >= 20:
                    continue
                src = r4(base+4*q)
                heads = [C0 // 5, (C0+1) // 5]
                ebase = [0, 32, 48][b]
                mask = 0
                for hi in range(2):
                    for l in range(32):
                        if b == 2 and l < 16:
                            continue
                        eg = ebase + l
                        if eg // 20 == heads[hi]:
                            mask |= 1 << (32*hi + l)
                if mask:
                    va = vCa if heads[0] == heads[1] else vCb
                    out.append([f"s_mov_b32 exec_lo, {mask & 0xffffffff:#x}", f"s_mov_b32 exec_hi, {mask >> 32:#x}",
                                f"ds_write_b128 v{va}, {src} offset:{16*(21*C0 + ebase - 20*heads[0])}"])
                if b == 2:
                    out.append([f"s_mov_b32 exec_lo, 1", f"s_mov_b32 exec_hi, 1",
                                f"ds_write_b128 v{vCa}, {src} offset:{16*(21*C0+20)}"])
            return out

        pend_m = []
        pend_w = []
        for a_ in range(3):
            a = A_(a_)
            dst = Kp[a_]
            if a_ == 2:
                pend_w = [w for b in range(3) for w in cwrites(0, b)]
            for j in range(8):
                phi(vT+4, a+2*j, RL+2*j, vT)
                phi(vT+5, a+2*j+1, RL+2*j+1, vT+2)
                e(f"v_cvt_pk_bf16_f32 v{dst+j}, v{vT+4}, v{vT+5}")
                if pend_m and j >= 1:
                    e(pend_m.pop(0))
                if pend_w and j >= 1:
                    for _ in range(2):
                        if pend_w:
                            e.op(pend_w.pop(0))
                    e("s_mov_b64 exec, -1")
            while pend_m:
                e(pend_m.pop(0))
            for h in range(2):
                for b in range(3):
                    if (a_, b) in preg:
                        base = preg[(a_, b)]
                        d = f"v[{base}:{base+15}]"
                        pend_m.append(f"v_mfma_f32_32x32x16_bf16 {d}, {r4(Kp[a_]+4*h)}, {r4(Vp[b]+4*h)}, {'0' if h == 0 else d}")
        e("s_nop 1")
        while pend_m:
            e(pend_m.pop(0))
        for w in pend_w:
            e.op(w)
        for b in range(3):
            for w in cwrites(1, b):
                e.op(w)
        for b in (1, 2):
            for w in cwrites(2, b):
                e.op(w)
        e("s_mov_b64 exec, -1")
        e.stamp("kv_done")
    else:
        e(f"s_lshl_b32 s{sT2}, s{sI}, 2")
        e(f"s_add_u32 s{sT2}, s{sT2}, s{sW}")
        e(f"s_lshl_b32 s{sT2}, s{sT2}, 7")
        e(f"s_add_u32 s{sT2}, s{sT2}, {RSTD_OFF}")
        e(f"s_cmp_eq_u32 s{sG}, 0")
        e(f"s_cselect_b32 s{sT2}, s{sT2}, {OOB}")
        e.vmop(f"buffer_store_dword v{vRstd}, v{vL31x4}, s[{S_WS}:{S_WS+3}], s{sT2} offen sc1", "hst")
        e(f"s_lshl_b32 s{sT0}, s{sG}, 14")
        e(f"s_add_u32 s{sT0}, s{sT0}, s{sACT}")
        e(bg.pop(0))
        e("s_nop 1")
        for n in range(4):
            h_tile(n, [144, 152, 172, 180][n], n, bg)
        e.stamp("h_stored")
    for r in [vWf + 28 + 4*t + k for t in P2 for k in range(4)] + list(range(vXf+4, vXf+8)):
        e(f"v_mov_b32 v{r}, 0")
    if KV:
        g1_loop(f"L_C{typ}_p2", P2)
    else:
        g1_loop(f"L_C{typ}_p2a", P2, HF)
        e.wait_vm({"hst"})
        e.flag_store(1)
        e.stamp("h_flag")
        g1_loop(f"L_C{typ}_p2b", P2, 10 - HF)
    e("s_waitcnt lgkmcnt(0)")
    e("s_barrier")
    e.stamp("E3")
    for t in P2:
        e(mfm(1, t))
    if KV:
        e(f"s_lshl_b32 s{sT0}, s{sG}, 13")
        e(f"s_add_u32 s{sT0}, s{sT0}, {32*4096}")
        e(f"s_add_u32 s{sT0}, s{sT0}, s{sACT}")
        e("s_nop 7")
        h_tile(5, 176, 0, [])
        h_tile(6, 184, 1, [])
        e.stamp("h_stored")
    else:
        e("s_nop 9")
        for s in range(5):
            a = A_(4) + 8*s
            for j in range(4):
                phi(vT+4, a+2*j, vRl, vT)
                phi(vT+5, a+2*j+1, vRl, vT+2)
                e(f"v_cvt_pk_bf16_f32 v{PQ+4*s+j}, v{vT+4}, v{vT+5}")
        e.stamp("pq_done")

    vA2, vB2 = 18, 19
    vG = 32
    vF2 = [52, 76, 100, 124]
    vGo, vLr, vXd, vRs, vLw, vRa = 216, 219, 148, 252, 222, 244
    e(f"s_lshl_b32 s{sT0}, s{sW}, 10")
    e(f"s_add_u32 s{sT0}, s{sT0}, {G2S[0]}")
    e(f"v_add_u32 v{vA2}, s{sT0}, v{vL16}")
    e(f"v_add_u32 v{vB2}, {G2S[0]}, v{vL16b}")
    for r in list(range(vG, vG+20)) + list(range(vF2[2], vF2[2]+24)) + list(range(vF2[3], vF2[3]+24)):
        e(f"v_mov_b32 v{r}, 0")
    e(f"s_mov_b32 s{sSlot}, 0")

    def reads2(kk):
        f = vF2[kk]
        out = [f"ds_read_b128 {r4(f)}, v{vA2} offset:{kk*9216}"]
        for nu in range(5):
            out.append(f"ds_read_b128 {r4(f+4+4*nu)}, v{vB2} offset:{kk*9216+nu*1024}")
        return out

    def mfmas2(kk):
        f = vF2[kk]
        return [f"v_mfma_f32_16x16x32_bf16 {r4(vG+4*nu)}, {r4(f+4+4*nu)}, {r4(f)}, {r4(vG+4*nu)}" for nu in range(5)]

    def g2_loop(name, count):
        if count == 0:
            return
        e(f"s_mov_b32 s{sCnt}, 0")
        e(".p2align 3")
        e.label(name)
        e("s_waitcnt lgkmcnt(0)")
        e("s_barrier")
        for half in range(2):
            rd = reads2(2*half) + reads2(2*half+1)
            mm = mfmas2(2*(1-half)) + mfmas2(2*(1-half)+1)
            if half == 1:
                e("s_waitcnt lgkmcnt(6)")
            for x in rd[:2]:
                e(x)
            rd = rd[2:]
            for k, m in enumerate(mm):
                if half == 1 and k == 5:
                    e("s_waitcnt lgkmcnt(7)")
                e(m)
                if rd:
                    e(rd.pop(0))
        e(f"s_mov_b32 s{sD}, {G2S[1]-G2S[0]}")
        e(f"s_cmp_eq_u32 s{sSlot}, 1")
        e(f"s_cselect_b32 s{sD}, {(G2S[2]-G2S[1]) & 0xffffffff:#x}, s{sD}")
        e(f"s_cmp_eq_u32 s{sSlot}, 2")
        e(f"s_cselect_b32 s{sD}, {G2S[0]-G2S[2]}, s{sD}")
        e(f"s_cselect_b32 s{sSlot}, -1, s{sSlot}")
        e(f"s_add_u32 s{sSlot}, s{sSlot}, 1")
        e(f"v_add_u32 v{vA2}, s{sD}, v{vA2}")
        e(f"v_add_u32 v{vB2}, s{sD}, v{vB2}")
        e(f"s_add_u32 s{sCnt}, s{sCnt}, 1")
        e(f"s_cmp_lt_u32 s{sCnt}, {count}")
        e(f"s_cbranch_scc1 {name}")

    def fin_setup():
        e(f"s_lshl_b32 s{sT0}, s{sT64}, 6")
        e(f"s_lshl_b32 s{sT1}, s{sW}, 4")
        e(f"s_add_u32 s{sT0}, s{sT0}, s{sT1}")
        e(f"s_mul_i32 s{sT2}, s{sT0}, 1280")
        e(f"s_mul_i32 s{sT3}, s{sCc}, 160")
        e(f"s_add_u32 s{sT2}, s{sT2}, s{sT3}")
        e(f"s_lshl_b32 s{sA0}, s{sT0}, 2")
        e(f"s_add_u32 s{sA0}, s{sA0}, {RSTD_OFF}")
        e(f"s_mul_i32 s{sT1}, s{sW}, 5376")
        e(f"s_add_u32 s{sT1}, s{sT1}, {OUT_LDS}")
        for r in range(3):
            e(f"v_add_u32 v{vT}, {64*r}, v{vLane}")
            e(f"v_mul_u32_u24 v{vT+1}, 6554, v{vT}")
            e(f"v_lshrrev_b32 v{vT+1}, 16, v{vT+1}")
            e(f"v_mul_u32_u24 v{vT+2}, 10, v{vT+1}")
            e(f"v_sub_u32 v{vT+2}, v{vT}, v{vT+2}")
            e(f"v_mul_u32_u24 v{vT+3}, 1280, v{vT+1}")
            e(f"v_lshl_add_u32 v{vT+3}, v{vT+2}, 4, v{vT+3}")
            e(f"v_add_u32 v{vGo+r}, s{sT2}, v{vT+3}")
            e(f"v_mul_u32_u24 v{vT+3}, 336, v{vT+1}")
            e(f"v_lshl_add_u32 v{vT+3}, v{vT+2}, 5, v{vT+3}")
            e(f"v_add_u32 v{vLr+r}, s{sT1}, v{vT+3}")
            e(f"v_lshlrev_b32 v{vRa+r}, 2, v{vT+1}")
            if r == 2:
                e(f"v_mov_b32 v{vT+4}, {OOB}")
                e(f"v_cmp_gt_u32 vcc, 32, v{vLane}")
                e("s_nop 1")
                e(f"v_cndmask_b32 v{vGo+2}, v{vT+4}, v{vGo+2}, vcc")
                e(f"v_cndmask_b32 v{vRa+2}, v{vT+4}, v{vRa+2}, vcc")
                e(f"v_cndmask_b32 v{vLr+2}, v{vLr}, v{vLr+2}, vcc")
        e(f"v_and_b32 v{vT}, 15, v{vLane}")
        e(f"v_mul_u32_u24 v{vT}, 336, v{vT}")
        e(f"v_lshrrev_b32 v{vT+1}, 4, v{vLane}")
        e(f"v_lshl_add_u32 v{vT}, v{vT+1}, 4, v{vT}")
        e(f"v_add_u32 v{vLw}, s{sT1}, v{vT}")

    def xloads():
        fin_setup()
        for r in range(3):
            e.vmop(f"buffer_load_dwordx4 {r4(vXd+4*r)}, v{vGo+r}, s[{S_X}:{S_X+3}], 0 offen", "x")
            e.vmop(f"buffer_load_dword v{vRs+r}, v{vRa+r}, s[{S_WS}:{S_WS+3}], s{sA0} offen sc1", "x")

    e.stamp("g2_start")
    if KV:
        g2_loop(f"L_C{typ}_g2a", 1)
        e.wait_vm({"hst"})
        e.flag_store(1)
        e.stamp("h_flag")
        g2_loop(f"L_C{typ}_g2b", 7)
        xloads()
        g2_loop(f"L_C{typ}_g2c", 9)
    else:
        g2_loop(f"L_C{typ}_g2a", OST + 1)
        e.stamp("g2_mid")
        OA = 148

        def fr(n):
            return 52 + 4*n
        e(f"v_and_b32 v{vT}, 31, v{vLane}")
        e(f"v_mul_u32_u24 v{vT}, {KVT_P}, v{vT}")
        e(f"v_lshl_add_u32 v{vT}, v{vHi}, 4, v{vT}")
        e(f"v_add_u32 v{vT}, {KVT_LDS}, v{vT}")
        need = [(2, 0), (0, 0), (2, 1), (0, 1), (1, 1), (2, 2), (0, 2), (1, 2), (2, 3), (1, 3), (2, 4), (1, 4)]
        for n, (o, s) in enumerate(need):
            e(f"ds_read_b128 {r4(fr(n))}, v{vT} offset:{o*32*KVT_P+32*s}")
        first = {}
        for n, (o, s) in enumerate(need):
            e(f"s_waitcnt lgkmcnt({11-n})")
            d = f"v[{OA+16*o}:{OA+16*o+15}]"
            e(f"v_mfma_f32_32x32x16_bf16 {d}, {r4(fr(n))}, {r4(PQ+4*s)}, {'0' if o not in first else d}")
            first[o] = 1
        e(f"s_lshr_b32 s{sT0}, s{sG}, 1")
        e(f"s_mul_i32 s{sT0}, s{sT0}, {5*4096}")
        e(f"s_add_u32 s{sT0}, s{sT0}, {48*4096}")
        e(f"s_add_u32 s{sT0}, s{sT0}, s{sACT}")
        e(f"s_and_b32 s{sT1}, s{sG}, 1")
        e(f"s_mul_i32 s{sT2}, s{sT1}, {3*4096}")
        e(f"s_add_u32 s{sT2}, s{sT2}, s{sT0}")
        e(f"s_add_u32 s{sT3}, s{sT2}, 4096")
        e(f"s_lshl_b32 s{sT1}, s{sT1}, 9")
        e(f"s_add_u32 s{sT0}, s{sT0}, s{sT1}")
        e(f"s_add_u32 s{sT0}, s{sT0}, {2*4096}")
        e("s_nop 3")
        F = vT
        for h in range(4):
            e(f"v_add_f32 v{F+h}, {f32bits(1e-6):#x}, v{OA+32+h}")
        for h in range(4):
            e(f"v_rcp_f32 v{F+h}, v{F+h}")
        e("s_nop 0")
        for h in range(4):
            e(f"v_mul_f32 v{F+h}, v{F+h}, v{vSd}")
        e(f"v_cndmask_b32 v{F+4}, v{F}, v{F+1}, s[{sHIm}:{sHIm+1}]")
        e(f"v_cndmask_b32 v{F+5}, v{F+2}, v{F+3}, s[{sHIm}:{sHIm+1}]")
        OP = 196
        k = 0
        dests = [(sT2, 0), (sT2, 512), (sT3, 0), (sT3, 512), (sT0, 0)]
        for o in range(3):
            for q in range(4):
                if o == 2 and q < 2:
                    continue
                C0 = 8*o + 2*q if o < 2 else 16 + 2*(q-2)
                if C0 // 5 == (C0+1) // 5:
                    f = F + C0 // 5
                else:
                    f = F + 4 + (0 if C0 == 4 else 1)
                a = OA + 16*o + 4*q
                for r in range(4):
                    e(f"v_mul_f32 v{a+r}, v{a+r}, v{f}")
                e(f"v_cvt_pk_bf16_f32 v{OP+k}, v{a}, v{a+1}")
                e(f"v_cvt_pk_bf16_f32 v{OP+k+1}, v{a+2}, v{a+3}")
                k += 2
                if k % 4 == 0:
                    sg, off = dests[k//4 - 1]
                    e.vmop(f"buffer_store_dwordx4 {r4(OP+k-4)}, v{vSt}, s[{S_WS}:{S_WS+3}], s{sg} offen offset:{off} sc1", "ost")
        e.stamp("o_stored")
        g2_loop(f"L_C{typ}_g2b", 1)
        e.wait_vm({"ost"})
        e.flag_store(2)
        e.stamp("o_flag")
        xloads()
        g2_loop(f"L_C{typ}_g2c", 17 - OST - 2)
    e("s_waitcnt lgkmcnt(0)")
    for m in mfmas2(2) + mfmas2(3):
        e(m)
    e.stamp("g2_done")
    e("s_nop 7")
    for nu in range(5):
        e(f"ds_write_b128 v{vLw}, {r4(vG+4*nu)} offset:{nu*64}")
    e("s_waitcnt lgkmcnt(0)")
    RB = 160
    for r in range(3):
        for h in range(2):
            e(f"ds_read_b128 {r4(RB+r*8+h*4)}, v{vLr+r} offset:{h*16}")
    e.wait_vm({"x"})
    for r in range(3):
        e(f"s_waitcnt lgkmcnt({2*(2-r)})")
        b = RB + r*8
        o = RB + 24 + 4*r
        for k in range(4):
            xr = vXd + 4*r + k
            e(f"v_lshlrev_b32 v{vT}, 16, v{xr}")
            e(f"v_and_b32 v{vT+1}, s{sHiMask}, v{xr}")
            e(f"v_fma_f32 v{vT}, v{b+2*k}, v{vRs+r}, v{vT}")
            e(f"v_fma_f32 v{vT+1}, v{b+2*k+1}, v{vRs+r}, v{vT+1}")
            e(f"v_cvt_pk_bf16_f32 v{o+k}, v{vT}, v{vT+1}")
        e(f"buffer_store_dwordx4 {r4(o)}, v{vGo+r}, s[{S_OUT}:{S_OUT+3}], 0 offen")
    e.stamp("end")
    e.stamp("end_real", True)
    e.stamp_flush()
    e("s_endpgm")
    return e


class HR:
    vC1 = 30
    vC2 = 32
    vCs = 40
    vOOB = 45
    vR = 57
    vU = 58
    vD = 64
    vXa = 96
    vSx = 100
    vXd = 104
    sTa, sTb = 96, 97


def tile_ids(e, KV, hw, dA, dB):
    e(f"s_lshl_b32 s{dA}, s{hw}, 7")
    if KV:
        e(f"s_add_u32 s{dB}, s{hw}, 5")
        e(f"s_cmp_lt_u32 s{hw}, 2")
        e(f"s_cselect_b32 s{dB}, s{dB}, 4")
    else:
        e(f"s_min_u32 s{dB}, s{hw}, 2")
        e(f"s_add_u32 s{dB}, s{dB}, 4")
    e(f"s_lshl_b32 s{dB}, s{dB}, 7")


def partial_setup(e, KV):
    H = HR
    WB_OFF, IA, IB, tiles = image_cfg(KV)
    vU = H.vU
    lane_parts(e, KV, vU, vU+1, vT)
    e(f"v_mov_b32 v{H.vR}, v{vT}")
    e(f"s_lshl_b32 s{sT0}, s{sW}, {6 if KV else 9}")
    e(f"s_add_u32 s{sT0}, s{sT0}, {WA_OFF}")
    e(f"v_add_u32 v{H.vC1}, s{sT0}, v{vU}")
    e.para()
    if KV:
        e(f"s_cmp_lt_u32 s{sW}, 2")
        e(f"s_cselect_b64 s[94:95], -1, 0")
        e(f"s_lshl_b32 s{sT0}, s{sW}, 9")
        e(f"s_add_u32 s{sT0}, s{sT0}, {WB_OFF}")
        e(f"v_add_u32 v{vU+1}, s{sT0}, v{vU+1}")
        e(f"v_add_u32 v{vU}, {WA_OFF + 256}, v{vU}")
        for kk in range(4):
            e.para()
            for s in range(2):
                e(f"v_add_u32 v{vU+2}, {kk*IA['kk']+s*IA['s']}, v{vU}")
                e(f"v_add_u32 v{vU+3}, {kk*IB['kk']+s*IB['s']}, v{vU+1}")
                e(f"v_cndmask_b32 v{H.vC2+2*kk+s}, v{vU+2}, v{vU+3}, s[94:95]")
    else:
        e(f"s_min_u32 s{sT0}, s{sW}, 2")
        e(f"s_lshl_b32 s{sT0}, s{sT0}, 6")
        e(f"s_add_u32 s{sT0}, s{sT0}, {WB_OFF}")
        e(f"v_add_u32 v{H.vC2}, s{sT0}, v{vU+1}")
    e.para()
    e(f"v_and_b32 v{vT+1}, 31, v{vLane}")
    e(f"v_lshrrev_b32 v{vT+3}, 1, v{vT+1}")
    e(f"v_and_b32 v{vT+3}, 7, v{vT+3}")
    e(f"v_xor_b32 v{vT+3}, v{vT+3}, v{vHi}")
    e(f"v_lshlrev_b32 v{vT+1}, 7, v{vT+1}")
    e(f"s_lshl_b32 s{sT0}, s{sW}, 12")
    e(f"v_add_u32 v{vT+1}, s{sT0}, v{vT+1}")
    for kk in range(4):
        e(f"v_xor_b32 v{vT+4}, {2*kk}, v{vT+3}")
        e(f"v_lshl_add_u32 v{H.vXa+kk}, v{vT+4}, 4, v{vT+1}")
    e.para()
    tile_ids(e, KV, sW, H.sTa, H.sTb)
    e.para()


def partial_reads(KV):
    H = HR
    WB_OFF, IA, IB, tiles = image_cfg(KV)
    rd = [f"ds_read_b128 {r4(H.vXd+4*kk)}, v{H.vXa+kk}" for kk in range(4)]
    for kk in range(4):
        for h in range(2):
            d = H.vD + 4*kk + 2*h
            rd.append(f"ds_read_b64_tr_b16 v[{d}:{d+1}], v{H.vC1} offset:{kk*IA['kk'] + h*IA['s']}")
    for kk in range(4):
        for h in range(2):
            d = H.vD + 16 + 4*kk + 2*h
            if KV:
                rd.append(f"ds_read_b64_tr_b16 v[{d}:{d+1}], v{H.vC2+2*kk+h}")
            else:
                rd.append(f"ds_read_b64_tr_b16 v[{d}:{d+1}], v{H.vC2} offset:{kk*IB['kk'] + h*IB['s']}")
    return rd


def partial_valu():
    H = HR
    vSx, vCs, a = H.vSx, H.vCs, H.vU
    P = [[f"v_mov_b32 v{vSx+r}, 0" for r in range(4)] + [f"v_mov_b32 v{vCs+r}, 0" for r in range(4)]]
    for r in range(0, 16, 2):
        x = H.vXd + r
        P.append([f"v_lshlrev_b32 v{a}, 16, v{x}", f"v_and_b32 v{a+1}, s{sHiMask}, v{x}",
                  f"v_lshlrev_b32 v{a+2}, 16, v{x+1}", f"v_and_b32 v{a+3}, s{sHiMask}, v{x+1}",
                  f"v_add_f32 v{vSx}, v{vSx}, v{a}", f"v_add_f32 v{vSx+1}, v{vSx+1}, v{a+1}",
                  f"v_fmac_f32 v{vSx+2}, v{a}, v{a}", f"v_fmac_f32 v{vSx+3}, v{a+1}, v{a+1}",
                  f"v_add_f32 v{vSx}, v{vSx}, v{a+2}", f"v_add_f32 v{vSx+1}, v{vSx+1}, v{a+3}",
                  f"v_fmac_f32 v{vSx+2}, v{a+2}, v{a+2}", f"v_fmac_f32 v{vSx+3}, v{a+3}, v{a+3}"])
    for r in range(16):
        x, y = H.vD + r, H.vD + 16 + r
        P.append([f"v_lshlrev_b32 v{a}, 16, v{x}", f"v_and_b32 v{a+1}, s{sHiMask}, v{x}",
                  f"v_lshlrev_b32 v{a+2}, 16, v{y}", f"v_and_b32 v{a+3}, s{sHiMask}, v{y}",
                  f"v_add_f32 v{vCs}, v{vCs}, v{a}", f"v_add_f32 v{vCs+1}, v{vCs+1}, v{a+1}",
                  f"v_add_f32 v{vCs+2}, v{vCs+2}, v{a+2}", f"v_add_f32 v{vCs+3}, v{vCs+3}, v{a+3}"])
    cs = (vSx, vSx+1, vCs, vCs+2)
    P.append([f"v_add_f32 v{vSx}, v{vSx}, v{vSx+1}", f"v_add_f32 v{vSx+1}, v{vSx+2}, v{vSx+3}",
              f"v_add_f32 v{vCs}, v{vCs}, v{vCs+1}", f"v_add_f32 v{vCs+2}, v{vCs+2}, v{vCs+3}"] +
             [f"v_mov_b32 v{a+n}, v{c}" for n, c in enumerate(cs)] + ["s_nop 1"] +
             [f"v_permlane32_swap_b32 v{c}, v{a+n}" for n, c in enumerate(cs)] + ["s_nop 1"] +
             [f"v_add_f32 v{c}, v{c}, v{a+n}" for n, c in enumerate(cs)] +
             [f"v_max_u32 v{c}, 1, v{c}" for c in cs])
    return P


def partial_publish(e):
    H = HR
    vU = H.vU
    slot_offsets(e, sT0, sT3)
    e(f"s_lshl_b32 s{sT1}, s{sW}, 8")
    e(f"s_add_u32 s{sT0}, s{sT0}, s{sT1}")
    e(f"v_lshlrev_b32 v{vU}, 1, v{vL31x4}")
    e(f"v_cndmask_b32 v{vU}, v{vU}, v{H.vOOB}, s[{sHIm}:{sHIm+1}]")
    e(f"v_cndmask_b32 v{vU+1}, v{vL31x4}, v{H.vOOB}, s[{sHIm}:{sHIm+1}]")
    e.vmop(f"buffer_store_dwordx2 v[{H.vSx}:{H.vSx+1}], v{vU}, s[{S_WS}:{S_WS+3}], s{sT0} offen sc1", "pp")
    e(f"s_add_u32 s{sT1}, s{sT3}, s{H.sTa}")
    e(f"s_add_u32 s{sT2}, s{sT3}, s{H.sTb}")
    e.vmop(f"buffer_store_dword v{H.vCs}, v{vU+1}, s[{S_WS}:{S_WS+3}], s{sT1} offen sc1", "pp")
    e.vmop(f"buffer_store_dword v{H.vCs+2}, v{vU+1}, s[{S_WS}:{S_WS+3}], s{sT2} offen sc1", "pp")


def loader_path(typ):
    KV = typ == "KV"
    e = Em("L" + typ)
    H = HR
    WB_OFF, IA, IB, tiles = image_cfg(KV)
    vXsrc = 18
    vWsrcA = 22
    vWsrcB = 27
    vOOB = H.vOOB
    vL16c = 46
    sX2, sA2, sB2 = 77, 78, 48
    sCa, sCb, sR2, sR3 = 47, 50, 51, 56
    sL2 = 57
    sHW = 49
    nA, nB = (5, 2) if KV else (4, 3)
    pA, pB = (3840, 3072) if KV else (3072, 3840)
    lA, lB = (5120, 2048) if KV else (4096, 3072)

    e.label(f"L_L{typ}")
    e.stamp("start_real", True)
    e.stamp("start")
    e(f"v_lshrrev_b32 v{vT}, 3, v{vLane}")
    e(f"v_and_b32 v{vT+1}, 7, v{vLane}")
    e(f"v_lshrrev_b32 v{vT+2}, 1, v{vT}")
    e(f"v_xor_b32 v{vT+1}, v{vT+1}, v{vT+2}")
    e(f"v_xor_b32 v{vT+2}, 4, v{vT+1}")
    e(f"v_mul_u32_u24 v{vT}, 1280, v{vT}")
    e(f"v_lshl_add_u32 v{vXsrc}, v{vT+1}, 4, v{vT}")
    e(f"v_lshl_add_u32 v{vXsrc+1}, v{vT+2}, 4, v{vT}")
    e(f"v_add_u32 v{vXsrc+1}, {8*1280}, v{vXsrc+1}")
    e(f"v_add_u32 v{vXsrc+2}, {16*1280}, v{vXsrc}")
    e(f"v_add_u32 v{vXsrc+3}, {16*1280}, v{vXsrc+1}")
    e(f"s_lshl_b32 s{sT3}, s{sW}, 1")
    e(f"s_lshl_b32 s{sT0}, s{sI}, 2")
    e(f"s_add_u32 s{sT0}, s{sT0}, s{sT3}")
    e(f"s_mul_i32 s{sXoff}, s{sT0}, {32*1280}")
    e(f"s_add_u32 s{sXlim}, s{sXoff}, 1280")
    e(f"s_lshl_b32 s{sT0}, s{sRot}, 7")
    e(f"s_add_u32 s{sXoff}, s{sXoff}, s{sT0}")
    e(f"s_lshl_b32 s{sLx}, s{sT3}, 12")
    e(f"s_lshl_b32 s{sT1}, s{sRot}, 2")
    e(f"s_add_u32 s{sT1}, s{sT1}, s{sT3}")
    e(f"s_mul_i32 s{sWoffA}, s{sT1}, {16*pA}")
    e(f"s_mul_i32 s{sWoffB}, s{sT1}, {16*pB}")
    e(f"s_mul_i32 s{sLa}, s{sT3}, {lA}")
    e(f"s_mul_i32 s{sLb}, s{sT3}, {lB}")
    e(f"s_add_u32 s{sX2}, s{sXoff}, {32*1280}")
    e(f"s_add_u32 s{sA2}, s{sWoffA}, {16*pA}")
    e(f"v_mov_b32 v{vOOB}, {OOB}")

    def rowmajor_src(dst, n, div, magic, pitch, kind):
        for u in range(n):
            e(f"v_add_u32 v{vT}, {64*u}, v{vLane}")
            e(f"v_mul_u32_u24 v{vT+1}, {magic}, v{vT}")
            e(f"v_lshrrev_b32 v{vT+1}, 16, v{vT+1}")
            e(f"v_mul_u32_u24 v{vT+2}, {div}, v{vT+1}")
            e(f"v_sub_u32 v{vT+2}, v{vT}, v{vT+2}")
            e(f"v_cmp_lt_u32 vcc, 9, v{vT+2}")
            e(f"v_mul_u32_u24 v{vT+1}, {pitch}, v{vT+1}")
            e(f"v_lshl_add_u32 v{vT+1}, v{vT+2}, 4, v{vT+1}")
            if kind == "kv":
                e(f"v_cndmask_b32 v{vT+3}, v{vT+6}, v{vT+4}, vcc")
                e(f"v_cmp_lt_u32 vcc, 11, v{vT+2}")
                e(f"v_add_u32 v{vT+1}, s{sT0}, v{vT+1}")
                e(f"s_nop 0")
                e(f"v_cndmask_b32 v{vT+3}, v{vT+3}, v{vT+5}, vcc")
                e(f"v_add_u32 v{dst+u}, v{vT+1}, v{vT+3}")
            else:
                e(f"v_add_u32 v{vT+1}, s{sT0}, v{vT+1}")
                e(f"v_cndmask_b32 v{dst+u}, v{vT+1}, v{vOOB}, vcc")

    def block_base():
        e(f"v_lshrrev_b32 v{vT}, 2, v{vLane}")
        e(f"v_and_b32 v{vT}, 7, v{vT}")
        e(f"v_mul_u32_u24 v{vT}, 3072, v{vT}")
        e(f"v_and_b32 v{vT+1}, 3, v{vLane}")
        e(f"v_lshl_add_u32 v{vT}, v{vT+1}, 4, v{vT}")
        e(f"v_lshl_add_u32 v{vT}, v{vHi}, 6, v{vT}")

    if KV:
        block_base()
        e(f"s_mul_i32 s{sT0}, s{sG}, 384")
        e(f"v_add_u32 v{vWsrcB}, s{sT0}, v{vT}")
        e(f"v_add_u32 v{vWsrcB+1}, {8*3072}, v{vWsrcB}")
        e(f"s_mul_i32 s{sT0}, s{sG}, 160")
        e(f"v_mov_b32 v{vT+4}, 2528")
        e(f"v_mov_b32 v{vT+5}, 2368")
        e(f"v_mov_b32 v{vT+6}, 1280")
        rowmajor_src(vWsrcA, 5, 20, 3277, 3840, "kv")
    else:
        block_base()
        e(f"s_mul_i32 s{sT0}, s{sG}, 384")
        e(f"s_add_u32 s{sT0}, s{sT0}, 128")
        e(f"v_add_u32 v{vWsrcA}, s{sT0}, v{vT}")
        e(f"v_add_u32 v{vWsrcA+1}, 128, v{vWsrcA}")
        e(f"v_add_u32 v{vWsrcA+2}, {8*3072}, v{vWsrcA}")
        e(f"v_add_u32 v{vWsrcA+3}, {8*3072+128}, v{vWsrcA}")
        e(f"s_mul_i32 s{sT0}, s{sG}, 160")
        rowmajor_src(vWsrcB, 3, 12, 5462, 3840, "q")
    e("s_waitcnt lgkmcnt(0)")
    e.srds(["X", "WQKV", "W1", "WS"])
    e(f"s_add_u32 s{sB2}, s{sWoffB}, {16*pB}")
    SW_A = S_WQKV if KV else S_W1
    SW_B = S_W1 if KV else S_WQKV
    stepA, stepB = 64*pA, 64*pB

    def g1_dmas(s):
        if s >= 20:
            return []
        base = (s % 3) * SLOT1
        g = []
        for k in range(2):
            for b in range(4):
                g.append([f"s_add_u32 m0, s{sLx}, {base + k*4096 + b*1024}", "s_nop 0",
                          (f"buffer_load_dwordx4 v{vXsrc+b}, s[{S_X}:{S_X+3}], s{[sXoff, sX2][k]} offen lds", ("st", s))])
            if s < 10:
                for u in range(nA):
                    g.append([f"s_add_u32 m0, s{sLa}, {base + WA_OFF + k*lA + u*1024}", "s_nop 0",
                              (f"buffer_load_dwordx4 v{vWsrcA+u}, s[{SW_A}:{SW_A+3}], s{[sWoffA, sA2][k]} offen lds", ("st", s))])
            if s == 0 or s >= 10:
                for u in range(nB):
                    g.append([f"s_add_u32 m0, s{sLb}, {base + WB_OFF + k*lB + u*1024}", "s_nop 0",
                              (f"buffer_load_dwordx4 v{vWsrcB+u}, s[{SW_B}:{SW_B+3}], s{[sWoffB, sB2][k]} offen lds", ("st", s))])
        so, s2, st, p = (sWoffA, sA2, stepA, pA) if s < 10 else (sWoffB, sB2, stepB, pB)
        g[-1] = g[-1] + [
            f"s_add_u32 s{sXoff}, s{sXoff}, 128", f"s_add_u32 s{so}, s{so}, {st}",
            f"s_cmp_ge_u32 s{sXoff}, s{sXlim}", f"s_cselect_b32 s{sTw}, 1280, 0", f"s_sub_u32 s{sXoff}, s{sXoff}, s{sTw}",
            f"s_cmp_ge_u32 s{so}, {10*st}", f"s_cselect_b32 s{sTw}, {10*st}, 0", f"s_sub_u32 s{so}, s{so}, s{sTw}",
            f"s_add_u32 s{sX2}, s{sXoff}, {32*1280}", f"s_add_u32 s{s2}, s{so}, {16*p}"]
        return g

    e.capture()
    partial_setup(e, KV)
    e(f"s_lshl_b32 s{sT3}, s{sW}, 1")
    e(f"s_mul_i32 s{sA0}, s{sT64}, 68")
    e(f"s_add_u32 s{sA0}, s{sA0}, s{sT3}")
    e(f"s_lshl_b32 s{sA0}, s{sA0}, 12")
    e(f"s_mul_i32 s{sB0}, s{sCc}, 68")
    e(f"s_add_u32 s{sB0}, s{sB0}, s{sT3}")
    e(f"s_mul_i32 s{sB0}, s{sB0}, 5120")
    e(f"s_add_u32 s{sB0}, s{sB0}, {W2R_OFF}")
    e(f"s_mul_i32 s{sL2}, s{sT3}, 9216")
    e.para()
    if ROT2:
        e(f"s_and_b32 s{sT0}, s{sT64}, 3")
        e(f"s_lshl_b32 s{sT1}, s{sT0}, 1")
        e(f"s_add_u32 s{sCa}, s{sCc}, s{sT1}")
        e(f"s_and_b32 s{sCa}, s{sCa}, 7")
        e(f"s_add_u32 s{sR3}, s{sCc}, s{sT0}")
        e(f"s_and_b32 s{sR2}, s{sR3}, 3")
        for _ in range(2):
            e(f"s_sub_u32 s{sT2}, s{sR3}, 5")
            e(f"s_cmp_ge_u32 s{sR3}, 5")
            e(f"s_cselect_b32 s{sR3}, s{sT2}, s{sR3}")
    else:
        e(f"s_mov_b32 s{sCa}, 0")
        e(f"s_mov_b32 s{sR2}, 0")
        e(f"s_mov_b32 s{sR3}, 0")
    e(f"s_mov_b32 s{sCb}, s{sCa}")
    e(f"s_add_u32 s{sR2}, s{sR2}, 8")
    e(f"s_add_u32 s{sR3}, s{sR3}, 12")
    setup = e.end_capture()
    d0 = g1_dmas(0)
    e.op(d0[:10])
    e.merge(d0[10:], setup)
    e.stamp("st0_issued")
    e.op(g1_dmas(1))
    e.stamp("st1_issued")

    def cursor(cur, s):
        if s == 7:
            return [f"s_mov_b32 s{cur}, s{sR2}"]
        if s == 11:
            return [f"s_mov_b32 s{cur}, s{sR3}"]
        lim, lo = (8, 0) if s < 7 else ((12, 8) if s < 11 else (17, 12))
        return [f"s_add_u32 s{cur}, s{cur}, 1", f"s_cmp_eq_u32 s{cur}, {lim}", f"s_cselect_b32 s{cur}, {lo}, s{cur}"]

    def a_dmas(s):
        base = G2S[s % 3]
        g = [f"s_lshl_b32 s{sA}, s{sCa}, 14", f"s_add_u32 s{sA}, s{sA}, s{sA0}"]
        for k in range(2):
            g += [f"s_add_u32 m0, s{sL2}, {base + k*9216}", "s_nop 0"]
            for m in range(4):
                g.append((f"buffer_load_dwordx4 v{[vL16, vL16b][k]}, s[{S_WS}:{S_WS+3}], s{sA} offen offset:{1024*m} sc1 lds", ("g2", s)))
        return g + cursor(sCa, s)

    def b_dmas(s):
        base = G2S[s % 3] + 4096
        g = [f"s_mul_i32 s{sB}, s{sCb}, {4*5120}", f"s_add_u32 s{sB}, s{sB}, s{sB0}"]
        for k in range(2):
            g += [f"s_add_u32 m0, s{sL2}, {base + k*9216}", "s_nop 0"]
            for nu in range(4):
                g.append((f"buffer_load_dwordx4 v{vL16}, s[{S_WS}:{S_WS+3}], s{sB} offen offset:{1024*nu} sc1 lds", ("g2", s)))
            g += [f"s_add_u32 m0, s{sL2}, {base + k*9216 + 4096}", "s_nop 0",
                  (f"buffer_load_dwordx4 v{vL16b}, s[{S_WS}:{S_WS+3}], s{sB} offen sc1 lds", ("g2", s))]
            if k == 0:
                g.append(f"s_add_u32 s{sB}, s{sB}, 5120")
        return g + cursor(sCb, s)

    PV = partial_valu()
    n2 = len(PV) // 2
    for s in range(20):
        e.c(f"--- G1 stage {s} ---")
        e.wait_vm({("st", s)}, lgkm=0)
        e("s_barrier")
        if STAMP or DBGS:
            e.stamp(f"B{s}")
        dm = g1_dmas(s + 2) if s != 10 else []
        va = []
        if s == 0:
            for x in partial_reads(KV):
                e(x)
            e.op(dm.pop(0))
            e.op(dm.pop(0))
            e("s_waitcnt lgkmcnt(0)")
            va = PV[:n2]
        if s == 1:
            va = PV[n2:]
        e.merge(dm, va)
        if s == 1:
            partial_publish(e)
        if s == 9:
            e("s_barrier")
            e.stamp("E1")
            e.op(g1_dmas(12))
        if s == 18:
            e.op(a_dmas(0))
            e.op(b_dmas(0))
        if s == 19:
            e.op(a_dmas(1))
    e("s_barrier")
    e.stamp("E3")
    e.op(b_dmas(1))
    e.op(a_dmas(2))
    e.op(b_dmas(2))
    for s in range(17):
        e.c(f"--- G2 stage {s} ---")
        e.wait_vm({("g2", s)})
        e("s_barrier")
        if STAMP or DBGS:
            e.stamp(f"G{s}")
        n = s + 2
        if s >= 1 and n < 17:
            e.op(a_dmas(n))
            e.op(b_dmas(n))
    e.stamp("end")
    e.stamp("end_real", True)
    e.stamp_flush()
    e("s_endpgm")
    return e


def service_path(typ):
    KV = typ == "KV"
    e = Em("S" + typ)
    H = HR
    vOOB, vU, vD = H.vOOB, H.vU, H.vD
    vOne, vThree = 46, 31
    vPRa, vPQa, vPVa, vPKa, vInA = 47, 48, 49, 50, 51
    vN16_1, vN16_2, vN32_2, vInN = 52, 53, 54, 55
    vTid = 56
    vN32_3 = 44
    vRs = 120
    vRPa = 130
    vPL = 132
    KA = 136
    vRD = 160
    vP2 = 200
    sSW = 49
    sRd = [77, 78]
    S_RP2 = 12
    sP = [[44, 45, 46], [47, 50, 51]]
    sTi = [[60, 61], [62, 63]]

    e.label(f"L_S{typ}")
    e.stamp("start_real", True)
    e.stamp("start")
    e(f"v_mov_b32 v{vOOB}, {OOB}")
    e(f"s_sub_u32 s{sD}, s{sW}, 2")
    partial_setup(e, KV)
    e(f"s_sub_u32 s{sTw}, s{sW}, 2")
    e("s_waitcnt lgkmcnt(0)")
    e.srds(["WS", "DBG"])
    for n in range(2):
        srd = [S_RP, S_RP2][n]
        e(f"s_lshl_b32 s{sT1}, s{sTw}, 5")
        e(f"s_add_u32 s{sT1}, s{sT1}, s{sT64}")
        if n:
            e(f"s_add_u32 s{sT1}, s{sT1}, 64")
        e(f"s_sub_u32 s76, s{sT1}, 48")
        e(f"s_mul_i32 s60, s76, 13108")
        e(f"s_lshr_b32 s60, s60, 16")
        e(f"s_mul_i32 s61, s60, 5")
        e(f"s_sub_u32 s61, s76, s61")
        e(f"s_lshl_b32 s79, s61, 1")
        e(f"s_cmp_lt_u32 s61, 3")
        e(f"s_cselect_b32 s{sT2}, 0, 1")
        e(f"s_sub_u32 s79, s79, s{sT2}")
        e(f"s_add_u32 s{sT2}, s79, 1")
        e(f"s_cmp_eq_u32 s61, 2")
        e(f"s_cselect_b32 s{sT2}, 9, s{sT2}")
        e(f"s_mul_i32 s60, s60, 10")
        e(f"s_add_u32 s79, s79, s60")
        e(f"s_add_u32 s{sT2}, s{sT2}, s60")
        e(f"s_lshr_b32 s76, s{sT1}, 2")
        e(f"s_mul_i32 s76, s76, 12")
        e(f"s_and_b32 s60, s{sT1}, 3")
        e(f"s_lshl_b32 s60, s60, 1")
        e(f"s_add_u32 s76, s76, s60")
        e(f"s_add_u32 s76, s76, 4")
        e(f"s_sub_u32 s60, s{sT1}, 32")
        e(f"s_lshr_b32 s60, s60, 1")
        e(f"s_mul_i32 s60, s60, 12")
        e(f"s_and_b32 s61, s{sT1}, 1")
        e(f"s_lshl_b32 s61, s61, 1")
        e(f"s_add_u32 s60, s60, s61")
        e(f"s_cmp_lt_u32 s{sT1}, 32")
        e(f"s_cselect_b32 s76, s76, s60")
        e(f"s_add_u32 s60, s76, 1")
        e(f"s_cmp_lt_u32 s{sT1}, 48")
        e(f"s_cselect_b32 s79, s76, s79")
        e(f"s_cselect_b32 s{sT2}, s60, s{sT2}")
        e(f"s_cselect_b32 s{srd}, s54, s48")
        e(f"s_cselect_b32 s{srd+1}, s55, s49")
        e(f"s_mov_b32 s{srd+2}, {640*1280}")
        e(f"s_cselect_b32 s{srd+2}, {1536*1280}, s{srd+2}")
        e(f"s_mov_b32 s{srd+3}, 0x00020000")
        e(f"s_mul_i32 s76, s{sCc}, 160")
        e(f"s_mul_i32 s79, s79, {16*1280}")
        e(f"s_mul_i32 s{sT2}, s{sT2}, {16*1280}")
        e(f"s_sub_u32 s{sT2}, s{sT2}, {16*1280}")
        e(f"s_add_u32 s79, s79, s76")
        e(f"s_add_u32 s{sT2}, s{sT2}, s76")
        e(f"s_mul_i32 s{sRd[n]}, s{sCc}, 68")
        e(f"s_add_u32 s{sRd[n]}, s{sRd[n]}, s{sT1}")
        e(f"s_mul_i32 s{sRd[n]}, s{sRd[n]}, 5120")
        e(f"s_add_u32 s{sRd[n]}, s{sRd[n]}, {W2R_OFF}")
        e(f"s_cmp_lt_u32 s{sT1}, 68")
        e(f"s_cselect_b32 s79, s79, {OOB}")
        e(f"s_cselect_b32 s{sT2}, s{sT2}, {OOB}")
        e(f"s_cselect_b32 s{sRd[n]}, s{sRd[n]}, {OOB}")
        e(f"v_mov_b32 v{vT+3}, s79")
        e(f"v_mov_b32 v{vT+4}, s{sT2}")
        for u in range(5):
            e(f"v_add_u32 v{vU}, {64*u}, v{vLane}")
            e(f"v_mul_u32_u24 v{vT+1}, 6554, v{vU}")
            e(f"v_lshrrev_b32 v{vT+1}, 16, v{vT+1}")
            e(f"v_mul_u32_u24 v{vT+2}, 10, v{vT+1}")
            e(f"v_sub_u32 v{vT+2}, v{vU}, v{vT+2}")
            e(f"v_cmp_lt_u32 vcc, 15, v{vT+1}")
            e(f"v_mul_u32_u24 v{vT+1}, 1280, v{vT+1}")
            e(f"v_lshl_add_u32 v{vT+1}, v{vT+2}, 4, v{vT+1}")
            e(f"v_cndmask_b32 v{vT+5}, v{vT+3}, v{vT+4}, vcc")
            e(f"v_add_u32 v{vRs+5*n+u}, v{vT+1}, v{vT+5}")
    e(f"s_mov_b32 s{sSW}, s{sTw}")
    e(f"s_mul_i32 s{sLx}, s{sSW}, 10240")
    e(f"s_add_u32 s{sLa}, s{sLx}, {RP_LDS}")
    e(f"v_lshrrev_b32 v{vU}, 4, v{vLane}")
    e(f"v_and_b32 v{vU}, 1, v{vU}")
    e(f"v_lshl_add_u32 v{vU}, v{vU}, 2, v{H.vR}")
    e(f"v_lshl_add_u32 v{vU}, v{vHi}, 4, v{vU}")
    e(f"v_mul_u32_u24 v{vU}, 160, v{vU}")
    e(f"v_and_b32 v{vT+1}, 3, v{vLane}")
    e(f"v_lshl_add_u32 v{vU}, v{vT+1}, 3, v{vU}")
    e(f"v_add_u32 v{vRPa}, s{sLa}, v{vU}")
    e(f"v_subrev_u32 v{vTid}, 384, v0")
    e(f"v_mov_b32 v{vOne}, 1")
    e(f"v_mov_b32 v{vThree}, 3")
    e(f"v_cmp_gt_u32 vcc, 2, v{vTid}")
    e(f"v_lshlrev_b32 v{vT+1}, 7, v{vLane}")
    e(f"v_mov_b32 v{vT+3}, 128")
    e(f"v_cndmask_b32 v{vInA}, v{vOOB}, v{vT+1}, vcc")
    e(f"v_cndmask_b32 v{vInN}, 0, v{vT+3}, vcc")
    e(f"s_lshr_b32 s{sT0}, s{sT64}, 1")
    e(f"s_lshl_b32 s{sT0}, s{sT0}, 11")
    e(f"s_and_b32 s{sT1}, s{sT64}, 1")
    e(f"s_lshl_b32 s{sT1}, s{sT1}, 5")
    e(f"s_add_u32 s{sT0}, s{sT0}, s{sT1}")
    e(f"s_add_u32 s{sT0}, s{sT0}, {FLG_OFF}")
    e(f"v_lshrrev_b32 v{vT+1}, 1, v{vLane}")
    e(f"v_and_b32 v{vT+3}, 1, v{vLane}")
    e(f"v_lshlrev_b32 v{vT+3}, 4, v{vT+3}")
    e(f"v_add_u32 v{vT+3}, s{sT0}, v{vT+3}")
    e(f"v_lshl_add_u32 v{vT+4}, v{vT+1}, 8, v{vT+3}")
    e(f"v_add_u32 v{vT+5}, 128, v{vT+4}")
    e(f"v_cmp_gt_u32 vcc, 16, v{vTid}")
    e(f"v_mov_b32 v{vT+3}, 2")
    e("s_nop 0")
    e(f"v_cndmask_b32 v{vPVa}, v{vOOB}, v{vT+4}, vcc")
    e(f"v_cndmask_b32 v{vPQa}, v{vOOB}, v{vT+5}, vcc")
    e(f"v_cndmask_b32 v{vN16_1}, 0, v{vOne}, vcc")
    e(f"v_cndmask_b32 v{vN16_2}, 0, v{vT+3}, vcc")
    e(f"s_lshr_b32 s{sT0}, s{sCc}, 1")
    e(f"s_lshl_b32 s{sT0}, s{sT0}, 7")
    e(f"s_and_b32 s{sT1}, s{sCc}, 1")
    e(f"s_lshl_b32 s{sT1}, s{sT1}, 13")
    e(f"s_add_u32 s{sT0}, s{sT0}, s{sT1}")
    e(f"s_add_u32 s{sT0}, s{sT0}, {FLG_OFF + 96}")
    e(f"v_and_b32 v{vT+1}, 3, v{vLane}")
    e(f"v_lshlrev_b32 v{vT+1}, 11, v{vT+1}")
    e(f"v_and_b32 v{vT+4}, 4, v{vLane}")
    e(f"v_lshl_add_u32 v{vT+1}, v{vT+4}, 12, v{vT+1}")
    e(f"v_and_b32 v{vT+4}, 24, v{vLane}")
    e(f"v_lshl_add_u32 v{vT+1}, v{vT+4}, 6, v{vT+1}")
    e(f"v_add_u32 v{vT+1}, s{sT0}, v{vT+1}")
    e(f"v_cmp_gt_u32 vcc, 32, v{vTid}")
    e("s_nop 1")
    e(f"v_cndmask_b32 v{vPRa}, v{vOOB}, v{vT+1}, vcc")
    e(f"v_cndmask_b32 v{vN32_2}, 0, v{vT+3}, vcc")
    e(f"v_mul_u32_u24 v{vU}, 5120, v{vHi}")
    e(f"v_lshl_add_u32 v{vPL+1}, v{vL31x4}, 1, v{vU}")
    e(f"v_add_u32 v{vPL}, v{vL31x4}, v{vU}")
    e(f"v_add_u32 v{vPL+2}, 4096, v{vPL}")
    e(f"v_add_u32 v{vPL+3}, 4096, v{vPL+1}")
    for n in range(2):
        e(f"s_lshl_b32 s{sT3}, s{sSW}, 1")
        e(f"s_add_u32 s{sT3}, s{sT3}, {n}")
        tile_ids(e, KV, sT3, sTi[n][0], sTi[n][1])
        e(f"s_mul_i32 s{sP[n][0]}, s{sI}, 10240")
        e(f"s_lshl_b32 s{sT1}, s{sT3}, 8")
        e(f"s_add_u32 s{sP[n][0]}, s{sP[n][0]}, s{sT1}")
        e(f"s_add_u32 s{sP[n][0]}, s{sP[n][0]}, {STP_OFF}")
        e(f"s_mul_i32 s{sP[n][1]}, s{sJ}, 10240")
        e(f"s_add_u32 s{sP[n][1]}, s{sP[n][1]}, {CSP_OFF}")
        e(f"s_add_u32 s{sP[n][2]}, s{sP[n][1]}, s{sTi[n][1]}")
        e(f"s_add_u32 s{sP[n][1]}, s{sP[n][1]}, s{sTi[n][0]}")
    if not KV:
        e(f"s_lshl_b32 s{sT0}, s{sG}, 8")
        e(f"s_add_u32 s{sT0}, s{sT0}, {FLG_OFF + 96}")
        e(f"v_lshrrev_b32 v{vT+1}, 1, v{vLane}")
        e(f"v_lshlrev_b32 v{vT+1}, 11, v{vT+1}")
        e(f"v_and_b32 v{vT+3}, 1, v{vLane}")
        e(f"v_lshl_add_u32 v{vT+1}, v{vT+3}, 4, v{vT+1}")
        e(f"v_add_u32 v{vT+1}, s{sT0}, v{vT+1}")
        e(f"v_cndmask_b32 v{vPKa}, v{vT+1}, v{vOOB}, s[{sHIm}:{sHIm+1}]")
        e(f"v_cndmask_b32 v{vN32_3}, v{vThree}, 0, s[{sHIm}:{sHIm+1}]")
        for rnd in range(4):
            A1 = KA + 2*rnd
            A2 = A1 + 1
            e(f"v_add_u32 v{vT}, {128*rnd}, v{vTid}")
            e(f"v_mul_u32_u24 v{vT+1}, 3121, v{vT}")
            e(f"v_lshrrev_b32 v{vT+1}, 16, v{vT+1}")
            e(f"v_mul_u32_u24 v{vT+2}, 21, v{vT+1}")
            e(f"v_sub_u32 v{vT+2}, v{vT}, v{vT+2}")
            e(f"v_mul_u32_u24 v{vT+3}, 13108, v{vT+1}")
            e(f"v_lshrrev_b32 v{vT+3}, 16, v{vT+3}")
            e(f"v_mul_u32_u24 v{vT+4}, 20, v{vT+3}")
            e(f"v_add_u32 v{vT+4}, v{vT+4}, v{vT+2}")
            e(f"v_add_u32 v{vT+5}, 16, v{vT+4}")
            e(f"v_cmp_lt_u32 vcc, 63, v{vT+4}")
            e(f"v_add_u32 v{vT+3}, 64, v{vT+3}")
            e(f"v_lshlrev_b32 v{KA+8+rnd}, 4, v{vT}")
            e(f"v_cndmask_b32 v{vT+4}, v{vT+4}, v{vT+5}, vcc")
            e(f"v_cmp_eq_u32 vcc, 20, v{vT+2}")
            e(f"v_add_u32 v{vT+5}, 4, v{vT+3}")
            e("s_nop 0")
            e(f"v_cndmask_b32 v{vT+5}, v{vT+4}, v{vT+5}, vcc")
            e(f"v_cndmask_b32 v{vT+4}, v{vT+4}, v{vT+3}, vcc")
            e(f"v_lshrrev_b32 v{vT+2}, 2, v{vT+1}")
            e(f"v_lshlrev_b32 v{vT+2}, 5, v{vT+2}")
            e(f"v_and_b32 v{vT+3}, 1, v{vT+1}")
            e(f"v_lshl_add_u32 v{vT+2}, v{vT+3}, 4, v{vT+2}")
            e(f"v_and_b32 v{vT+3}, 2, v{vT+1}")
            e(f"v_lshl_add_u32 v{vT+2}, v{vT+3}, 2, v{vT+2}")
            e(f"v_add_u32 v{vT+2}, {KVT_LDS}, v{vT+2}")
            e(f"v_mad_u32_u24 v{A1}, v{vT+4}, s{sKVTP}, v{vT+2}")
            e(f"v_mad_u32_u24 v{A2}, v{vT+5}, s{sKVTP}, v{vT+2}")
        e(f"v_mov_b32 v{vT}, {KVT_LDS + 100*KVT_P}")
        e(f"v_cmp_gt_u32 vcc, 36, v{vTid}")
        e("s_nop 1")
        e(f"v_cndmask_b32 v{KA+6}, v{vT}, v{KA+6}, vcc")
        e(f"v_cndmask_b32 v{KA+7}, v{vT}, v{KA+7}, vcc")
        e(f"v_cndmask_b32 v{KA+11}, v{vOOB}, v{KA+11}, vcc")
    e.stamp("setup_done")

    def partial_loads(track):
        for n in range(2):
            D = vD + 24*n
            for k in range(5):
                vs, vc, off = (vPL+1, vPL, f" offset:{k*1024}") if k < 4 else (vPL+3, vPL+2, "")
                for ins in (f"buffer_load_dwordx2 v[{D+2*k}:{D+2*k+1}], v{vs}, s[{S_WS}:{S_WS+3}], s{sP[n][0]} offen{off} sc1",
                            f"buffer_load_dword v{D+10+k}, v{vc}, s[{S_WS}:{S_WS+3}], s{sP[n][1]} offen{off} sc1",
                            f"buffer_load_dword v{D+15+k}, v{vc}, s[{S_WS}:{S_WS+3}], s{sP[n][2]} offen{off} sc1"):
                    if track:
                        e.vmop(ins, "pl")
                    else:
                        e(ins)

    def partial_validate():
        regs = list(range(vD, vD+20)) + list(range(vD+24, vD+44))
        e.wait_vm({"pl"})
        e(f"s_mov_b32 s{sSpin}, 0")
        e.label(f"L_pv{typ}")
        e(f"v_min_u32 v{vU}, v{regs[0]}, v{regs[1]}")
        e(f"v_min_u32 v{vU+1}, v{regs[2]}, v{regs[3]}")
        for k in range(4, 40, 4):
            e(f"v_min3_u32 v{vU}, v{vU}, v{regs[k]}, v{regs[k+1]}")
            e(f"v_min3_u32 v{vU+1}, v{vU+1}, v{regs[k+2]}, v{regs[k+3]}")
        e(f"v_min_u32 v{vU}, v{vU}, v{vU+1}")
        e(f"v_cmp_eq_u32 vcc, 0, v{vU}")
        e(f"s_add_u32 s{sSpin}, s{sSpin}, 1")
        e(f"s_cmp_lt_u32 s{sSpin}, 0x20000")
        e(f"s_cselect_b64 s[94:95], -1, 0")
        e(f"s_and_b64 vcc, vcc, s[94:95]")
        e(f"s_cbranch_vccz L_pvok{typ}")
        e("s_sleep 2")
        partial_loads(False)
        e("s_waitcnt vmcnt(0)")
        e(f"s_branch L_pv{typ}")
        e.label(f"L_pvok{typ}")

    def partial_finish(n):
        D = vD + 24*n
        for k in range(1, 5):
            e(f"v_add_f32 v{D}, v{D}, v{D+2*k}")
            e(f"v_add_f32 v{D+1}, v{D+1}, v{D+2*k+1}")
            e(f"v_add_f32 v{D+10}, v{D+10}, v{D+10+k}")
            e(f"v_add_f32 v{D+15}, v{D+15}, v{D+15+k}")
        cs = (D, D+1, D+10, D+15)
        for k, c in enumerate(cs):
            e(f"v_mov_b32 v{vU+k}, v{c}")
        e("s_nop 1")
        for k, c in enumerate(cs):
            e(f"v_permlane32_swap_b32 v{c}, v{vU+k}")
        e("s_nop 1")
        for k, c in enumerate(cs):
            e(f"v_add_f32 v{c}, v{c}, v{vU+k}")
        O = D + 4
        e(f"v_mul_f32 v{vT+5}, {f32bits(1.0/640):#x}, v{D}")
        e(f"v_mul_f32 v{vT+4}, {f32bits(1.0/640):#x}, v{D+1}")
        e(f"v_fma_f32 v{vT+4}, -v{vT+5}, v{vT+5}, v{vT+4}")
        e(f"v_max_f32 v{vT+4}, 0, v{vT+4}")
        e(f"v_cvt_pk_bf16_f32 v{vT+2}, v{vT+5}, v{vT+4}")
        e(f"v_lshlrev_b32 v{vT+3}, 16, v{vT+2}")
        e(f"v_and_b32 v{vT+4}, s{sHiMask}, v{vT+2}")
        e(f"v_add_f32 v{vT+4}, {f32bits(1e-5):#x}, v{vT+4}")
        e(f"v_cvt_pk_bf16_f32 v{vT+4}, v{vT+4}, v{vT+4}")
        e(f"v_and_b32 v{vT+4}, s{sHiMask}, v{vT+4}")
        e(f"v_sqrt_f32 v{vT+4}, v{vT+4}")
        e(f"v_xor_b32 v{vT+2}, 0x80000000, v{vT+3}")
        e(f"v_cvt_pk_bf16_f32 v{vT+4}, v{vT+4}, v{vT+4}")
        e(f"v_and_b32 v{O+2}, s{sHiMask}, v{vT+4}")
        e(f"v_rcp_f32 v{O+1}, v{O+2}")
        e(f"v_lshrrev_b32 v{vT+4}, 16, v{vT+2}")
        e(f"v_mul_f32 v{O+3}, {f32bits(LOG2E):#x}, v{O+1}")
        e(f"v_or_b32 v{O}, v{vT+2}, v{vT+4}")
        e(f"s_mul_i32 s{sT0}, s{sSW}, 1536")
        e(f"s_add_u32 s{sT0}, s{sT0}, {STAT_LDS + 768*n}")
        e(f"v_lshl_add_u32 v{vT+1}, v{vL31x4}, 2, s{sT0}")
        e(f"v_add_u32 v{vT+2}, s{sT0}, v{vL31x4}")
        e(f"ds_write_b128 v{vT+1}, {r4(O)}")
        if KV:
            e(f"ds_write_b32 v{vT+2}, v{O+3} offset:512")
            e(f"ds_write_b32 v{vT+2}, v{O+1} offset:640")
        for k, c in enumerate((D+10, D+15)):
            x = D + 12 + 6*k
            e(f"v_and_b32 v{vU}, s{sHiMask}, v{c}")
            e(f"v_sub_f32 v{vU}, v{c}, v{vU}")
            e(f"v_lshrrev_b32 v{c}, 16, v{c}")
            e(f"v_and_or_b32 v{x}, v{vU}, s{sHiMask}, v{c}")
            e(f"v_and_b32 v{vU+1}, s{sHiMask}, v{vU}")
            e(f"v_sub_f32 v{vU+1}, v{vU}, v{vU+1}")
            e(f"v_lshrrev_b32 v{x+1}, 16, v{vU+1}")
            e(f"s_lshl_b32 s{sT0}, s{sTi[n][k]}, 1")
            e(f"s_add_u32 s{sT0}, s{sT0}, {EXT_LDS}")
            e(f"v_lshl_add_u32 v{vT+1}, v{vL31x4}, 1, s{sT0}")
            e(f"ds_write_b64 v{vT+1}, v[{x}:{x+1}]")

    def kv_atomics():
        e(f"v_lshlrev_b32 v{vU}, 2, v{vTid}")
        e(f"v_add_u32 v{vU+1}, {CP_LDS}, v{vU}")
        e(f"v_add_u32 v{vU+2}, 4096, v{vU}")
        e(f"v_add_u32 v{vU+3}, {13*512}, v{vU}")
        e(f"v_cmp_gt_u32 vcc, 16, v{vTid}")
        e(f"s_lshl_b32 s{sT1}, s{sG}, 13")
        e(f"s_add_u32 s{sT1}, s{sT1}, {KVA_OFF}")
        e(f"v_cndmask_b32 v{vU+3}, v{vOOB}, v{vU+3}, vcc")
        for k in range(14):
            for ww in range(4):
                e(f"ds_read_b32 v{vD+4*k+ww}, v{vU+1} offset:{CPW[ww]+k*512}")
        for k in range(14):
            e(f"s_waitcnt lgkmcnt({min(15, 4*(13-k))})")
            b = vD + 4*k
            e(f"v_add_f32 v{b}, v{b}, v{b+1}")
            e(f"v_add_f32 v{b+2}, v{b+2}, v{b+3}")
            e(f"v_add_f32 v{b}, v{b}, v{b+2}")
            if k < 8:
                e.vmop(f"buffer_atomic_add_f32 v{b}, v{vU}, s[{S_WS}:{S_WS+3}], s{sT1} offen offset:{k*512}", "kva")
            elif k < 13:
                e.vmop(f"buffer_atomic_add_f32 v{b}, v{vU+2}, s[{S_WS}:{S_WS+3}], s{sT1} offen offset:{(k-8)*512}", "kva")
            else:
                e.vmop(f"buffer_atomic_add_f32 v{b}, v{vU+3}, s[{S_WS}:{S_WS+3}], s{sT1} offen", "kva")

    PV = partial_valu()
    n2 = len(PV) // 2
    for s in range(20):
        e.c(f"--- G1 stage {s} ---")
        e("s_waitcnt lgkmcnt(0)")
        e("s_barrier")
        if s == 0:
            for x in partial_reads(KV):
                e(x)
            e("s_waitcnt lgkmcnt(0)")
            e.op(PV[:n2+4])
        if s == 1:
            e.op(PV[n2+4:])
            partial_publish(e)
            e.stamp("published")
        if s == 2:
            for n in range(2):
                for u in range(5):
                    e(f"s_add_u32 m0, s{sLa}, {n*5120 + u*1024}")
                    e("s_nop 0")
                    e.vmop(f"buffer_load_dwordx4 v{vRs+5*n+u}, s[{[S_RP, S_RP2][n]}:{[S_RP, S_RP2][n]+3}], 0 offen lds", "rp")
            e.poll_issue(vInA, S_DBG, "pin")
        if s == 4:
            e.poll_check(vInA, S_DBG, vInN, "pin")
            for n in range(2):
                for nu in range(5):
                    for h in range(2):
                        d = vRD + 20*n + 4*nu + 2*h
                        e(f"ds_read_b64_tr_b16 v[{d}:{d+1}], v{vRPa} offset:{n*5120+32*nu+1280*h}")
        if s in (5, 6):
            n = s - 5
            if s == 5:
                partial_loads(True)
            for nu in range(5):
                if nu < 4:
                    e.vmop(f"buffer_store_dwordx4 {r4(vRD+20*n+4*nu)}, v{vL16}, s[{S_WS}:{S_WS+3}], s{sRd[n]} offen offset:{1024*nu} sc1", "rps")
                else:
                    e.vmop(f"buffer_store_dwordx4 {r4(vRD+20*n+4*nu)}, v{vL16b}, s[{S_WS}:{S_WS+3}], s{sRd[n]} offen sc1", "rps")
        if s == 7:
            partial_validate()
            e.stamp("validated")
        if s == 8:
            partial_finish(0)
        if s == 9:
            partial_finish(1)
            e.wait_vm({"rps"}, lgkm=0)
            e("s_barrier")
            e.stamp("E1")
            e.flag_store(2)
            if not KV:
                e(f"v_lshlrev_b32 v{vT}, 4, v{vTid}")
                e(f"v_add_u32 v{vT}, {KVT_LDS}, v{vT}")
                for r in range(4):
                    e(f"v_mov_b32 v{vT+2+r}, 0")
                for q in range(10):
                    e(f"ds_write_b128 v{vT}, v[{vT+2}:{vT+5}] offset:{q*2048}")
        if KV and s == 10:
            kv_atomics()
        if KV and s == KVF:
            e.wait_vm({"kva"})
            e.flag_store(3)
            e.stamp("kv_flag")
        if s == 15:
            e.poll_issue(vPRa, S_WS, "pr")
            e.poll_issue(vPQa, S_WS, "pq", dst=vP2)
        if s == 17:
            e.poll_check(vPRa, S_WS, vN32_2, "pr")
            e.poll_check(vPQa, S_WS, vN16_1, "pq", dst=vP2)
            e.stamp("PQ_ok")
    e("s_barrier")
    KS = OST - 1
    for s in range(17):
        e.c(f"--- G2 stage {s} ---")
        e("s_waitcnt lgkmcnt(0)")
        e("s_barrier")
        if s == 4:
            e.poll_issue(vPVa, S_WS, "pv")
        if s == 5:
            e.poll_check(vPVa, S_WS, vN16_1, "pv")
            e.stamp("PV_ok")
        if s == 8:
            e.poll_issue(vPQa, S_WS, "po")
        if s == 9:
            e.poll_check(vPQa, S_WS, vN16_2, "po")
            e.stamp("PO_ok")
        if not KV:
            if s == KS - 2:
                e.poll_issue(vPKa, S_WS, "pk", dst=vP2)
            if s == KS - 1:
                e.poll_check(vPKa, S_WS, vN32_3, "pk", dst=vP2)
                e.stamp("PK_ok")
                e(f"s_lshl_b32 s{sT0}, s{sG}, 13")
                e(f"s_add_u32 s{sT0}, s{sT0}, {KVA_OFF}")
                for rnd in range(4):
                    e.vmop(f"buffer_load_dwordx4 {r4(vD+4*rnd)}, v{KA+8+rnd}, s[{S_WS}:{S_WS+3}], s{sT0} offen sc1", "kv")
            if s == KS:
                e.wait_vm({"kv"})
                for rnd in range(4):
                    b = vD + 4*rnd
                    e(f"v_cvt_pk_bf16_f32 v{vD+16+2*rnd}, v{b}, v{b+1}")
                    e(f"v_cvt_pk_bf16_f32 v{vD+17+2*rnd}, v{b+2}, v{b+3}")
                    e(f"ds_write_b64 v{KA+2*rnd}, v[{vD+16+2*rnd}:{vD+17+2*rnd}]")
                    e(f"ds_write_b64 v{KA+1+2*rnd}, v[{vD+16+2*rnd}:{vD+17+2*rnd}]")
                e.stamp("KVT_done")
    e.stamp("end")
    e.stamp("end_real", True)
    e.stamp_flush()
    e("s_endpgm")
    e.label(f"L_S{typ}_end")
    return e


def gen():
    e = Em("top")
    K = NAME + "_kernel"
    e.L.append(f".globl {K}\n.p2align 8\n.type {K},@function\n{K}:")
    e("s_load_dwordx4 s[44:47], s[0:1], 0")
    e("s_load_dwordx2 s[48:49], s[0:1], 16")
    e("s_load_dwordx4 s[52:55], s[0:1], 32")
    e("s_load_dwordx2 s[50:51], s[0:1], 48")
    e("s_load_dwordx2 s[56:57], s[0:1], 56")
    e("s_load_dwordx2 s[58:59], s[0:1], 64")
    e("s_cmp_ge_u32 s2, 256")
    e("s_cbranch_scc1 L_exit")
    e(f"v_and_b32 v{vLane}, 63, v0")
    e(f"v_lshrrev_b32 v{vT}, 6, v0")
    e(f"v_lshrrev_b32 v{vHi}, 5, v{vLane}")
    e(f"v_readfirstlane_b32 s{sT3}, v{vT}")
    e(f"v_and_b32 v{vL31x4}, 31, v{vLane}")
    e(f"v_lshlrev_b32 v{vL31x4}, 2, v{vL31x4}")
    if STAMP or DBGS:
        e(f"v_mov_b32 v{vStamp}, 0")
    if DBGS:
        e("s_load_dwordx2 s[100:101], s[0:1], 56")
    e(f"s_and_b32 s{sT0}, s2, 1")
    e(f"s_lshl_b32 s{sT0}, s{sT0}, 3")
    e(f"s_bfe_u32 s{sT2}, s2, 0x30003")
    e(f"s_add_u32 s{sI}, s{sT0}, s{sT2}")
    e(f"s_bfe_u32 s{sT0}, s2, 0x20001")
    e(f"s_lshl_b32 s{sT0}, s{sT0}, 2")
    e(f"s_lshr_b32 s{sT1}, s2, 6")
    e(f"s_add_u32 s{sJ}, s{sT0}, s{sT1}")
    e(f"s_lshr_b32 s{sG}, s{sJ}, 1")
    e(f"s_and_b32 s{sT0}, s2, 7")
    e(f"s_lshl_b32 s{sT0}, s{sT0}, 2")
    e(f"s_bfe_u32 s{sT64}, s2, 0x20003")
    e(f"s_add_u32 s{sT64}, s{sT64}, s{sT0}")
    e(f"s_lshr_b32 s{sCc}, s2, 5")
    e(f"s_and_b32 s{sW}, s{sT3}, 3")
    e(f"s_lshr_b32 s{sRole}, s{sT3}, 2")
    e(f"s_mul_i32 s{sRot}, s{sJ}, 3")
    e(f"s_add_u32 s{sRot}, s{sRot}, s{sI}")
    e(f"s_mul_i32 s{sT2}, s{sRot}, 205")
    e(f"s_lshr_b32 s{sT2}, s{sT2}, 11")
    e(f"s_mul_i32 s{sT2}, s{sT2}, 10")
    e(f"s_sub_u32 s{sRot}, s{sRot}, s{sT2}")
    e(f"s_lshl_b32 s{sFlag}, s{sI}, 4")
    e(f"s_add_u32 s{sFlag}, s{sFlag}, s{sJ}")
    e(f"s_lshl_b32 s{sFlag}, s{sFlag}, 3")
    e(f"s_add_u32 s{sFlag}, s{sFlag}, s{sT3}")
    e(f"s_lshl_b32 s{sFlag}, s{sFlag}, 4")
    e(f"s_add_u32 s{sFlag}, s{sFlag}, {FLG_OFF}")
    e(f"v_mov_b32 v{vT}, {OOB}")
    e(f"v_cmp_eq_u32 vcc, 0, v{vLane}")
    e(f"v_lshlrev_b32 v{vL16}, 4, v{vLane}")
    e(f"v_add_u32 v{vL16b}, 4096, v{vL16}")
    e(f"v_cndmask_b32 v{vFl0}, v{vT}, 0, vcc")
    e(f"s_mov_b32 s{sKVTP}, 176")
    e(f"s_mov_b32 s{sC}, {f32bits(1e-6/LN2):#x}")
    e(f"s_mov_b32 s{sLn2}, {f32bits(LN2):#x}")
    e(f"s_mov_b32 s{sHiMask}, 0xffff0000")
    e(f"s_mov_b32 s{sHIm}, 0")
    e(f"s_mov_b32 s{sHIm+1}, -1")
    e(f"s_mov_b32 s{sL16m}, 0xffff0000")
    e(f"s_mov_b32 s{sL16m+1}, 0xffff0000")
    e(f"s_and_b32 s{sT0}, s{sJ}, 1")
    e(f"s_lshl_b32 s{sT0}, s{sT0}, 2")
    e(f"s_lshr_b32 s{sT1}, s{sT3}, 1")
    e(f"s_add_u32 s{sT0}, s{sT0}, s{sT1}")
    e(f"s_cmp_eq_u32 s{sT0}, 2")
    e("s_cbranch_scc1 L_LKV")
    e(f"s_cmp_eq_u32 s{sT0}, 6")
    e("s_cbranch_scc1 L_LQ")
    e(f"s_cmp_eq_u32 s{sT0}, 3")
    e("s_cbranch_scc1 L_SKV")
    e(f"s_cmp_eq_u32 s{sT0}, 7")
    e("s_cbranch_scc1 L_SQ")
    e(f"s_cmp_ge_u32 s{sT0}, 4")
    e("s_cbranch_scc1 L_CQ")
    body = "".join(p.text() for p in [compute_path("KV"), loader_path("KV"), service_path("KV"),
                                      compute_path("Q"), loader_path("Q"), service_path("Q")])
    return e.text() + body + "L_exit:\n    s_endpgm\n"


def main():
    K = NAME + "_kernel"
    out = ["; generated by gen/gen7.py -- LN + linear attention + FFN, one persistent kernel (256 workgroups x 8 waves)",
           "; @launch grid=(256,1,1) block=(512,1,1) lds=163840",
           '.amdgcn_target "amdgcn-amd-amdhsa--gfx950"', ".text", gen(),
           '.section .rodata,"a"', ".p2align 6",
           f""".amdhsa_kernel {K}
  .amdhsa_next_free_vgpr 256
  .amdhsa_next_free_sgpr 102
  .amdhsa_accum_offset 256
  .amdhsa_group_segment_fixed_size 0
  .amdhsa_kernarg_size 72
  .amdhsa_user_sgpr_count 2
  .amdhsa_user_sgpr_kernarg_segment_ptr 1
  .amdhsa_system_sgpr_workgroup_id_x 1
.end_amdhsa_kernel
"""]
    return "\n".join(out)


if __name__ == "__main__":
    p = sys.argv[1] if len(sys.argv) > 1 else f"cdna_kernels/{NAME}.s"
    open(p, "w").write(main())
    print("wrote", p)
```

```python
import sys, struct, os

NAME = "parallel_sum__linear_attn_block__dense_activation_relu__prompt"

ACT_OFF = 0
W2R_OFF = 0x900000
KVA_OFF = 0xC00000
RSTD_OFF = 0xD00000
FLG_OFF = 0xD10000
STP_OFF = 0xD20000
CSP_OFF = 0xD50000
STAMP_OFF = 0xD80000
WS_SIZE = 0xE00000
OOB = 0x40000000
STAMP = os.environ.get("STAMP", "0") == "1"
DBGS = os.environ.get("DBGS", "0") == "1"
DBGW = int(os.environ.get("DBGW", "0"))
DBG_NAMES = ["start_real", "start", "st0_issued", "B0", "B1", "B5", "E1", "B10", "E3", "G0", "G6", "G12", "G16", "end", "end_real"]
ROT2 = int(os.environ.get("ROT2", "1"))
HF = int(os.environ.get("HF", "2"))
SLP = int(os.environ.get("SLP", "4"))
TOUCH = int(os.environ.get("TOUCH", "5"))
KVFD = int(os.environ.get("KVFD", "3"))
OUTF = os.environ.get("OUTF", "")
SCHED = {}
OST = int(os.environ.get("OST", "4"))

def f32bits(x):
    return struct.unpack("<I", struct.pack("<f", x))[0]

LOG2E = 1.4426950408889634
LN2 = 0.6931471805599453

SLOT1 = 45056
WA_OFF = 16384
SLOT2 = 36864
G2S = [90112, 0, 45056]
CP_LDS = 16384
CPW = [0, 6784, 13568, 45056]
OUT_LDS = 90112
RP_LDS = 135168
KVT_LDS = 135168
STAT_LDS = 156672
EXT_LDS = 159744
KVT_P = 176

S_X, S_WQKV, S_W1, S_WS, S_DBG, S_RP, S_CODE, S_OUT = 8, 12, 16, 20, 24, 28, 32, 84
sW, sI, sG, sT0, sT1, sT2, sT3, sXlim = 36, 37, 38, 39, 40, 41, 42, 43
sXoff, sWoffA, sWoffB = 60, 61, 62
sLx, sLa, sLb = 63, 64, 75
sC, sLn2, sHiMask = 65, 66, 67
sACT = 68
sTw = 69
sHIm = 70
sL16m = 72
sFlag = 74
sRPl, sRPd = 77, 78
sKVTP, sSpin, sRot = 81, 82, 83
sJ, sT64, sCc, sA, sB, sCnt = 88, 89, 90, 91, 92, 93
sSlot, sD = 96, 97
sA0, sB0 = 76, 79
sRole = 80
vLane, vHi, vL31x4, vFl0, vL16, vL16b, vStamp, vPoll, vPollN = 1, 2, 3, 4, 5, 6, 7, 8, 9
vT = 10


class Em:
    def __init__(self, lab):
        self.L = []
        self.vm = []
        self.stamps = []
        self.nlab = 0
        self.lab = lab
        self.cap = None

    def __call__(self, s):
        for line in s.split("\n"):
            if self.cap is not None:
                self.cap[-1].append(line)
            else:
                self.L.append("    " + line)

    def capture(self):
        self.cap = [[]]

    def para(self):
        if self.cap is not None and self.cap[-1]:
            self.cap.append([])

    def end_capture(self):
        c = [p for p in self.cap if p]
        self.cap = None
        return c

    def label(self, s):
        self.L.append(s + ":")

    def c(self, s):
        self.L.append("    ; " + s)

    def vmop(self, s, tag):
        assert self.cap is None
        self(s)
        self.vm.append(tag)
        assert len(self.vm) <= 63, self.vm

    def op(self, o):
        if isinstance(o, tuple):
            self.vmop(o[0], o[1])
        elif isinstance(o, list):
            for x in o:
                self.op(x)
        else:
            self(o)

    def merge(self, dm, paras):
        dm, paras = list(dm), list(paras)
        while dm or paras:
            if dm:
                self.op(dm.pop(0))
            k = -(-len(paras) // (len(dm) + 1)) if paras else 0
            for _ in range(k):
                self.op(paras.pop(0))

    def vm_n(self, tags):
        last = -1
        for k, t in enumerate(self.vm):
            if t in tags:
                last = k
        n = len(self.vm) - 1 - last
        self.vm = self.vm[last + 1:]
        return n

    def wait_vm(self, tags, lgkm=None):
        n = self.vm_n(tags)
        if lgkm is None:
            self(f"s_waitcnt vmcnt({n})")
        else:
            self(f"s_waitcnt vmcnt({n}) lgkmcnt({lgkm})")

    def pending(self, tag):
        return tag in self.vm

    def stamp(self, name, real=False):
        if DBGS:
            if self.lab[0] != "L" or name not in DBG_NAMES:
                return
            k = DBG_NAMES.index(name)
            self("s_waitcnt lgkmcnt(0)")
            self(("s_memtime" if name in ("start", "end") else "s_memrealtime") + " s[98:99]")
            self("s_waitcnt lgkmcnt(0)")
            self(f"v_writelane_b32 v{vStamp}, s98, {k}")
            return
        if not STAMP:
            return
        k = len(self.stamps)
        self.stamps.append(name)
        assert k < 60
        self("s_waitcnt lgkmcnt(0)")
        self(("s_memrealtime" if real else "s_memtime") + " s[98:99]")
        self("s_waitcnt lgkmcnt(0)")
        self(f"v_writelane_b32 v{vStamp}, s98, {k}")

    def stamp_flush(self):
        if DBGS:
            if self.lab[0] != "L":
                return
            self.srds(["DBG2"])
            self(f"v_lshlrev_b32 v{vT}, 2, v{vLane}")
            self(f"v_add_u32 v{vT}, 4, v{vT}")
            self(f"v_mov_b32 v{vT+1}, {OOB}")
            self(f"v_cmp_gt_u32 vcc, 15, v{vLane}")
            self("s_nop 1")
            self(f"v_cndmask_b32 v{vT}, v{vT+1}, v{vT}, vcc")
            self(f"s_cmp_eq_u32 s2, {DBGW}")
            self(f"s_cselect_b32 s98, 0, {OOB}")
            self(f"s_cmp_eq_u32 s{sW}, 0")
            self(f"s_cselect_b32 s98, s98, {OOB}")
            self(f"buffer_store_dword v{vStamp}, v{vT}, s[{S_DBG}:{S_DBG+3}], s98 offen")
            return
        if not STAMP:
            return
        self(f"s_lshl_b32 s98, s2, 3")
        self(f"s_add_u32 s98, s98, s{sW}")
        self(f"s_lshl_b32 s99, s{sRole}, 2")
        self(f"s_add_u32 s98, s98, s99")
        self(f"s_lshl_b32 s98, s98, 8")
        self(f"s_add_u32 s98, s98, {STAMP_OFF}")
        self(f"v_lshlrev_b32 v{vT}, 2, v{vLane}")
        self(f"buffer_store_dword v{vStamp}, v{vT}, s[{S_WS}:{S_WS+3}], s98 offen")
        print(f"stamps: {self.lab}:" + ",".join(self.stamps))

    def flag_store(self, val, off=0):
        self(f"v_mov_b32 v{vPollN}, {val}")
        self.vmop(f"buffer_store_dword v{vPollN}, v{vFl0}, s[{S_WS}:{S_WS+3}], s{sFlag} offen offset:{off} sc1", "flag")

    def poll_issue(self, vaddr, srd, tag, dst=None):
        self.vmop(f"buffer_load_dword v{dst or vPoll}, v{vaddr}, s[{srd}:{srd+3}], 0 offen sc1", tag)

    def poll_check(self, vaddr, srd, vneed, tag, dst=None):
        dst = dst or vPoll
        self.nlab += 1
        k = f"{self.lab}{self.nlab}"
        self.wait_vm({tag})
        self(f"v_cmp_lt_u32 vcc, v{dst}, v{vneed}")
        self(f"s_mov_b32 s{sSpin}, 0")
        self("s_nop 3")
        self(f"s_cbranch_vccz L_ok{k}")
        self.label(f"L_sp{k}")
        self(f"s_sleep {SLP}")
        self(f"buffer_load_dword v{dst}, v{vaddr}, s[{srd}:{srd+3}], 0 offen sc1")
        self("s_waitcnt vmcnt(0)")
        self(f"v_cmp_lt_u32 vcc, v{dst}, v{vneed}")
        self(f"s_add_u32 s{sSpin}, s{sSpin}, 1")
        self(f"s_cmp_lt_u32 s{sSpin}, 0x40000")
        self(f"s_cselect_b64 s[94:95], -1, 0")
        self(f"s_and_b64 vcc, vcc, s[94:95]")
        self(f"s_cbranch_vccnz L_sp{k}")
        self.label(f"L_ok{k}")

    def srds(self, lst):
        tab = {"X": (S_X, 44, 2048*1280), "WQKV": (S_WQKV, 46, 640*3840), "W1": (S_W1, 52, 640*3072),
               "WS": (S_WS, 58, WS_SIZE), "DBG": (S_DBG, 56, 256), "OUT": (S_OUT, 50, 2048*1280), "DBG2": (S_DBG, 100, 256)}
        for k in lst:
            srd, p, sz = tab[k]
            self(f"s_mov_b32 s{srd}, s{p}")
            self(f"s_mov_b32 s{srd+1}, s{p+1}")
            self(f"s_mov_b32 s{srd+2}, {sz}")
            self(f"s_mov_b32 s{srd+3}, 0x00020000")

    def text(self):
        return "\n".join(self.L) + "\n"


def r4(b):
    return f"v[{b}:{b+3}]"


def image_cfg(KV):
    if KV:
        WB_OFF = WA_OFF + 20480
        A = dict(kk=5120, s=1280, t=lambda t: t*64)
        B = dict(kk=2048, s=256, t=lambda t: t*512)
        tiles = [("A", t) for t in range(5)] + [("B", t) for t in range(2)]
    else:
        WB_OFF = WA_OFF + 16384
        A = dict(kk=4096, s=256, t=lambda t: (t >> 1)*1024 + (t & 1)*512)
        B = dict(kk=3072, s=768, t=lambda t: t*64)
        tiles = [("A", t) for t in range(4)] + [("B", t) for t in range(3)]
    return WB_OFF, A, B, tiles


def lane_parts(e, KV, dA, dB, t):
    e(f"v_lshrrev_b32 v{t}, 2, v{vLane}")
    e(f"v_and_b32 v{t}, 3, v{t}")
    e(f"v_and_b32 v{t+1}, 3, v{vLane}")
    e(f"v_lshlrev_b32 v{t+1}, 3, v{t+1}")
    e(f"v_and_b32 v{t+2}, 16, v{vLane}")
    e(f"v_lshl_add_u32 v{t+1}, v{t+2}, 1, v{t+1}")
    e(f"v_lshl_add_u32 v{t+2}, v{vHi}, 3, v{t}")
    if KV:
        e(f"v_mul_u32_u24 v{dA}, 320, v{t+2}")
        e(f"v_add_u32 v{dA}, v{dA}, v{t+1}")
        e(f"v_lshl_add_u32 v{dB}, v{t}, 6, v{t+1}")
        e(f"v_lshl_add_u32 v{dB}, v{vHi}, 10, v{dB}")
    else:
        e(f"v_lshl_add_u32 v{dA}, v{t}, 6, v{t+1}")
        e(f"v_lshl_add_u32 v{dA}, v{vHi}, 11, v{dA}")
        e(f"v_mul_u32_u24 v{dB}, 192, v{t+2}")
        e(f"v_add_u32 v{dB}, v{dB}, v{t+1}")


def slot_offsets(e, d_st, d_cs):
    e(f"s_mul_i32 s{d_st}, s{sI}, 10")
    e(f"s_add_u32 s{d_st}, s{d_st}, s{sRot}")
    e(f"s_lshl_b32 s{d_st}, s{d_st}, 10")
    e(f"s_add_u32 s{d_st}, s{d_st}, {STP_OFF}")
    e(f"s_cmp_lt_u32 s{sJ}, 10")
    e(f"s_cselect_b32 s{d_st}, s{d_st}, {OOB}")
    e(f"s_mul_i32 s{d_cs}, s{sJ}, 10")
    e(f"s_add_u32 s{d_cs}, s{d_cs}, s{sRot}")
    e(f"s_lshl_b32 s{d_cs}, s{d_cs}, 10")
    e(f"s_add_u32 s{d_cs}, s{d_cs}, {CSP_OFF}")
    e(f"s_cmp_lt_u32 s{sI}, 10")
    e(f"s_cselect_b32 s{d_cs}, s{d_cs}, {OOB}")


def compute_path(typ):
    KV = typ == "KV"
    e = Em("C" + typ)
    WB_OFF, IA, IB, tiles = image_cfg(KV)
    vXrd = 18
    vWA, vWB = 22, 23
    vSt = 24
    vAcc = 32
    vWf = 144
    vXf = 200
    vXext = 244
    vXp, vRstd, vSd, vRl = 248, 249, 250, 251
    corient = [KV and t < 5 for t in range(7)]
    A_ = lambda t: vAcc + 16*t

    e.label(f"L_C{typ}")
    e.stamp("start_real", True)
    e.stamp("start")
    e(f"s_getpc_b64 s[{S_CODE}:{S_CODE+1}]")
    e.label(f"L_C{typ}_pc")
    e(f"s_mov_b32 s{S_CODE+2}, L_S{typ}_end-L_C{typ}_pc")
    e(f"s_mov_b32 s{S_CODE+3}, 0x00020000")
    e(f"v_lshlrev_b32 v{vT}, 7, v0")
    e.vmop(f"buffer_load_dword v255, v{vT}, s[{S_CODE}:{S_CODE+3}], 0 offen", "pf")
    for r in range(4):
        e(f"v_mov_b32 v{vAcc+r}, 0")
    slot_offsets(e, sT0, sT1)
    e(f"s_cmp_eq_u32 s{sW}, 0")
    e(f"s_cselect_b32 s{sT0}, s{sT0}, {OOB}")
    e(f"s_cselect_b32 s{sT1}, s{sT1}, {OOB}")
    e(f"s_and_b32 s{sT2}, s{sFlag}, 0xffffff80")
    e(f"v_mov_b32 v{vT+1}, {OOB}")
    e(f"v_cmp_gt_u32 vcc, 8, v0")
    if KV:
        e(f"s_lshl_b32 s{sT3}, s{sG}, 13")
        e(f"s_lshl_b32 s{sTw}, s{sI}, 10")
        e(f"s_add_u32 s{sT3}, s{sT3}, s{sTw}")
        e(f"s_add_u32 s{sT3}, s{sT3}, {KVA_OFF}")
        e(f"s_cmp_lt_u32 s{sI}, 7")
        e(f"s_cselect_b32 s{sT3}, s{sT3}, {OOB}")
        e(f"s_cmp_eq_u32 s{sW}, 0")
        e(f"s_cselect_b32 s{sT3}, s{sT3}, {OOB}")
    e(f"v_cndmask_b32 v{vT}, v{vT+1}, v{vL16}, vcc")
    e("s_waitcnt lgkmcnt(0)")
    e.srds(["WS"])
    e.vmop(f"buffer_store_dwordx4 {r4(vAcc)}, v{vT}, s[{S_WS}:{S_WS+3}], s{sT2} offen sc1", "z")
    e.vmop(f"buffer_store_dwordx4 {r4(vAcc)}, v{vL16}, s[{S_WS}:{S_WS+3}], s{sT0} offen sc1", "z")
    e.vmop(f"buffer_store_dwordx4 {r4(vAcc)}, v{vL16}, s[{S_WS}:{S_WS+3}], s{sT1} offen sc1", "z")
    if KV:
        e.vmop(f"buffer_store_dwordx4 {r4(vAcc)}, v{vL16}, s[{S_WS}:{S_WS+3}], s{sT3} offen sc1", "z")
    e.srds(["X", "OUT", "DBG"])
    e(f"v_and_b32 v{vT}, 31, v{vLane}")
    e(f"v_lshrrev_b32 v{vT+1}, 1, v{vT}")
    e(f"v_and_b32 v{vT+1}, 7, v{vT+1}")
    e(f"v_xor_b32 v{vT+1}, v{vT+1}, v{vHi}")
    e(f"v_lshlrev_b32 v{vT}, 7, v{vT}")
    e(f"s_lshl_b32 s{sT0}, s{sW}, 12")
    e(f"v_add_u32 v{vT}, s{sT0}, v{vT}")
    for kk in range(4):
        e(f"v_xor_b32 v{vT+2}, {2*kk}, v{vT+1}")
        e(f"v_lshl_add_u32 v{vXrd+kk}, v{vT+2}, 4, v{vT}")
    lane_parts(e, KV, vWA, vWB, vT)
    e(f"v_add_u32 v{vWA}, {WA_OFF}, v{vWA}")
    e(f"v_add_u32 v{vWB}, {WB_OFF}, v{vWB}")
    e(f"v_and_b32 v{vT}, 15, v{vLane}")
    e(f"v_lshlrev_b32 v{vT}, 4, v{vT}")
    e(f"v_lshl_add_u32 v{vT}, v{vHi}, 8, v{vT}")
    e(f"v_and_b32 v{vT+1}, 16, v{vLane}")
    e(f"v_lshl_add_u32 v{vT}, v{vT+1}, 6, v{vT}")
    e(f"s_and_b32 s{sT0}, s{sW}, 1")
    e(f"s_lshl_b32 s{sT0}, s{sT0}, 11")
    e(f"v_add_u32 v{vSt}, s{sT0}, v{vT}")
    e(f"s_lshr_b32 s{sT0}, s{sW}, 1")
    e(f"s_lshl_b32 s{sT1}, s{sI}, 1")
    e(f"s_add_u32 s{sT0}, s{sT0}, s{sT1}")
    e(f"s_mul_i32 s{sACT}, s{sT0}, {68*4096}")
    EXR = 212
    for r in list(range(vAcc+4, vAcc+112)) + list(range(vWf+28, vWf+56)) + list(range(vXf+4, vXf+8)) + \
            [EXR+4*t+k for t in range(7) for k in (2, 3)] + [vXext+2, vXext+3]:
        e(f"v_mov_b32 v{r}, 0")
    e(f"v_lshlrev_b32 v25, 1, v{vL31x4}")
    e(f"v_add_u32 v25, {EXT_LDS}, v25")
    e(f"s_mul_i32 s{sT0}, s{sW}, 768")
    e(f"s_add_u32 s{sT0}, s{sT0}, {STAT_LDS}")
    e(f"v_lshl_add_u32 v26, v{vL31x4}, 2, s{sT0}")
    e(f"v_lshl_add_u32 v27, v{vHi}, 4, s{sT0}")
    e(f"s_and_b32 s{sT0}, s2, 1")
    e(f"s_lshl_b32 s{sT0}, s{sT0}, 7")
    e(f"v_mov_b32 v{vT}, s{sT0}")
    e(f"v_mov_b32 v{vT+1}, {OOB}")
    e(f"v_cmp_eq_u32 vcc, 0, v0")
    e(f"v_mov_b32 v{vT+2}, 1")
    e(f"s_mov_b32 s{sCnt}, 0")
    e(f"s_mov_b32 s{sSlot}, 0")
    e(f"v_cndmask_b32 v{vT}, v{vT+1}, v{vT}, vcc")
    e.wait_vm({"z"})
    e.vmop(f"buffer_atomic_add v{vT+2}, v{vT}, s[{S_DBG}:{S_DBG+3}], 0 offen", "init")

    P1 = [0, 1, 2, 3, 4] if KV else [0, 1, 2, 3]
    P2 = [5, 6] if KV else [4, 5, 6]
    SYNC = "SYNC"
    CUR = [0]

    class Fill:
        def __init__(self, items):
            self.q = list(items)

        def release(self):
            if self.q and self.q[0] == SYNC:
                self.q.pop(0)

        def emit(self, n):
            while n > 0 and self.q and self.q[0] != SYNC:
                it = self.q.pop(0)
                if callable(it):
                    it()
                    continue
                e.op(it)
                n -= len(it) if isinstance(it, list) else 1

        def done(self):
            return not self.q

    def wreg(ps, par, t):
        if ps == 2 and KV:
            return 208 + 8*par + 4*(t - 5)
        return vWf + par*28 + 4*t

    def xreg(ps, par):
        if ps == 2 and KV:
            return [240, 252][par]
        return vXf + 4*par

    def reads(ps, kk, TL):
        out = [f"ds_read_b128 {r4(xreg(ps, kk % 2))}, v{vXrd+kk}"]
        for t in TL:
            img, ti = tiles[t]
            I = IA if img == "A" else IB
            va = vWA if img == "A" else vWB
            for s in range(2):
                d = wreg(ps, kk % 2, t) + 2*s
                out.append(f"ds_read_b64_tr_b16 v[{d}:{d+1}], v{va} offset:{kk*I['kk'] + s*I['s'] + I['t'](ti)}")
        return out

    def mf(t, x, w):
        acc = f"v[{A_(t)}:{A_(t)+15}]"
        if corient[t]:
            return f"v_mfma_f32_32x32x16_bf16 {acc}, {x}, {w}, {acc}"
        return f"v_mfma_f32_32x32x16_bf16 {acc}, {w}, {x}, {acc}"

    def mfm(ps, par, t):
        return mf(t, r4(xreg(ps, par)), r4(wreg(ps, par, t)))

    aregs = list(range(vXrd, vXrd+4)) + [vWA, vWB]

    def g1_body(ps, TL, fill=None, nf=0, first=False, gs=None, count=None):
        e("s_waitcnt lgkmcnt(0)")
        e("s_barrier")
        per = 4 if len(TL) >= 4 else 8
        for kk in range(4):
            if kk:
                e("s_waitcnt lgkmcnt(0)")
            if fill:
                fill.release()
            rd = reads(ps, kk, TL)
            mm = [] if (first and kk == 0) else [mfm(ps, (kk + 1) % 2, t) for t in TL]
            if not mm:
                for x in rd:
                    e(x)
                rd = []
                if fill:
                    fill.emit(nf)
            for k, m in enumerate(mm):
                e(m)
                for _ in range(per):
                    if rd:
                        e(rd.pop(0))
                if fill:
                    fill.emit(-(-nf // len(mm)))
            assert not rd
            if gs is None and kk == 2:
                for x in [f"s_add_u32 s{sSlot}, s{sSlot}, 1", f"s_cmp_eq_u32 s{sSlot}, 3", f"s_cselect_b32 s{sSlot}, 0, s{sSlot}",
                          f"s_mov_b32 s{sD}, {SLOT1}", f"s_cselect_b32 s{sD}, {(-2*SLOT1) & 0xffffffff:#x}, s{sD}",
                          f"s_add_u32 s{sCnt}, s{sCnt}, 1", f"s_cmp_lt_u32 s{sCnt}, {count}"]:
                    e(x)
        for r in aregs:
            if gs is None:
                e(f"v_add_u32 v{r}, s{sD}, v{r}")
            else:
                d = SLOT1 if (gs + 1) % 3 else -2*SLOT1
                e(f"v_add_u32 v{r}, {d & 0xffffffff:#x}, v{r}")

    def g1_loop(name, ps, TL, gs0, count):
        if count <= 0:
            return
        e(f"s_mov_b32 s{sCnt}, 0")
        e(f"s_mov_b32 s{sSlot}, {gs0 % 3}")
        e(".p2align 3")
        e.label(name)
        g1_body(ps, TL, count=count)
        e(f"s_cbranch_scc1 {name}")

    def h_items(t, o, n, sb):
        a = A_(t)
        out = []
        for j in range(8):
            out += [f"v_max_f32 v{a+2*j}, 0, v{a+2*j}", f"v_max_f32 v{a+2*j+1}, 0, v{a+2*j+1}",
                    f"v_cvt_pk_bf16_f32 v{o+j}, v{a+2*j}, v{a+2*j+1}"]
        out += [f"s_add_u32 s{sT1}, s{sb}, {n*4096}",
                (f"buffer_store_dwordx4 {r4(o)}, v{vSt}, s[{S_WS}:{S_WS+3}], s{sT1} offen sc1", "hst"),
                (f"buffer_store_dwordx4 {r4(o+4)}, v{vSt}, s[{S_WS}:{S_WS+3}], s{sT1} offen offset:512 sc1", "hst")]
        return out

    def phi2(dst, a0, a1, r0, r1):
        t = vT
        return [f"v_fma_f32 v{t}, v{a0}, v{r0}, s{sC}", f"v_fma_f32 v{t+2}, v{a1}, v{r1}, s{sC}",
                f"v_exp_f32 v{t+1}, v{t} clamp", f"v_exp_f32 v{t+3}, v{t+2} clamp",
                f"v_max_f32 v{t}, s{sC}, v{t}", f"v_max_f32 v{t+2}, s{sC}, v{t+2}",
                f"v_fma_f32 v{t}, v{t}, s{sLn2}, v{t+1}", f"v_fma_f32 v{t+2}, v{t+2}, s{sLn2}, v{t+3}",
                f"v_cvt_pk_bf16_f32 v{dst}, v{t}, v{t+2}"]

    def flag_item(tag, val, name):
        def f():
            e.wait_vm({tag})
            e.flag_store(val)
            e.stamp(name)
            SCHED[typ + name] = CUR[0]
        return f

    g1_loop(f"L_C{typ}_p1", 1, P1, 0, 10)
    e("s_waitcnt lgkmcnt(0)")
    e("s_barrier")
    e.stamp("E1")
    order = [3, 4, 2, 0, 1, 5, 6] if KV else [0, 1, 2, 3, 4, 5, 6]
    RL, RS = 144, 160
    e(f"ds_read_b128 {r4(vXp)}, v26")
    for t in order:
        e(f"ds_read_b64 v[{EXR+4*t}:{EXR+4*t+1}], v25 offset:{t*256}")
    for t in order:
        if t in P1:
            e(mfm(1, 1, t))
    e("s_waitcnt lgkmcnt(0)")
    e(f"v_lshrrev_b32 v{vT+4}, 16, v{vXp}")
    e(f"v_cndmask_b32 v{vXext}, v{vXp}, 0, s[{sHIm}:{sHIm+1}]")
    e(f"v_cndmask_b32 v{vXext+1}, v{vT+4}, 0, s[{sHIm}:{sHIm+1}]")
    if KV:
        for q in range(4):
            e(f"ds_read_b128 {r4(RS+4*q)}, v27 offset:{640+32*q}")
        for q in range(4):
            e(f"ds_read_b128 {r4(RL+4*q)}, v27 offset:{512+32*q}")
    else:
        e("s_nop 1")
    for t in order:
        e(mf(t, r4(vXext), r4(EXR+4*t)))

    PQ = 220
    sHb = sA
    F = []
    if KV:
        Vp = [176, 184, 192]
        Kp = [200, 224, 232]
        PR_ = [A_(3), A_(4), RS]
        vCa, vCb, vCc, vCt = 28, 29, 30, 31
        TRASH = 2*SLOT1 + WA_OFF
        F += [f"v_mul_u32_u24 v{vCa}, 21, v{vHi}", f"v_and_b32 v{vCb}, 31, v{vLane}",
              [f"v_cmp_eq_u32 vcc, 0, v{vCb}", f"v_add_u32 v{vCc}, 20, v{vCa}", f"v_add_u32 v{vCa}, v{vCa}, v{vCb}",
               f"v_subrev_u32 v{vCt}, 12, v{vCa}", f"v_cndmask_b32 v{vCc}, v{vCt}, v{vCc}, vcc"],
              f"v_add_u32 v{vCb}, v{vHi}, v{vCb}",
              [f"s_mul_i32 s{sT0}, s{sW}, 6784", f"s_cmp_eq_u32 s{sW}, 3", f"s_cselect_b32 s{sT0}, {CPW[3]}, s{sT0}",
               f"s_add_u32 s{sT0}, s{sT0}, {CP_LDS}"],
              f"v_lshl_add_u32 v{vCa}, v{vCa}, 4, s{sT0}", f"v_lshl_add_u32 v{vCb}, v{vCb}, 4, s{sT0}",
              f"v_lshl_add_u32 v{vCc}, v{vCc}, 4, s{sT0}", f"v_add_u32 v{vCt}, {TRASH}, v{vL16}"]
        for (t, dst) in [(3, Vp[0]), (4, Vp[1]), (2, Vp[2])]:
            a = A_(t)
            for j in range(0, 8, 2):
                F += [f"v_mul_f32 v{vT}, v{a+2*j}, v{RS+2*j}", f"v_mul_f32 v{vT+1}, v{a+2*j+1}, v{RS+2*j+1}",
                      f"v_mul_f32 v{vT+2}, v{a+2*j+2}, v{RS+2*j+2}", f"v_mul_f32 v{vT+3}, v{a+2*j+3}, v{RS+2*j+3}",
                      f"v_cvt_pk_bf16_f32 v{dst+j}, v{vT}, v{vT+1}", f"v_cvt_pk_bf16_f32 v{dst+j+1}, v{vT+2}, v{vT+3}"]
        F.append(f"v_mov_b32 v{vT}, 0x3f803f80")
        for j in range(8):
            F.append(f"v_cndmask_b32 v{Vp[2]+j}, v{vT}, v{Vp[2]+j}, s[{sL16m}:{sL16m+1}]")

        def cwrites(a, b):
            out = []
            base = PR_[b]
            for q in range(4):
                C0 = 8*a + 2*q
                if C0 >= 20:
                    continue
                src = r4(base+4*q)
                heads = [C0 // 5, (C0+1) // 5]
                ebase = [0, 32, 48][b]
                mask = 0
                for hi in range(2):
                    for l in range(32):
                        if b == 2 and l < 16:
                            if l == 0:
                                mask |= 1 << (32*hi)
                            continue
                        if (ebase + l) // 20 == heads[hi]:
                            mask |= 1 << (32*hi + l)
                if not mask:
                    continue
                if b == 2:
                    va, imm = vCc, 16*21*C0
                else:
                    va, imm = (vCa if heads[0] == heads[1] else vCb), 16*(21*C0 + ebase - 20*heads[0])
                t = vT + 6 + (len(out) % 2)
                out.append([f"s_mov_b32 s94, {mask & 0xffffffff:#x}", f"s_mov_b32 s95, {mask >> 32:#x}",
                            f"v_cndmask_b32 v{t}, v{vCt}, v{va}, s[94:95]", f"ds_write_b128 v{t}, {src} offset:{imm}"])
            return out

        def prods(a_):
            bs = [0, 1, 2] if a_ < 2 else [1, 2]
            out = []
            for h in range(2):
                for b in bs:
                    d = f"v[{PR_[b]}:{PR_[b]+15}]"
                    out.append(f"v_mfma_f32_32x32x16_bf16 {d}, {r4(Kp[a_]+4*h)}, {r4(Vp[b]+4*h)}, {'0' if h == 0 else d}")
            return out, [w for b in bs for w in cwrites(a_, b)]

        pm, pw = [], []
        for a_ in range(3):
            a = A_(a_)
            for j in range(8):
                F += phi2(Kp[a_] + j, a+2*j, a+2*j+1, RL+2*j, RL+2*j+1)
                if j < 3:
                    F += pm[2*j:2*j+2]
                if j == 6 and pw:
                    F.append([x for g in pw for x in g])
                    pw = []
            pm, pw = prods(a_)
        F += ["s_nop 1"] + pm + ["s_nop 7", "s_nop 7"] + [[x for g in pw for x in g]]
        nf2 = int(os.environ.get("NFKV", "20"))
    else:
        F += [[f"s_lshl_b32 s{sT2}, s{sI}, 2", f"s_add_u32 s{sT2}, s{sT2}, s{sW}", f"s_lshl_b32 s{sT2}, s{sT2}, 7",
               f"s_add_u32 s{sT2}, s{sT2}, {RSTD_OFF}", f"s_cmp_eq_u32 s{sG}, 0", f"s_cselect_b32 s{sT2}, s{sT2}, {OOB}"],
              (f"buffer_store_dword v{vRstd}, v{vL31x4}, s[{S_WS}:{S_WS+3}], s{sT2} offen sc1", "hst"),
              f"s_lshl_b32 s{sHb}, s{sG}, 14", f"s_add_u32 s{sHb}, s{sHb}, s{sACT}"]
        for n in range(4):
            F += h_items(n, [144, 152, 172, 180][n], n, sHb)
        F += [SYNC] * (4*HF) + [flag_item("hst", 1, "h_flag")]
        nf2 = int(os.environ.get("NFQ", "15"))
    fill = Fill(F)
    gs = 10
    if KV:
        e("s_waitcnt lgkmcnt(0)")
        fill.emit(100000)
        SCHED["kv_ready"] = 10
        e.stamp("kv_done")
        g1_body(2, P2, first=True, gs=gs)
        gs += 1
    while not fill.done():
        CUR[0] = gs
        g1_body(2, P2, fill, nf2, first=(gs == 10), gs=gs)
        gs += 1
        assert gs <= 20
    g1_loop(f"L_C{typ}_p2", 2, P2, gs, 20 - gs)
    e("s_waitcnt lgkmcnt(0)")
    e("s_barrier")
    e.stamp("E3")
    for t in P2:
        e(mfm(2, 1, t))

    vA2, vB2 = 18, 19
    vG = 32
    vF2 = [52, 144, 168, 192]
    vGo, vLr, vXd, vRs, vLw, vRa = 96, 99, 104, 116, 102, 120
    e(f"s_lshl_b32 s{sT0}, s{sW}, 10")
    e(f"s_add_u32 s{sT0}, s{sT0}, {G2S[0]}")
    e(f"v_add_u32 v{vA2}, s{sT0}, v{vL16}")
    e(f"v_add_u32 v{vB2}, {G2S[0]}, v{vL16b}")

    def reads2(kk):
        f = vF2[kk]
        out = [f"ds_read_b128 {r4(f)}, v{vA2} offset:{kk*9216}"]
        for nu in range(5):
            out.append(f"ds_read_b128 {r4(f+4+4*nu)}, v{vB2} offset:{kk*9216+nu*1024}")
        return out

    def mfmas2(kk, zero=False):
        f = vF2[kk]
        return [f"v_mfma_f32_16x16x32_bf16 {r4(vG+4*nu)}, {r4(f+4+4*nu)}, {r4(f)}, {'0' if zero else r4(vG+4*nu)}" for nu in range(5)]

    def g2_body(fill=None, nf=0, gs=None, count=None):
        first = gs == 0
        e("s_waitcnt lgkmcnt(0)")
        e("s_barrier")
        for half in range(2):
            rd = reads2(2*half) + reads2(2*half+1)
            mm = mfmas2(2*(1-half), zero=(first and half == 1)) + mfmas2(2*(1-half)+1)
            if first and half == 0:
                mm = []
            if half == 1:
                e("s_waitcnt lgkmcnt(0)" if fill else "s_waitcnt lgkmcnt(6)")
            if fill:
                fill.release()
            for x in rd[:2]:
                e(x)
            rd = rd[2:]
            for k, m in enumerate(mm):
                if half == 1 and k == 5 and not fill:
                    e("s_waitcnt lgkmcnt(7)")
                e(m)
                if rd:
                    e(rd.pop(0))
            for x in rd:
                e(x)
            if fill:
                fill.emit(nf)
        if gs is None:
            e(f"s_mov_b32 s{sD}, {(G2S[1]-G2S[0]) & 0xffffffff:#x}")
            e(f"s_cmp_eq_u32 s{sSlot}, 1")
            e(f"s_cselect_b32 s{sD}, {(G2S[2]-G2S[1]) & 0xffffffff:#x}, s{sD}")
            e(f"s_cmp_eq_u32 s{sSlot}, 2")
            e(f"s_cselect_b32 s{sD}, {(G2S[0]-G2S[2]) & 0xffffffff:#x}, s{sD}")
            e(f"s_cselect_b32 s{sSlot}, -1, s{sSlot}")
            e(f"s_add_u32 s{sSlot}, s{sSlot}, 1")
            e(f"v_add_u32 v{vA2}, s{sD}, v{vA2}")
            e(f"v_add_u32 v{vB2}, s{sD}, v{vB2}")
            e(f"s_add_u32 s{sCnt}, s{sCnt}, 1")
            e(f"s_cmp_lt_u32 s{sCnt}, {count}")
        else:
            d = (G2S[(gs+1) % 3] - G2S[gs % 3]) & 0xffffffff
            e(f"v_add_u32 v{vA2}, {d:#x}, v{vA2}")
            e(f"v_add_u32 v{vB2}, {d:#x}, v{vB2}")

    def g2_loop(name, gs0, count):
        if count <= 0:
            return
        e(f"s_mov_b32 s{sCnt}, 0")
        e(f"s_mov_b32 s{sSlot}, {gs0 % 3}")
        e(".p2align 3")
        e.label(name)
        g2_body(count=count)
        e(f"s_cbranch_scc1 {name}")

    def fin_items():
        out = [[f"s_lshl_b32 s{sT0}, s{sT64}, 6", f"s_lshl_b32 s{sT1}, s{sW}, 4", f"s_add_u32 s{sT0}, s{sT0}, s{sT1}",
                f"s_mul_i32 s{sT2}, s{sT0}, 1280", f"s_mul_i32 s{sT3}, s{sCc}, 160", f"s_add_u32 s{sT2}, s{sT2}, s{sT3}",
                f"s_lshl_b32 s{sA0}, s{sT0}, 2", f"s_add_u32 s{sA0}, s{sA0}, {RSTD_OFF}",
                f"s_mul_i32 s{sT1}, s{sW}, 5376", f"s_add_u32 s{sT1}, s{sT1}, {OUT_LDS}"]]
        for r in range(3):
            out += [f"v_add_u32 v{vT}, {64*r}, v{vLane}", f"v_mul_u32_u24 v{vT+1}, 6554, v{vT}", f"v_lshrrev_b32 v{vT+1}, 16, v{vT+1}",
                    f"v_mul_u32_u24 v{vT+2}, 10, v{vT+1}", f"v_sub_u32 v{vT+2}, v{vT}, v{vT+2}",
                    f"v_mul_u32_u24 v{vT+3}, 1280, v{vT+1}", f"v_lshl_add_u32 v{vT+3}, v{vT+2}, 4, v{vT+3}",
                    f"v_add_u32 v{vGo+r}, s{sT2}, v{vT+3}", f"v_mul_u32_u24 v{vT+3}, 336, v{vT+1}",
                    f"v_lshl_add_u32 v{vT+3}, v{vT+2}, 5, v{vT+3}", f"v_add_u32 v{vLr+r}, s{sT1}, v{vT+3}",
                    f"v_lshlrev_b32 v{vRa+r}, 2, v{vT+1}"]
        out += [f"v_mov_b32 v{vT+4}, {OOB}",
                f"v_cndmask_b32 v{vGo+2}, v{vGo+2}, v{vT+4}, s[{sHIm}:{sHIm+1}]",
                f"v_cndmask_b32 v{vRa+2}, v{vRa+2}, v{vT+4}, s[{sHIm}:{sHIm+1}]",
                f"v_cndmask_b32 v{vLr+2}, v{vLr+2}, v{vLr}, s[{sHIm}:{sHIm+1}]",
                f"v_and_b32 v{vT}, 15, v{vLane}", f"v_mul_u32_u24 v{vT}, 336, v{vT}", f"v_lshrrev_b32 v{vT+1}, 4, v{vLane}",
                f"v_lshl_add_u32 v{vT}, v{vT+1}, 4, v{vT}", f"v_add_u32 v{vLw}, s{sT1}, v{vT}"]
        for r in range(3):
            out.append((f"buffer_load_dwordx4 {r4(vXd+4*r)}, v{vGo+r}, s[{S_X}:{S_X+3}], 0 offen", "x"))
            out.append((f"buffer_load_dword v{vRs+r}, v{vRa+r}, s[{S_WS}:{S_WS+3}], s{sA0} offen sc1", "x"))
        return out

    nfg = int(os.environ.get("NFG", "30"))
    gs = 0

    def run_fill(items):
        nonlocal gs
        fl = Fill(items)
        while not fl.done():
            CUR[0] = gs
            g2_body(fl, nfg, gs=gs)
            gs += 1

    if KV:
        F = [f"s_lshl_b32 s{sHb}, s{sG}, 13", f"s_add_u32 s{sHb}, s{sHb}, {32*4096}", f"s_add_u32 s{sHb}, s{sHb}, s{sACT}"]
        F += h_items(5, 76, 0, sHb) + h_items(6, 84, 1, sHb) + [SYNC]*3 + [flag_item("hst", 1, "h_flag")] + fin_items()
        run_fill(F)
        g2_loop(f"L_C{typ}_g2", gs, 17 - gs)
    else:
        F = []
        for s in range(5):
            a = A_(4) + 8*s
            for j in range(4):
                F += phi2(PQ+4*s+j, a+2*j, a+2*j+1, vRl, vRl)
        run_fill(F)
        assert gs <= OST, gs
        g2_loop(f"L_C{typ}_g2a", gs, OST - gs)
        gs = OST
        e.stamp("g2_mid")
        OA = 96
        frs = [76, 80, 84, 88, 92, 216]
        need = [(2, 0), (0, 0), (2, 1), (0, 1), (1, 1), (2, 2), (0, 2), (1, 2), (2, 3), (1, 3), (2, 4), (1, 4)]
        vKr = 20
        F = [f"v_and_b32 v{vKr}, 31, v{vLane}", f"v_mul_u32_u24 v{vKr}, {KVT_P}, v{vKr}",
             f"v_lshl_add_u32 v{vKr}, v{vHi}, 4, v{vKr}", f"v_add_u32 v{vKr}, {KVT_LDS}, v{vKr}"]
        first = {}
        for bt in range(2):
            nd = need[6*bt:6*bt+6]
            F += [f"ds_read_b128 {r4(frs[n])}, v{vKr} offset:{o*32*KVT_P+32*s}" for n, (o, s) in enumerate(nd)]
            F.append(SYNC)
            for n, (o, s) in enumerate(nd):
                d = f"v[{OA+16*o}:{OA+16*o+15}]"
                F.append(f"v_mfma_f32_32x32x16_bf16 {d}, {r4(frs[n])}, {r4(PQ+4*s)}, {'0' if o not in first else d}")
                first[o] = 1
        F += [[f"s_lshr_b32 s{sT0}, s{sG}, 1", f"s_mul_i32 s{sT0}, s{sT0}, {5*4096}", f"s_add_u32 s{sT0}, s{sT0}, {48*4096}",
               f"s_add_u32 s{sT0}, s{sT0}, s{sACT}", f"s_and_b32 s{sT1}, s{sG}, 1", f"s_mul_i32 s{sT2}, s{sT1}, {3*4096}",
               f"s_add_u32 s{sT2}, s{sT2}, s{sT0}", f"s_add_u32 s{sT3}, s{sT2}, 4096", f"s_lshl_b32 s{sT1}, s{sT1}, 9",
               f"s_add_u32 s{sT0}, s{sT0}, s{sT1}", f"s_add_u32 s{sT0}, s{sT0}, {2*4096}"], "s_nop 3"]
        Fr = vT
        F += [f"v_add_f32 v{Fr+h}, {f32bits(1e-6):#x}, v{OA+32+h}" for h in range(4)]
        F += [f"v_rcp_f32 v{Fr+h}, v{Fr+h}" for h in range(4)] + ["s_nop 0"]
        F += [f"v_mul_f32 v{Fr+h}, v{Fr+h}, v{vSd}" for h in range(4)]
        F += [f"v_cndmask_b32 v{Fr+4}, v{Fr}, v{Fr+1}, s[{sHIm}:{sHIm+1}]", f"v_cndmask_b32 v{Fr+5}, v{Fr+2}, v{Fr+3}, s[{sHIm}:{sHIm+1}]"]
        OP = 76
        k = 0
        dests = [(sT2, 0), (sT2, 512), (sT3, 0), (sT3, 512), (sT0, 0)]
        for o in range(3):
            for q in range(4):
                if o == 2 and q < 2:
                    continue
                C0 = 8*o + 2*q if o < 2 else 16 + 2*(q-2)
                f = Fr + C0 // 5 if C0 // 5 == (C0+1) // 5 else Fr + 4 + (0 if C0 == 4 else 1)
                a = OA + 16*o + 4*q
                F += [f"v_mul_f32 v{a+r}, v{a+r}, v{f}" for r in range(4)]
                F += [f"v_cvt_pk_bf16_f32 v{OP+k}, v{a}, v{a+1}", f"v_cvt_pk_bf16_f32 v{OP+k+1}, v{a+2}, v{a+3}"]
                k += 2
                if k % 4 == 0:
                    sg, off = dests[k//4 - 1]
                    F.append((f"buffer_store_dwordx4 {r4(OP+k-4)}, v{vSt}, s[{S_WS}:{S_WS+3}], s{sg} offen offset:{off} sc1", "ost"))
        F += [SYNC]*3 + [flag_item("ost", 2, "o_flag")] + fin_items()
        nfg = int(os.environ.get("NFO", "60"))
        run_fill(F)
        print(f"; Q: o work ends at stage {gs}", file=sys.stderr)
        g2_loop(f"L_C{typ}_g2c", gs, 17 - gs)
    e("s_waitcnt lgkmcnt(0)")
    for m in mfmas2(2) + mfmas2(3):
        e(m)
    e.stamp("g2_done")
    e("s_nop 7")
    for nu in range(5):
        e(f"ds_write_b128 v{vLw}, {r4(vG+4*nu)} offset:{nu*64}")
    e("s_waitcnt lgkmcnt(0)")
    RB = 52
    for r in range(3):
        for h in range(2):
            e(f"ds_read_b128 {r4(RB+r*8+h*4)}, v{vLr+r} offset:{h*16}")
    e.wait_vm({"x"})
    for r in range(3):
        e(f"s_waitcnt lgkmcnt({2*(2-r)})")
        b = RB + r*8
        o = 124 + 4*r
        for k in range(4):
            xr = vXd + 4*r + k
            e(f"v_lshlrev_b32 v{vT}, 16, v{xr}")
            e(f"v_and_b32 v{vT+1}, s{sHiMask}, v{xr}")
            e(f"v_fma_f32 v{vT}, v{b+2*k}, v{vRs+r}, v{vT}")
            e(f"v_fma_f32 v{vT+1}, v{b+2*k+1}, v{vRs+r}, v{vT+1}")
            e(f"v_cvt_pk_bf16_f32 v{o+k}, v{vT}, v{vT+1}")
        e(f"buffer_store_dwordx4 {r4(o)}, v{vGo+r}, s[{S_OUT}:{S_OUT+3}], 0 offen{OUTF}")
    e.stamp("end")
    e.stamp("end_real", True)
    e.stamp_flush()
    e("s_endpgm")
    return e


class HR:
    vC1 = 30
    vC2 = 32
    vCs = 40
    vOOB = 45
    vR = 57
    vU = 58
    vD = 64
    vXa = 96
    vSx = 100
    vXd = 104
    sTa, sTb = 96, 97


def tile_ids(e, KV, hw, dA, dB):
    e(f"s_lshl_b32 s{dA}, s{hw}, 7")
    if KV:
        e(f"s_add_u32 s{dB}, s{hw}, 5")
        e(f"s_cmp_lt_u32 s{hw}, 2")
        e(f"s_cselect_b32 s{dB}, s{dB}, 4")
    else:
        e(f"s_min_u32 s{dB}, s{hw}, 2")
        e(f"s_add_u32 s{dB}, s{dB}, 4")
    e(f"s_lshl_b32 s{dB}, s{dB}, 7")


def partial_setup(e, KV):
    H = HR
    WB_OFF, IA, IB, tiles = image_cfg(KV)
    vU = H.vU
    lane_parts(e, KV, vU, vU+1, vT)
    e(f"v_mov_b32 v{H.vR}, v{vT}")
    e(f"s_lshl_b32 s{sT0}, s{sW}, {6 if KV else 9}")
    e(f"s_add_u32 s{sT0}, s{sT0}, {WA_OFF}")
    e(f"v_add_u32 v{H.vC1}, s{sT0}, v{vU}")
    e.para()
    if KV:
        e(f"s_cmp_lt_u32 s{sW}, 2")
        e(f"s_cselect_b64 s[94:95], -1, 0")
        e(f"s_lshl_b32 s{sT0}, s{sW}, 9")
        e(f"s_add_u32 s{sT0}, s{sT0}, {WB_OFF}")
        e(f"v_add_u32 v{vU+1}, s{sT0}, v{vU+1}")
        e(f"v_add_u32 v{vU}, {WA_OFF + 256}, v{vU}")
        for kk in range(4):
            e.para()
            for s in range(2):
                e(f"v_add_u32 v{vU+2}, {kk*IA['kk']+s*IA['s']}, v{vU}")
                e(f"v_add_u32 v{vU+3}, {kk*IB['kk']+s*IB['s']}, v{vU+1}")
                e(f"v_cndmask_b32 v{H.vC2+2*kk+s}, v{vU+2}, v{vU+3}, s[94:95]")
    else:
        e(f"s_min_u32 s{sT0}, s{sW}, 2")
        e(f"s_lshl_b32 s{sT0}, s{sT0}, 6")
        e(f"s_add_u32 s{sT0}, s{sT0}, {WB_OFF}")
        e(f"v_add_u32 v{H.vC2}, s{sT0}, v{vU+1}")
    e.para()
    e(f"v_and_b32 v{vT+1}, 31, v{vLane}")
    e(f"v_lshrrev_b32 v{vT+3}, 1, v{vT+1}")
    e(f"v_and_b32 v{vT+3}, 7, v{vT+3}")
    e(f"v_xor_b32 v{vT+3}, v{vT+3}, v{vHi}")
    e(f"v_lshlrev_b32 v{vT+1}, 7, v{vT+1}")
    e(f"s_lshl_b32 s{sT0}, s{sW}, 12")
    e(f"v_add_u32 v{vT+1}, s{sT0}, v{vT+1}")
    for kk in range(4):
        e(f"v_xor_b32 v{vT+4}, {2*kk}, v{vT+3}")
        e(f"v_lshl_add_u32 v{H.vXa+kk}, v{vT+4}, 4, v{vT+1}")
    e.para()
    tile_ids(e, KV, sW, H.sTa, H.sTb)
    e.para()


def partial_reads(KV):
    H = HR
    WB_OFF, IA, IB, tiles = image_cfg(KV)
    rd = [f"ds_read_b128 {r4(H.vXd+4*kk)}, v{H.vXa+kk}" for kk in range(4)]
    for kk in range(4):
        for h in range(2):
            d = H.vD + 4*kk + 2*h
            rd.append(f"ds_read_b64_tr_b16 v[{d}:{d+1}], v{H.vC1} offset:{kk*IA['kk'] + h*IA['s']}")
    for kk in range(4):
        for h in range(2):
            d = H.vD + 16 + 4*kk + 2*h
            if KV:
                rd.append(f"ds_read_b64_tr_b16 v[{d}:{d+1}], v{H.vC2+2*kk+h}")
            else:
                rd.append(f"ds_read_b64_tr_b16 v[{d}:{d+1}], v{H.vC2} offset:{kk*IB['kk'] + h*IB['s']}")
    return rd


def partial_valu():
    H = HR
    vSx, vCs, a = H.vSx, H.vCs, H.vU
    P = [[f"v_mov_b32 v{vSx+r}, 0" for r in range(4)] + [f"v_mov_b32 v{vCs+r}, 0" for r in range(4)]]
    for r in range(0, 16, 2):
        x = H.vXd + r
        P.append([f"v_lshlrev_b32 v{a}, 16, v{x}", f"v_and_b32 v{a+1}, s{sHiMask}, v{x}",
                  f"v_lshlrev_b32 v{a+2}, 16, v{x+1}", f"v_and_b32 v{a+3}, s{sHiMask}, v{x+1}",
                  f"v_add_f32 v{vSx}, v{vSx}, v{a}", f"v_add_f32 v{vSx+1}, v{vSx+1}, v{a+1}",
                  f"v_fmac_f32 v{vSx+2}, v{a}, v{a}", f"v_fmac_f32 v{vSx+3}, v{a+1}, v{a+1}",
                  f"v_add_f32 v{vSx}, v{vSx}, v{a+2}", f"v_add_f32 v{vSx+1}, v{vSx+1}, v{a+3}",
                  f"v_fmac_f32 v{vSx+2}, v{a+2}, v{a+2}", f"v_fmac_f32 v{vSx+3}, v{a+3}, v{a+3}"])
    for r in range(16):
        x, y = H.vD + r, H.vD + 16 + r
        P.append([f"v_lshlrev_b32 v{a}, 16, v{x}", f"v_and_b32 v{a+1}, s{sHiMask}, v{x}",
                  f"v_lshlrev_b32 v{a+2}, 16, v{y}", f"v_and_b32 v{a+3}, s{sHiMask}, v{y}",
                  f"v_add_f32 v{vCs}, v{vCs}, v{a}", f"v_add_f32 v{vCs+1}, v{vCs+1}, v{a+1}",
                  f"v_add_f32 v{vCs+2}, v{vCs+2}, v{a+2}", f"v_add_f32 v{vCs+3}, v{vCs+3}, v{a+3}"])
    cs = (vSx, vSx+1, vCs, vCs+2)
    P.append([f"v_add_f32 v{vSx}, v{vSx}, v{vSx+1}", f"v_add_f32 v{vSx+1}, v{vSx+2}, v{vSx+3}",
              f"v_add_f32 v{vCs}, v{vCs}, v{vCs+1}", f"v_add_f32 v{vCs+2}, v{vCs+2}, v{vCs+3}"] +
             [f"v_mov_b32 v{a+n}, v{c}" for n, c in enumerate(cs)] + ["s_nop 1"] +
             [f"v_permlane32_swap_b32 v{c}, v{a+n}" for n, c in enumerate(cs)] + ["s_nop 1"] +
             [f"v_add_f32 v{c}, v{c}, v{a+n}" for n, c in enumerate(cs)] +
             [f"v_max_u32 v{c}, 1, v{c}" for c in cs])
    return P


def partial_publish(e):
    H = HR
    vU = H.vU
    slot_offsets(e, sT0, sT3)
    e(f"s_lshl_b32 s{sT1}, s{sW}, 8")
    e(f"s_add_u32 s{sT0}, s{sT0}, s{sT1}")
    e(f"v_lshlrev_b32 v{vU}, 1, v{vL31x4}")
    e(f"v_cndmask_b32 v{vU}, v{vU}, v{H.vOOB}, s[{sHIm}:{sHIm+1}]")
    e(f"v_cndmask_b32 v{vU+1}, v{vL31x4}, v{H.vOOB}, s[{sHIm}:{sHIm+1}]")
    e.vmop(f"buffer_store_dwordx2 v[{H.vSx}:{H.vSx+1}], v{vU}, s[{S_WS}:{S_WS+3}], s{sT0} offen sc1", "pp")
    e(f"s_add_u32 s{sT1}, s{sT3}, s{H.sTa}")
    e(f"s_add_u32 s{sT2}, s{sT3}, s{H.sTb}")
    e.vmop(f"buffer_store_dword v{H.vCs}, v{vU+1}, s[{S_WS}:{S_WS+3}], s{sT1} offen sc1", "pp")
    e.vmop(f"buffer_store_dword v{H.vCs+2}, v{vU+1}, s[{S_WS}:{S_WS+3}], s{sT2} offen sc1", "pp")


def loader_path(typ):
    KV = typ == "KV"
    e = Em("L" + typ)
    H = HR
    WB_OFF, IA, IB, tiles = image_cfg(KV)
    vXsrc = 18
    vWsrcA = 22
    vWsrcB = 27
    vOOB = H.vOOB
    vL16c = 46
    sX2, sA2, sB2 = 77, 78, 48
    sCa, sCb, sR2, sR3 = 47, 50, 51, 56
    sL2 = 57
    sHW = 49
    nA, nB = (5, 2) if KV else (4, 3)
    pA, pB = (3840, 3072) if KV else (3072, 3840)
    lA, lB = (5120, 2048) if KV else (4096, 3072)

    e.label(f"L_L{typ}")
    e.stamp("start_real", True)
    e.stamp("start")
    e(f"v_lshrrev_b32 v{vT}, 3, v{vLane}")
    e(f"v_and_b32 v{vT+1}, 7, v{vLane}")
    e(f"v_lshrrev_b32 v{vT+2}, 1, v{vT}")
    e(f"v_xor_b32 v{vT+1}, v{vT+1}, v{vT+2}")
    e(f"v_xor_b32 v{vT+2}, 4, v{vT+1}")
    e(f"v_mul_u32_u24 v{vT}, 1280, v{vT}")
    e(f"v_lshl_add_u32 v{vXsrc}, v{vT+1}, 4, v{vT}")
    e(f"v_lshl_add_u32 v{vXsrc+1}, v{vT+2}, 4, v{vT}")
    e(f"v_add_u32 v{vXsrc+1}, {8*1280}, v{vXsrc+1}")
    e(f"v_add_u32 v{vXsrc+2}, {16*1280}, v{vXsrc}")
    e(f"v_add_u32 v{vXsrc+3}, {16*1280}, v{vXsrc+1}")
    e(f"s_lshl_b32 s{sT3}, s{sW}, 1")
    e(f"s_lshl_b32 s{sT0}, s{sI}, 2")
    e(f"s_add_u32 s{sT0}, s{sT0}, s{sT3}")
    e(f"s_mul_i32 s{sXoff}, s{sT0}, {32*1280}")
    e(f"s_add_u32 s{sXlim}, s{sXoff}, 1280")
    e(f"s_lshl_b32 s{sT0}, s{sRot}, 7")
    e(f"s_add_u32 s{sXoff}, s{sXoff}, s{sT0}")
    e(f"s_lshl_b32 s{sLx}, s{sT3}, 12")
    e(f"s_lshl_b32 s{sT1}, s{sRot}, 2")
    e(f"s_add_u32 s{sT1}, s{sT1}, s{sT3}")
    e(f"s_mul_i32 s{sWoffA}, s{sT1}, {16*pA}")
    e(f"s_mul_i32 s{sWoffB}, s{sT1}, {16*pB}")
    e(f"s_mul_i32 s{sLa}, s{sT3}, {lA}")
    e(f"s_mul_i32 s{sLb}, s{sT3}, {lB}")
    e(f"s_add_u32 s{sX2}, s{sXoff}, {32*1280}")
    e(f"s_add_u32 s{sA2}, s{sWoffA}, {16*pA}")
    e(f"v_mov_b32 v{vOOB}, {OOB}")

    def rowmajor_src(dst, n, div, magic, pitch, kind):
        for u in range(n):
            e(f"v_add_u32 v{vT}, {64*u}, v{vLane}")
            e(f"v_mul_u32_u24 v{vT+1}, {magic}, v{vT}")
            e(f"v_lshrrev_b32 v{vT+1}, 16, v{vT+1}")
            e(f"v_mul_u32_u24 v{vT+2}, {div}, v{vT+1}")
            e(f"v_sub_u32 v{vT+2}, v{vT}, v{vT+2}")
            e(f"v_cmp_lt_u32 vcc, 9, v{vT+2}")
            e(f"v_mul_u32_u24 v{vT+1}, {pitch}, v{vT+1}")
            e(f"v_lshl_add_u32 v{vT+1}, v{vT+2}, 4, v{vT+1}")
            if kind == "kv":
                e(f"v_cndmask_b32 v{vT+3}, v{vT+6}, v{vT+4}, vcc")
                e(f"v_cmp_lt_u32 vcc, 11, v{vT+2}")
                e(f"v_add_u32 v{vT+1}, s{sT0}, v{vT+1}")
                e(f"s_nop 0")
                e(f"v_cndmask_b32 v{vT+3}, v{vT+3}, v{vT+5}, vcc")
                e(f"v_add_u32 v{dst+u}, v{vT+1}, v{vT+3}")
            else:
                e(f"v_add_u32 v{vT+1}, s{sT0}, v{vT+1}")
                e(f"v_cndmask_b32 v{dst+u}, v{vT+1}, v{vOOB}, vcc")

    def block_base():
        e(f"v_lshrrev_b32 v{vT}, 2, v{vLane}")
        e(f"v_and_b32 v{vT}, 7, v{vT}")
        e(f"v_mul_u32_u24 v{vT}, 3072, v{vT}")
        e(f"v_and_b32 v{vT+1}, 3, v{vLane}")
        e(f"v_lshl_add_u32 v{vT}, v{vT+1}, 4, v{vT}")
        e(f"v_lshl_add_u32 v{vT}, v{vHi}, 6, v{vT}")

    if KV:
        block_base()
        e(f"s_mul_i32 s{sT0}, s{sG}, 384")
        e(f"v_add_u32 v{vWsrcB}, s{sT0}, v{vT}")
        e(f"v_add_u32 v{vWsrcB+1}, {8*3072}, v{vWsrcB}")
        e(f"s_mul_i32 s{sT0}, s{sG}, 160")
        e(f"v_mov_b32 v{vT+4}, 2528")
        e(f"v_mov_b32 v{vT+5}, 2368")
        e(f"v_mov_b32 v{vT+6}, 1280")
        rowmajor_src(vWsrcA, 5, 20, 3277, 3840, "kv")
    else:
        block_base()
        e(f"s_mul_i32 s{sT0}, s{sG}, 384")
        e(f"s_add_u32 s{sT0}, s{sT0}, 128")
        e(f"v_add_u32 v{vWsrcA}, s{sT0}, v{vT}")
        e(f"v_add_u32 v{vWsrcA+1}, 128, v{vWsrcA}")
        e(f"v_add_u32 v{vWsrcA+2}, {8*3072}, v{vWsrcA}")
        e(f"v_add_u32 v{vWsrcA+3}, {8*3072+128}, v{vWsrcA}")
        e(f"s_mul_i32 s{sT0}, s{sG}, 160")
        rowmajor_src(vWsrcB, 3, 12, 5462, 3840, "q")
    e("s_waitcnt lgkmcnt(0)")
    e.srds(["X", "WQKV", "W1", "WS"])
    e(f"s_add_u32 s{sB2}, s{sWoffB}, {16*pB}")
    SW_A = S_WQKV if KV else S_W1
    SW_B = S_W1 if KV else S_WQKV
    stepA, stepB = 64*pA, 64*pB

    def g1_dmas(s):
        if s >= 20:
            return []
        base = (s % 3) * SLOT1
        g = []
        for k in range(2):
            for b in range(4):
                g.append([f"s_add_u32 m0, s{sLx}, {base + k*4096 + b*1024}", "s_nop 0",
                          (f"buffer_load_dwordx4 v{vXsrc+b}, s[{S_X}:{S_X+3}], s{[sXoff, sX2][k]} offen lds", ("st", s))])
            if s < 10:
                for u in range(nA):
                    g.append([f"s_add_u32 m0, s{sLa}, {base + WA_OFF + k*lA + u*1024}", "s_nop 0",
                              (f"buffer_load_dwordx4 v{vWsrcA+u}, s[{SW_A}:{SW_A+3}], s{[sWoffA, sA2][k]} offen lds", ("st", s))])
            if s == 0 or s >= 10:
                for u in range(nB):
                    g.append([f"s_add_u32 m0, s{sLb}, {base + WB_OFF + k*lB + u*1024}", "s_nop 0",
                              (f"buffer_load_dwordx4 v{vWsrcB+u}, s[{SW_B}:{SW_B+3}], s{[sWoffB, sB2][k]} offen lds", ("st", s))])
        so, s2, st, p = (sWoffA, sA2, stepA, pA) if s < 10 else (sWoffB, sB2, stepB, pB)
        g[-1] = g[-1] + [
            f"s_add_u32 s{sXoff}, s{sXoff}, 128", f"s_add_u32 s{so}, s{so}, {st}",
            f"s_cmp_ge_u32 s{sXoff}, s{sXlim}", f"s_cselect_b32 s{sTw}, 1280, 0", f"s_sub_u32 s{sXoff}, s{sXoff}, s{sTw}",
            f"s_cmp_ge_u32 s{so}, {10*st}", f"s_cselect_b32 s{sTw}, {10*st}, 0", f"s_sub_u32 s{so}, s{so}, s{sTw}",
            f"s_add_u32 s{sX2}, s{sXoff}, {32*1280}", f"s_add_u32 s{s2}, s{so}, {16*p}"]
        return g

    e.capture()
    partial_setup(e, KV)
    e(f"s_lshl_b32 s{sT3}, s{sW}, 1")
    e(f"s_mul_i32 s{sA0}, s{sT64}, 68")
    e(f"s_add_u32 s{sA0}, s{sA0}, s{sT3}")
    e(f"s_lshl_b32 s{sA0}, s{sA0}, 12")
    e(f"s_mul_i32 s{sB0}, s{sCc}, 68")
    e(f"s_add_u32 s{sB0}, s{sB0}, s{sT3}")
    e(f"s_mul_i32 s{sB0}, s{sB0}, 5120")
    e(f"s_add_u32 s{sB0}, s{sB0}, {W2R_OFF}")
    e(f"s_mul_i32 s{sL2}, s{sT3}, 9216")
    e.para()
    if ROT2:
        e(f"s_and_b32 s{sT0}, s{sT64}, 3")
        e(f"s_lshl_b32 s{sT1}, s{sT0}, 1")
        e(f"s_add_u32 s{sCa}, s{sCc}, s{sT1}")
        e(f"s_and_b32 s{sCa}, s{sCa}, 7")
        e(f"s_add_u32 s{sR3}, s{sCc}, s{sT0}")
        e(f"s_and_b32 s{sR2}, s{sR3}, 3")
        for _ in range(2):
            e(f"s_sub_u32 s{sT2}, s{sR3}, 5")
            e(f"s_cmp_ge_u32 s{sR3}, 5")
            e(f"s_cselect_b32 s{sR3}, s{sT2}, s{sR3}")
    else:
        e(f"s_mov_b32 s{sCa}, 0")
        e(f"s_mov_b32 s{sR2}, 0")
        e(f"s_mov_b32 s{sR3}, 0")
    e(f"s_mov_b32 s{sCb}, s{sCa}")
    e(f"s_add_u32 s{sR2}, s{sR2}, 8")
    e(f"s_add_u32 s{sR3}, s{sR3}, 12")
    setup = e.end_capture()
    d0 = g1_dmas(0)
    e.op(d0[:10])
    e.merge(d0[10:], setup)
    e.stamp("st0_issued")
    e.op(g1_dmas(1))
    e.stamp("st1_issued")

    def cursor(cur, s):
        if s == 7:
            return [f"s_mov_b32 s{cur}, s{sR2}"]
        if s == 11:
            return [f"s_mov_b32 s{cur}, s{sR3}"]
        lim, lo = (8, 0) if s < 7 else ((12, 8) if s < 11 else (17, 12))
        return [f"s_add_u32 s{cur}, s{cur}, 1", f"s_cmp_eq_u32 s{cur}, {lim}", f"s_cselect_b32 s{cur}, {lo}, s{cur}"]

    def a_dmas(s):
        base = G2S[s % 3]
        g = [f"s_lshl_b32 s{sA}, s{sCa}, 14", f"s_add_u32 s{sA}, s{sA}, s{sA0}"]
        for k in range(2):
            g += [f"s_add_u32 m0, s{sL2}, {base + k*9216}", "s_nop 0"]
            for m in range(4):
                g.append((f"buffer_load_dwordx4 v{[vL16, vL16b][k]}, s[{S_WS}:{S_WS+3}], s{sA} offen offset:{1024*m} sc1 lds", ("g2", s)))
        return g + cursor(sCa, s)

    def b_dmas(s):
        base = G2S[s % 3] + 4096
        g = [f"s_mul_i32 s{sB}, s{sCb}, {4*5120}", f"s_add_u32 s{sB}, s{sB}, s{sB0}"]
        for k in range(2):
            g += [f"s_add_u32 m0, s{sL2}, {base + k*9216}", "s_nop 0"]
            for nu in range(4):
                g.append((f"buffer_load_dwordx4 v{vL16}, s[{S_WS}:{S_WS+3}], s{sB} offen offset:{1024*nu} sc1 lds", ("g2", s)))
            g += [f"s_add_u32 m0, s{sL2}, {base + k*9216 + 4096}", "s_nop 0",
                  (f"buffer_load_dwordx4 v{vL16b}, s[{S_WS}:{S_WS+3}], s{sB} offen sc1 lds", ("g2", s))]
            if k == 0:
                g.append(f"s_add_u32 s{sB}, s{sB}, 5120")
        return g + cursor(sCb, s)

    PV = partial_valu()
    n2 = len(PV) // 2
    for s in range(20):
        e.c(f"--- G1 stage {s} ---")
        e.wait_vm({("st", s)}, lgkm=0)
        e("s_barrier")
        if STAMP or DBGS:
            e.stamp(f"B{s}")
        dm = g1_dmas(s + 2) if s != 10 else []
        va = []
        if s == 0:
            for x in partial_reads(KV):
                e(x)
            e.op(dm.pop(0))
            e.op(dm.pop(0))
            e("s_waitcnt lgkmcnt(0)")
            va = PV[:n2]
        if s == 1:
            va = PV[n2:]
        e.merge(dm, va)
        if s == 1:
            partial_publish(e)
        if s == 9:
            e("s_barrier")
            e.stamp("E1")
            e.op(g1_dmas(12))
        if s == 18:
            e.op(a_dmas(0))
            e.op(b_dmas(0))
        if s == 19:
            e.op(a_dmas(1))
    e("s_barrier")
    e.stamp("E3")
    e.op(b_dmas(1))
    e.op(a_dmas(2))
    e.op(b_dmas(2))
    for s in range(17):
        e.c(f"--- G2 stage {s} ---")
        e.wait_vm({("g2", s)})
        e("s_barrier")
        if STAMP or DBGS:
            e.stamp(f"G{s}")
        n = s + 2
        if s >= 1 and n < 17:
            e.op(a_dmas(n))
            e.op(b_dmas(n))
    e.stamp("end")
    e.stamp("end_real", True)
    e.stamp_flush()
    e("s_endpgm")
    return e


def service_path(typ):
    KV = typ == "KV"
    e = Em("S" + typ)
    H = HR
    vOOB, vU, vD = H.vOOB, H.vU, H.vD
    vOne, vThree = 46, 31
    vPRa, vPQa, vPVa, vPKa, vInA = 47, 48, 49, 50, 51
    vN16_1, vN16_2, vN32_2, vInN = 52, 53, 54, 55
    vTid = 56
    vN32_3 = 44
    vRs = 120
    vRPa = 130
    vPL = 132
    KA = 136
    vRD = 160
    vP2 = 200
    vPRf = 131
    sSW = 49
    sRd = [77, 78]
    S_RP2 = 12
    sP = [[44, 45, 46], [47, 50, 51]]
    sTi = [[60, 61], [62, 63]]

    e.label(f"L_S{typ}")
    e.stamp("start_real", True)
    e.stamp("start")
    e(f"v_mov_b32 v{vOOB}, {OOB}")
    e(f"s_sub_u32 s{sD}, s{sW}, 2")
    partial_setup(e, KV)
    e(f"s_sub_u32 s{sTw}, s{sW}, 2")
    e("s_waitcnt lgkmcnt(0)")
    e.srds(["WS", "DBG"])
    for n in range(2):
        srd = [S_RP, S_RP2][n]
        e(f"s_lshl_b32 s{sT1}, s{sTw}, 5")
        e(f"s_add_u32 s{sT1}, s{sT1}, s{sT64}")
        if n:
            e(f"s_add_u32 s{sT1}, s{sT1}, 64")
        e(f"s_sub_u32 s76, s{sT1}, 48")
        e(f"s_mul_i32 s60, s76, 13108")
        e(f"s_lshr_b32 s60, s60, 16")
        e(f"s_mul_i32 s61, s60, 5")
        e(f"s_sub_u32 s61, s76, s61")
        e(f"s_lshl_b32 s79, s61, 1")
        e(f"s_cmp_lt_u32 s61, 3")
        e(f"s_cselect_b32 s{sT2}, 0, 1")
        e(f"s_sub_u32 s79, s79, s{sT2}")
        e(f"s_add_u32 s{sT2}, s79, 1")
        e(f"s_cmp_eq_u32 s61, 2")
        e(f"s_cselect_b32 s{sT2}, 9, s{sT2}")
        e(f"s_mul_i32 s60, s60, 10")
        e(f"s_add_u32 s79, s79, s60")
        e(f"s_add_u32 s{sT2}, s{sT2}, s60")
        e(f"s_lshr_b32 s76, s{sT1}, 2")
        e(f"s_mul_i32 s76, s76, 12")
        e(f"s_and_b32 s60, s{sT1}, 3")
        e(f"s_lshl_b32 s60, s60, 1")
        e(f"s_add_u32 s76, s76, s60")
        e(f"s_add_u32 s76, s76, 4")
        e(f"s_sub_u32 s60, s{sT1}, 32")
        e(f"s_lshr_b32 s60, s60, 1")
        e(f"s_mul_i32 s60, s60, 12")
        e(f"s_and_b32 s61, s{sT1}, 1")
        e(f"s_lshl_b32 s61, s61, 1")
        e(f"s_add_u32 s60, s60, s61")
        e(f"s_cmp_lt_u32 s{sT1}, 32")
        e(f"s_cselect_b32 s76, s76, s60")
        e(f"s_add_u32 s60, s76, 1")
        e(f"s_cmp_lt_u32 s{sT1}, 48")
        e(f"s_cselect_b32 s79, s76, s79")
        e(f"s_cselect_b32 s{sT2}, s60, s{sT2}")
        e(f"s_cselect_b32 s{srd}, s54, s48")
        e(f"s_cselect_b32 s{srd+1}, s55, s49")
        e(f"s_mov_b32 s{srd+2}, {640*1280}")
        e(f"s_cselect_b32 s{srd+2}, {1536*1280}, s{srd+2}")
        e(f"s_mov_b32 s{srd+3}, 0x00020000")
        e(f"s_mul_i32 s76, s{sCc}, 160")
        e(f"s_mul_i32 s79, s79, {16*1280}")
        e(f"s_mul_i32 s{sT2}, s{sT2}, {16*1280}")
        e(f"s_sub_u32 s{sT2}, s{sT2}, {16*1280}")
        e(f"s_add_u32 s79, s79, s76")
        e(f"s_add_u32 s{sT2}, s{sT2}, s76")
        e(f"s_mul_i32 s{sRd[n]}, s{sCc}, 68")
        e(f"s_add_u32 s{sRd[n]}, s{sRd[n]}, s{sT1}")
        e(f"s_mul_i32 s{sRd[n]}, s{sRd[n]}, 5120")
        e(f"s_add_u32 s{sRd[n]}, s{sRd[n]}, {W2R_OFF}")
        e(f"s_cmp_lt_u32 s{sT1}, 68")
        e(f"s_cselect_b32 s79, s79, {OOB}")
        e(f"s_cselect_b32 s{sT2}, s{sT2}, {OOB}")
        e(f"s_cselect_b32 s{sRd[n]}, s{sRd[n]}, {OOB}")
        e(f"v_mov_b32 v{vT+3}, s79")
        e(f"v_mov_b32 v{vT+4}, s{sT2}")
        for u in range(5):
            e(f"v_add_u32 v{vU}, {64*u}, v{vLane}")
            e(f"v_mul_u32_u24 v{vT+1}, 6554, v{vU}")
            e(f"v_lshrrev_b32 v{vT+1}, 16, v{vT+1}")
            e(f"v_mul_u32_u24 v{vT+2}, 10, v{vT+1}")
            e(f"v_sub_u32 v{vT+2}, v{vU}, v{vT+2}")
            e(f"v_cmp_lt_u32 vcc, 15, v{vT+1}")
            e(f"v_mul_u32_u24 v{vT+1}, 1280, v{vT+1}")
            e(f"v_lshl_add_u32 v{vT+1}, v{vT+2}, 4, v{vT+1}")
            e(f"v_cndmask_b32 v{vT+5}, v{vT+3}, v{vT+4}, vcc")
            e(f"v_add_u32 v{vRs+5*n+u}, v{vT+1}, v{vT+5}")
    e(f"s_mov_b32 s{sSW}, s{sTw}")
    e(f"s_mul_i32 s{sLx}, s{sSW}, {10240 if KV else SLOT1}")
    e(f"s_add_u32 s{sLa}, s{sLx}, {RP_LDS if KV else SLOT1 + 32768}")
    e(f"v_lshrrev_b32 v{vU}, 4, v{vLane}")
    e(f"v_and_b32 v{vU}, 1, v{vU}")
    e(f"v_lshl_add_u32 v{vU}, v{vU}, 2, v{H.vR}")
    e(f"v_lshl_add_u32 v{vU}, v{vHi}, 4, v{vU}")
    e(f"v_mul_u32_u24 v{vU}, 160, v{vU}")
    e(f"v_and_b32 v{vT+1}, 3, v{vLane}")
    e(f"v_lshl_add_u32 v{vU}, v{vT+1}, 3, v{vU}")
    e(f"v_add_u32 v{vRPa}, s{sLa}, v{vU}")
    e(f"v_subrev_u32 v{vTid}, 384, v0")
    e(f"v_mov_b32 v{vOne}, 1")
    e(f"v_mov_b32 v{vThree}, 3")
    e(f"v_cmp_gt_u32 vcc, 2, v{vTid}")
    e(f"v_lshlrev_b32 v{vT+1}, 7, v{vLane}")
    e(f"v_mov_b32 v{vT+3}, 128")
    e(f"v_cndmask_b32 v{vInA}, v{vOOB}, v{vT+1}, vcc")
    e(f"v_cndmask_b32 v{vInN}, 0, v{vT+3}, vcc")
    e(f"s_lshr_b32 s{sT0}, s{sT64}, 1")
    e(f"s_lshl_b32 s{sT0}, s{sT0}, 11")
    e(f"s_and_b32 s{sT1}, s{sT64}, 1")
    e(f"s_lshl_b32 s{sT1}, s{sT1}, 5")
    e(f"s_add_u32 s{sT0}, s{sT0}, s{sT1}")
    e(f"s_add_u32 s{sT0}, s{sT0}, {FLG_OFF}")
    e(f"v_lshrrev_b32 v{vT+1}, 1, v{vLane}")
    e(f"v_and_b32 v{vT+3}, 1, v{vLane}")
    e(f"v_lshlrev_b32 v{vT+3}, 4, v{vT+3}")
    e(f"v_add_u32 v{vT+3}, s{sT0}, v{vT+3}")
    e(f"v_lshl_add_u32 v{vT+4}, v{vT+1}, 8, v{vT+3}")
    e(f"v_add_u32 v{vT+5}, 128, v{vT+4}")
    e(f"v_cmp_gt_u32 vcc, 16, v{vTid}")
    e(f"v_mov_b32 v{vT+3}, 2")
    e("s_nop 0")
    e(f"v_cndmask_b32 v{vPVa}, v{vOOB}, v{vT+4}, vcc")
    e(f"v_cndmask_b32 v{vPQa}, v{vOOB}, v{vT+5}, vcc")
    e(f"v_cndmask_b32 v{vN16_1}, 0, v{vOne}, vcc")
    e(f"v_cndmask_b32 v{vN16_2}, 0, v{vT+3}, vcc")
    e(f"s_lshr_b32 s{sT0}, s{sCc}, 1")
    e(f"s_lshl_b32 s{sT0}, s{sT0}, 7")
    e(f"s_and_b32 s{sT1}, s{sCc}, 1")
    e(f"s_lshl_b32 s{sT1}, s{sT1}, 13")
    e(f"s_add_u32 s{sT0}, s{sT0}, s{sT1}")
    e(f"s_add_u32 s{sT0}, s{sT0}, {FLG_OFF + 96}")
    e(f"v_and_b32 v{vT+1}, 3, v{vLane}")
    e(f"v_lshlrev_b32 v{vT+1}, 11, v{vT+1}")
    e(f"v_and_b32 v{vT+4}, 4, v{vLane}")
    e(f"v_lshl_add_u32 v{vT+1}, v{vT+4}, 12, v{vT+1}")
    e(f"v_and_b32 v{vT+4}, 24, v{vLane}")
    e(f"v_lshl_add_u32 v{vT+1}, v{vT+4}, 6, v{vT+1}")
    e(f"v_add_u32 v{vT+1}, s{sT0}, v{vT+1}")
    e(f"v_cmp_gt_u32 vcc, 32, v{vTid}")
    e(f"v_mov_b32 v{vPRf}, v{vT+1}")
    e("s_nop 0")
    e(f"v_cndmask_b32 v{vPRa}, v{vOOB}, v{vT+1}, vcc")
    e(f"v_cndmask_b32 v{vN32_2}, 0, v{vT+3}, vcc")
    e(f"v_lshlrev_b32 v{vPL}, 2, v{vL31x4}")
    e(f"v_lshl_add_u32 v{vPL}, v{vHi}, 10, v{vPL}")
    e(f"s_lshl_b32 s{sT0}, s{sSW}, 9")
    e(f"v_add_u32 v{vPL}, s{sT0}, v{vPL}")
    e(f"v_and_b32 v{vT+1}, 0x3ff, v{vPL}")
    e(f"v_cmp_gt_u32 vcc, 896, v{vT+1}")
    e(f"v_subrev_u32 v{vT+2}, 512, v{vPL}")
    e(f"s_mul_i32 s{sP[0][0]}, s{sI}, 10240")
    e(f"s_add_u32 s{sP[0][0]}, s{sP[0][0]}, {STP_OFF}")
    e(f"v_cndmask_b32 v{vPL+1}, v{vT+2}, v{vPL}, vcc")
    e(f"s_mul_i32 s{sP[0][1]}, s{sJ}, 10240")
    e(f"s_add_u32 s{sP[0][1]}, s{sP[0][1]}, {CSP_OFF}")
    e(f"v_lshlrev_b32 v{vPL+3}, 1, v{vT+1}")
    e(f"v_lshl_add_u32 v{vPL+3}, v{vHi}, 4, v{vPL+3}")
    e(f"v_add_u32 v{vPL+3}, {EXT_LDS}, v{vPL+3}")
    e(f"v_lshrrev_b32 v{vT+1}, 3, v{vT+1}")
    e(f"v_add_u32 v{vPL+2}, v{vT+1}, v{vHi}")
    if not KV:
        e(f"s_lshl_b32 s{sT0}, s{sG}, 8")
        e(f"s_add_u32 s{sT0}, s{sT0}, {FLG_OFF + 96 + 4}")
        e(f"v_lshrrev_b32 v{vT+1}, 1, v{vLane}")
        e(f"v_lshlrev_b32 v{vT+1}, 11, v{vT+1}")
        e(f"v_and_b32 v{vT+3}, 1, v{vLane}")
        e(f"v_lshl_add_u32 v{vT+1}, v{vT+3}, 4, v{vT+1}")
        e(f"v_add_u32 v{vT+1}, s{sT0}, v{vT+1}")
        e(f"v_cndmask_b32 v{vPKa}, v{vT+1}, v{vOOB}, s[{sHIm}:{sHIm+1}]")
        e(f"v_cndmask_b32 v{vN32_3}, v{vThree}, 0, s[{sHIm}:{sHIm+1}]")
        for rnd in range(4):
            A1 = KA + 2*rnd
            A2 = A1 + 1
            e(f"v_add_u32 v{vT}, {128*rnd}, v{vTid}")
            e(f"v_mul_u32_u24 v{vT+1}, 3121, v{vT}")
            e(f"v_lshrrev_b32 v{vT+1}, 16, v{vT+1}")
            e(f"v_mul_u32_u24 v{vT+2}, 21, v{vT+1}")
            e(f"v_sub_u32 v{vT+2}, v{vT}, v{vT+2}")
            e(f"v_mul_u32_u24 v{vT+3}, 13108, v{vT+1}")
            e(f"v_lshrrev_b32 v{vT+3}, 16, v{vT+3}")
            e(f"v_mul_u32_u24 v{vT+4}, 20, v{vT+3}")
            e(f"v_add_u32 v{vT+4}, v{vT+4}, v{vT+2}")
            e(f"v_add_u32 v{vT+5}, 16, v{vT+4}")
            e(f"v_cmp_lt_u32 vcc, 63, v{vT+4}")
            e(f"v_add_u32 v{vT+3}, 64, v{vT+3}")
            e(f"v_lshlrev_b32 v{KA+8+rnd}, 4, v{vT}")
            e(f"v_cndmask_b32 v{vT+4}, v{vT+4}, v{vT+5}, vcc")
            e(f"v_cmp_eq_u32 vcc, 20, v{vT+2}")
            e(f"v_add_u32 v{vT+5}, 4, v{vT+3}")
            e("s_nop 0")
            e(f"v_cndmask_b32 v{vT+5}, v{vT+4}, v{vT+5}, vcc")
            e(f"v_cndmask_b32 v{vT+4}, v{vT+4}, v{vT+3}, vcc")
            e(f"v_lshrrev_b32 v{vT+2}, 2, v{vT+1}")
            e(f"v_lshlrev_b32 v{vT+2}, 5, v{vT+2}")
            e(f"v_and_b32 v{vT+3}, 1, v{vT+1}")
            e(f"v_lshl_add_u32 v{vT+2}, v{vT+3}, 4, v{vT+2}")
            e(f"v_and_b32 v{vT+3}, 2, v{vT+1}")
            e(f"v_lshl_add_u32 v{vT+2}, v{vT+3}, 2, v{vT+2}")
            e(f"v_add_u32 v{vT+2}, {KVT_LDS}, v{vT+2}")
            e(f"v_mad_u32_u24 v{A1}, v{vT+4}, s{sKVTP}, v{vT+2}")
            e(f"v_mad_u32_u24 v{A2}, v{vT+5}, s{sKVTP}, v{vT+2}")
        e(f"v_mov_b32 v{vT}, {KVT_LDS + 100*KVT_P}")
        e(f"v_cmp_gt_u32 vcc, 36, v{vTid}")
        e("s_nop 1")
        e(f"v_cndmask_b32 v{KA+6}, v{vT}, v{KA+6}, vcc")
        e(f"v_cndmask_b32 v{KA+7}, v{vT}, v{KA+7}, vcc")
        e(f"v_cndmask_b32 v{KA+11}, v{vOOB}, v{KA+11}, vcc")
    e.stamp("setup_done")

    PLI = []
    for k in range(5):
        PLI.append([f"s_add_u32 s{sT0}, s{sP[0][0]}, {k*2048}", f"buffer_load_dwordx4 {r4(vD+4*k)}, v{vPL}, s[{S_WS}:{S_WS+3}], s{sT0} offen sc1"])
        PLI.append([f"s_add_u32 s{sT0}, s{sP[0][1]}, {k*2048}", f"buffer_load_dwordx4 {r4(vD+20+4*k)}, v{vPL+1}, s[{S_WS}:{S_WS+3}], s{sT0} offen sc1"])

    def partial_loads(track, lo=0, hi=10):
        for (a_, ins) in PLI[lo:hi]:
            e(a_)
            if track:
                e.vmop(ins, "pl")
            else:
                e(ins)

    def partial_validate():
        regs = list(range(vD, vD+40))
        e.wait_vm({"pl"})
        e(f"s_mov_b32 s{sSpin}, 0")
        e.label(f"L_pv{typ}")
        e(f"v_min_u32 v{vU}, v{regs[0]}, v{regs[1]}")
        e(f"v_min_u32 v{vU+1}, v{regs[2]}, v{regs[3]}")
        for k in range(4, 40, 4):
            e(f"v_min3_u32 v{vU}, v{vU}, v{regs[k]}, v{regs[k+1]}")
            e(f"v_min3_u32 v{vU+1}, v{vU+1}, v{regs[k+2]}, v{regs[k+3]}")
        e(f"v_min_u32 v{vU}, v{vU}, v{vU+1}")
        e(f"v_cmp_eq_u32 vcc, 0, v{vU}")
        e(f"s_add_u32 s{sSpin}, s{sSpin}, 1")
        e(f"s_cmp_lt_u32 s{sSpin}, 0x20000")
        e(f"s_cselect_b64 s[94:95], -1, 0")
        e(f"s_and_b64 vcc, vcc, s[94:95]")
        e(f"s_cbranch_vccz L_pvok{typ}")
        e("s_sleep 2")
        partial_loads(False)
        e("s_waitcnt vmcnt(0)")
        e(f"s_branch L_pv{typ}")
        e.label(f"L_pvok{typ}")

    def partial_finish():
        D, CC = vD, vD + 20
        for k in range(1, 5):
            for r in range(4):
                e(f"v_add_f32 v{D+r}, v{D+r}, v{D+4*k+r}")
                e(f"v_add_f32 v{CC+r}, v{CC+r}, v{CC+4*k+r}")
        e("s_nop 1")
        for (x, y) in ((D, D+2), (D+1, D+3), (CC, CC+2), (CC+1, CC+3)):
            e(f"v_permlane32_swap_b32 v{x}, v{y}")
        e("s_nop 1")
        C0, C1 = CC + 4, CC + 12
        e(f"v_add_f32 v{D}, v{D}, v{D+2}")
        e(f"v_add_f32 v{D+1}, v{D+1}, v{D+3}")
        e(f"v_add_f32 v{C0}, v{CC}, v{CC+2}")
        e(f"v_add_f32 v{C1}, v{CC+1}, v{CC+3}")
        O = D + 4
        sp = []
        for c in (C0, C1):
            u = c + 4
            x = c + 2
            sp.append([f"v_and_b32 v{u}, s{sHiMask}, v{c}", f"v_sub_f32 v{u}, v{c}, v{u}", f"v_lshrrev_b32 v{c}, 16, v{c}",
                       f"v_and_or_b32 v{x}, v{u}, s{sHiMask}, v{c}", f"v_and_b32 v{u+1}, s{sHiMask}, v{u}",
                       f"v_sub_f32 v{u+1}, v{u}, v{u+1}", f"v_lshrrev_b32 v{x+1}, 16, v{u+1}"])
        sp = [y for p in zip(*sp) for y in p]
        st = [f"v_mul_f32 v{vT+5}, {f32bits(1.0/640):#x}, v{D}", f"v_mul_f32 v{vT+4}, {f32bits(1.0/640):#x}, v{D+1}",
              f"v_fma_f32 v{vT+4}, -v{vT+5}, v{vT+5}, v{vT+4}", f"v_max_f32 v{vT+4}, 0, v{vT+4}",
              f"v_cvt_pk_bf16_f32 v{vT+2}, v{vT+5}, v{vT+4}", f"v_lshlrev_b32 v{vT+3}, 16, v{vT+2}",
              f"v_and_b32 v{vT+4}, s{sHiMask}, v{vT+2}", f"v_add_f32 v{vT+4}, {f32bits(1e-5):#x}, v{vT+4}",
              f"v_cvt_pk_bf16_f32 v{vT+4}, v{vT+4}, v{vT+4}", f"v_and_b32 v{vT+4}, s{sHiMask}, v{vT+4}",
              f"v_sqrt_f32 v{vT+4}, v{vT+4}", f"v_xor_b32 v{vT+2}, 0x80000000, v{vT+3}",
              f"v_cvt_pk_bf16_f32 v{vT+4}, v{vT+4}, v{vT+4}", f"v_and_b32 v{O+2}, s{sHiMask}, v{vT+4}",
              f"v_rcp_f32 v{O+1}, v{O+2}", f"v_lshrrev_b32 v{vT+4}, 16, v{vT+2}",
              f"v_mul_f32 v{O+3}, {f32bits(LOG2E):#x}, v{O+1}", f"v_or_b32 v{O}, v{vT+2}, v{vT+4}"]
        while st or sp:
            if st:
                e(st.pop(0))
            if sp:
                e(sp.pop(0))
        e(f"v_lshrrev_b32 v{vT+1}, 5, v{vPL+2}")
        e(f"v_mul_u32_u24 v{vT+1}, 768, v{vT+1}")
        e(f"v_add_u32 v{vT+1}, {STAT_LDS}, v{vT+1}")
        e(f"v_and_b32 v{vT+3}, 31, v{vPL+2}")
        e(f"v_lshl_add_u32 v{vT+2}, v{vT+3}, 2, v{vT+1}")
        e(f"v_lshl_add_u32 v{vT+1}, v{vT+3}, 4, v{vT+1}")
        e(f"ds_write_b128 v{vT+1}, {r4(O)}")
        if KV:
            e(f"ds_write_b32 v{vT+2}, v{O+3} offset:512")
            e(f"ds_write_b32 v{vT+2}, v{O+1} offset:640")
        e(f"ds_write_b64 v{vPL+3}, v[{C0+2}:{C0+3}]")
        e(f"ds_write_b64 v{vPL+3}, v[{C1+2}:{C1+3}] offset:8")

    def kv_atomics():
        e(f"v_lshlrev_b32 v{vU}, 2, v{vTid}")
        e(f"v_add_u32 v{vU+1}, {CP_LDS}, v{vU}")
        e(f"v_add_u32 v{vU+2}, 4096, v{vU}")
        e(f"v_add_u32 v{vU+3}, {13*512}, v{vU}")
        e(f"v_cmp_gt_u32 vcc, 16, v{vTid}")
        e(f"s_lshl_b32 s{sT1}, s{sG}, 13")
        e(f"s_add_u32 s{sT1}, s{sT1}, {KVA_OFF}")
        e(f"v_cndmask_b32 v{vU+3}, v{vOOB}, v{vU+3}, vcc")
        for k in range(14):
            for ww in range(4):
                e(f"ds_read_b32 v{vD+4*k+ww}, v{vU+1} offset:{CPW[ww]+k*512}")
        for k in range(14):
            e(f"s_waitcnt lgkmcnt({min(15, 4*(13-k))})")
            b = vD + 4*k
            e(f"v_add_f32 v{b}, v{b}, v{b+1}")
            e(f"v_add_f32 v{b+2}, v{b+2}, v{b+3}")
            e(f"v_add_f32 v{b}, v{b}, v{b+2}")
            if k < 8:
                e.vmop(f"buffer_atomic_add_f32 v{b}, v{vU}, s[{S_WS}:{S_WS+3}], s{sT1} offen offset:{k*512}", "kva")
            elif k < 13:
                e.vmop(f"buffer_atomic_add_f32 v{b}, v{vU+2}, s[{S_WS}:{S_WS+3}], s{sT1} offen offset:{(k-8)*512}", "kva")
            else:
                e.vmop(f"buffer_atomic_add_f32 v{b}, v{vU+3}, s[{S_WS}:{S_WS+3}], s{sT1} offen", "kva")

    PV = partial_valu()
    n2 = len(PV) // 2
    def cap(fn, *a):
        e.capture()
        fn(*a)
        return [x for p in e.end_capture() for x in p]
    fin = cap(partial_finish)
    nfin = -(-len(fin) // 2)
    kvr = SCHED.get("kv_ready", 99) if KV else 99
    acts = {}

    def at(k, fn):
        acts.setdefault(k, []).append(fn)

    if KV:
        at(kvr, kv_atomics)

        def kvf():
            e.wait_vm({"kva"})
            e.flag_store(3, 4)
            e.stamp("kv_flag")
        at(kvr + KVFD, kvf)

    def rp_issue():
        for n in range(2):
            for u in range(5):
                e(f"s_add_u32 m0, s{sLa}, {n*5120 + u*1024}")
                e("s_nop 0")
                e.vmop(f"buffer_load_dwordx4 v{vRs+5*n+u}, s[{[S_RP, S_RP2][n]}:{[S_RP, S_RP2][n]+3}], 0 offen lds", "rp")

    def rp_read():
        e.wait_vm({"rp"})
        for n in range(2):
            for nu in range(5):
                for h in range(2):
                    d = vRD + 20*n + 4*nu + 2*h
                    e(f"ds_read_b64_tr_b16 v[{d}:{d+1}], v{vRPa} offset:{n*5120+32*nu+1280*h}")

    def rp_store(lst):
        for (n, nu) in lst:
            if nu < 4:
                e.vmop(f"buffer_store_dwordx4 {r4(vRD+20*n+4*nu)}, v{vL16}, s[{S_WS}:{S_WS+3}], s{sRd[n]} offen offset:{1024*nu} sc1", "rps")
            else:
                e.vmop(f"buffer_store_dwordx4 {r4(vRD+20*n+4*nu)}, v{vL16b}, s[{S_WS}:{S_WS+3}], s{sRd[n]} offen sc1", "rps")

    def kvt_zero():
        e(f"v_lshlrev_b32 v{vT}, 4, v{vTid}")
        e(f"v_add_u32 v{vT}, {KVT_LDS}, v{vT}")
        for r in range(4):
            e(f"v_mov_b32 v{vT+2+r}, 0")
        for q in range(10):
            e(f"ds_write_b128 v{vT}, v[{vT+2}:{vT+5}] offset:{q*2048}")

    if not KV:
        kvt_zero()
    for s in range(20):
        e.c(f"--- G1 stage {s} ---")
        e("s_waitcnt lgkmcnt(0)")
        e("s_barrier")
        if s == 0:
            for x in partial_reads(KV):
                e(x)
            rp_issue()
            e("s_waitcnt lgkmcnt(0)")
            e.op(PV[:n2+4])
            e.poll_issue(vInA, S_DBG, "pin")
        if s == 1:
            e.op(PV[n2+4:])
            partial_publish(e)
            e.stamp("published")
        if s == 2:
            rp_read()
        if 3 <= s <= 5:
            rp_store([[(0, 0), (0, 1), (1, 0), (1, 1)], [(0, 2), (0, 3), (1, 2), (1, 3)], [(0, 4), (1, 4)]][s-3])
        if s == 3:
            e.poll_check(vInA, S_DBG, vInN, "pin")
        if s == 5:
            partial_loads(True, 0, 4)
        if s == 6:
            partial_loads(True, 4, 10)
        if s == 7:
            e.wait_vm({"rps"})
        if s == 8:
            e.flag_store(2)
            partial_validate()
            e.stamp("validated")
            for x in fin[:36]:
                e(x)
        if s == 9:
            for x in fin[36:]:
                e(x)
            e("s_waitcnt lgkmcnt(0)")
            e("s_barrier")
            e.stamp("E1")
            if KV and TOUCH:
                e(f"v_cndmask_b32 v{vU}, v{vPRf}, v{vOOB}, s[{sHIm}:{sHIm+1}]")
                e(f"v_mov_b32 v{vU+2}, 2")
                e(f"v_cndmask_b32 v{vU+1}, v{vU+2}, 0, s[{sHIm}:{sHIm+1}]")
                e.poll_issue(vU, S_WS, "pr0")
                e.poll_check(vU, S_WS, vU+1, "pr0")
                e.stamp("PR0_ok")
                e(f"s_and_b32 s{sT0}, s{sT64}, 3")
                e(f"s_mul_i32 s{sT0}, s{sT0}, {680*128}")
                e(f"s_mul_i32 s{sT1}, s{sCc}, {68*5120}")
                e(f"s_add_u32 s{sT0}, s{sT0}, s{sT1}")
                e(f"s_add_u32 s{sT0}, s{sT0}, {W2R_OFF}")
                e(f"v_lshlrev_b32 v{vU}, 7, v{vTid}")
                for k in range(TOUCH):
                    e.vmop(f"buffer_load_dword v{vRD+k}, v{vU}, s[{S_WS}:{S_WS+3}], s{sT0} offen sc1", "tp")
                    e(f"s_add_u32 s{sT0}, s{sT0}, {128*128}")
                e.stamp("touched")
        for fn in acts.get(s, []):
            fn()
        if s == 15:
            e.poll_issue(vPQa, S_WS, "pq", dst=vP2)
            e.poll_issue(vPRa, S_WS, "pr")
        if s == 17:
            e.poll_check(vPQa, S_WS, vN16_1, "pq", dst=vP2)
            e.poll_check(vPRa, S_WS, vN32_2, "pr")
            e.stamp("PQ_ok")
    e("s_waitcnt lgkmcnt(0)")
    e("s_barrier")
    for fn in acts.get(20, []):
        fn()
    KS = OST - 1
    for s in range(17):
        e.c(f"--- G2 stage {s} ---")
        e("s_waitcnt lgkmcnt(0)")
        e("s_barrier")
        for fn in acts.get(21 + s, []):
            fn()
        if s == 4:
            e.poll_issue(vPVa, S_WS, "pv")
        if s == 5:
            e.poll_check(vPVa, S_WS, vN16_1, "pv")
            e.stamp("PV_ok")
        if s == 8:
            e.poll_issue(vPQa, S_WS, "po")
        if s == 9:
            e.poll_check(vPQa, S_WS, vN16_2, "po")
            e.stamp("PO_ok")
        if not KV:
            if s == KS - 3:
                e.poll_issue(vPKa, S_WS, "pk", dst=vP2)
            if s == KS - 2:
                e.poll_check(vPKa, S_WS, vN32_3, "pk", dst=vP2)
                e.stamp("PK_ok")
                e(f"s_lshl_b32 s{sT0}, s{sG}, 13")
                e(f"s_add_u32 s{sT0}, s{sT0}, {KVA_OFF}")
                for rnd in range(4):
                    e.vmop(f"buffer_load_dwordx4 {r4(vD+4*rnd)}, v{KA+8+rnd}, s[{S_WS}:{S_WS+3}], s{sT0} offen sc1", "kv")
            if s == KS:
                e.wait_vm({"kv"})
                for rnd in range(4):
                    b = vD + 4*rnd
                    e(f"v_cvt_pk_bf16_f32 v{vD+16+2*rnd}, v{b}, v{b+1}")
                    e(f"v_cvt_pk_bf16_f32 v{vD+17+2*rnd}, v{b+2}, v{b+3}")
                    e(f"ds_write_b64 v{KA+2*rnd}, v[{vD+16+2*rnd}:{vD+17+2*rnd}]")
                    e(f"ds_write_b64 v{KA+1+2*rnd}, v[{vD+16+2*rnd}:{vD+17+2*rnd}]")
                e.stamp("KVT_done")
    e.stamp("end")
    e.stamp("end_real", True)
    e.stamp_flush()
    e("s_endpgm")
    e.label(f"L_S{typ}_end")
    return e


def gen():
    e = Em("top")
    K = NAME + "_kernel"
    e.L.append(f".globl {K}\n.p2align 8\n.type {K},@function\n{K}:")
    e("s_load_dwordx4 s[44:47], s[0:1], 0")
    e("s_load_dwordx2 s[48:49], s[0:1], 16")
    e("s_load_dwordx4 s[52:55], s[0:1], 32")
    e("s_load_dwordx2 s[50:51], s[0:1], 48")
    e("s_load_dwordx2 s[56:57], s[0:1], 56")
    e("s_load_dwordx2 s[58:59], s[0:1], 64")
    e("s_cmp_ge_u32 s2, 256")
    e("s_cbranch_scc1 L_exit")
    e(f"v_and_b32 v{vLane}, 63, v0")
    e(f"v_lshrrev_b32 v{vT}, 6, v0")
    e(f"v_lshrrev_b32 v{vHi}, 5, v{vLane}")
    e(f"v_readfirstlane_b32 s{sT3}, v{vT}")
    e(f"v_and_b32 v{vL31x4}, 31, v{vLane}")
    e(f"v_lshlrev_b32 v{vL31x4}, 2, v{vL31x4}")
    if STAMP or DBGS:
        e(f"v_mov_b32 v{vStamp}, 0")
    if DBGS:
        e("s_load_dwordx2 s[100:101], s[0:1], 56")
    e(f"s_and_b32 s{sT0}, s2, 1")
    e(f"s_lshl_b32 s{sT0}, s{sT0}, 3")
    e(f"s_bfe_u32 s{sT2}, s2, 0x30003")
    e(f"s_add_u32 s{sI}, s{sT0}, s{sT2}")
    e(f"s_bfe_u32 s{sT0}, s2, 0x20001")
    e(f"s_lshl_b32 s{sT0}, s{sT0}, 2")
    e(f"s_lshr_b32 s{sT1}, s2, 6")
    e(f"s_add_u32 s{sJ}, s{sT0}, s{sT1}")
    e(f"s_lshr_b32 s{sG}, s{sJ}, 1")
    e(f"s_and_b32 s{sT0}, s2, 7")
    e(f"s_lshl_b32 s{sT0}, s{sT0}, 2")
    e(f"s_bfe_u32 s{sT64}, s2, 0x20003")
    e(f"s_add_u32 s{sT64}, s{sT64}, s{sT0}")
    e(f"s_lshr_b32 s{sCc}, s2, 5")
    e(f"s_and_b32 s{sW}, s{sT3}, 3")
    e(f"s_lshr_b32 s{sRole}, s{sT3}, 2")
    e(f"s_mul_i32 s{sRot}, s{sJ}, 3")
    e(f"s_add_u32 s{sRot}, s{sRot}, s{sI}")
    e(f"s_mul_i32 s{sT2}, s{sRot}, 205")
    e(f"s_lshr_b32 s{sT2}, s{sT2}, 11")
    e(f"s_mul_i32 s{sT2}, s{sT2}, 10")
    e(f"s_sub_u32 s{sRot}, s{sRot}, s{sT2}")
    e(f"s_lshl_b32 s{sFlag}, s{sI}, 4")
    e(f"s_add_u32 s{sFlag}, s{sFlag}, s{sJ}")
    e(f"s_lshl_b32 s{sFlag}, s{sFlag}, 3")
    e(f"s_add_u32 s{sFlag}, s{sFlag}, s{sT3}")
    e(f"s_lshl_b32 s{sFlag}, s{sFlag}, 4")
    e(f"s_add_u32 s{sFlag}, s{sFlag}, {FLG_OFF}")
    e(f"v_mov_b32 v{vT}, {OOB}")
    e(f"v_cmp_eq_u32 vcc, 0, v{vLane}")
    e(f"v_lshlrev_b32 v{vL16}, 4, v{vLane}")
    e(f"v_add_u32 v{vL16b}, 4096, v{vL16}")
    e(f"v_cndmask_b32 v{vFl0}, v{vT}, 0, vcc")
    e(f"s_mov_b32 s{sKVTP}, 176")
    e(f"s_mov_b32 s{sC}, {f32bits(1e-6/LN2):#x}")
    e(f"s_mov_b32 s{sLn2}, {f32bits(LN2):#x}")
    e(f"s_mov_b32 s{sHiMask}, 0xffff0000")
    e(f"s_mov_b32 s{sHIm}, 0")
    e(f"s_mov_b32 s{sHIm+1}, -1")
    e(f"s_mov_b32 s{sL16m}, 0xffff0000")
    e(f"s_mov_b32 s{sL16m+1}, 0xffff0000")
    e(f"s_and_b32 s{sT0}, s{sJ}, 1")
    e(f"s_lshl_b32 s{sT0}, s{sT0}, 2")
    e(f"s_lshr_b32 s{sT1}, s{sT3}, 1")
    e(f"s_add_u32 s{sT0}, s{sT0}, s{sT1}")
    e(f"s_cmp_eq_u32 s{sT0}, 2")
    e("s_cbranch_scc1 L_LKV")
    e(f"s_cmp_eq_u32 s{sT0}, 6")
    e("s_cbranch_scc1 L_LQ")
    e(f"s_cmp_eq_u32 s{sT0}, 3")
    e("s_cbranch_scc1 L_SKV")
    e(f"s_cmp_eq_u32 s{sT0}, 7")
    e("s_cbranch_scc1 L_SQ")
    e(f"s_cmp_ge_u32 s{sT0}, 4")
    e("s_cbranch_scc1 L_CQ")
    body = "".join(p.text() for p in [compute_path("KV"), loader_path("KV"), service_path("KV"),
                                      compute_path("Q"), loader_path("Q"), service_path("Q")])
    print(SCHED, file=sys.stderr)
    assert SCHED["Qh_flag"] <= 16 and SCHED["KVh_flag"] <= 4 and SCHED["Qo_flag"] <= 8
    return e.text() + body + "L_exit:\n    s_endpgm\n"


def main():
    K = NAME + "_kernel"
    out = ["; generated by gen/gen7.py -- LN + linear attention + FFN, one persistent kernel (256 workgroups x 8 waves)",
           "; @launch grid=(256,1,1) block=(512,1,1) lds=163840",
           '.amdgcn_target "amdgcn-amd-amdhsa--gfx950"', ".text", gen(),
           '.section .rodata,"a"', ".p2align 6",
           f""".amdhsa_kernel {K}
  .amdhsa_next_free_vgpr 256
  .amdhsa_next_free_sgpr 102
  .amdhsa_accum_offset 256
  .amdhsa_group_segment_fixed_size 0
  .amdhsa_kernarg_size 72
  .amdhsa_user_sgpr_count 2
  .amdhsa_user_sgpr_kernarg_segment_ptr 1
  .amdhsa_system_sgpr_workgroup_id_x 1
.end_amdhsa_kernel
"""]
    return "\n".join(out)


if __name__ == "__main__":
    p = sys.argv[1] if len(sys.argv) > 1 else f"cdna_kernels/{NAME}.s"
    open(p, "w").write(main())
    print("wrote", p)
```

```python
import sys, re
src, dst, what, X = sys.argv[1], sys.argv[2], sys.argv[3], int(sys.argv[4])
NAME="parallel_sum__linear_attn_block__dense_activation_relu__prompt_kernel"
t=open(src).read()
t=t.replace("; @launch grid=(256,1,1) block=(512,1,1) lds=163840", f"; @launch kernel={NAME} grid=(256,1,1) block=(512,1,1) lds=163840\n; @launch kernel=diag_kernel grid=(1,1,1) block=(64,1,1) lds=0")
t=t.replace(f"{NAME}:\n", f"{NAME}:\n    s_memrealtime s[100:101]\n",1)
DI=0xD7F000
endcode=f"""    s_waitcnt vmcnt(0)
    s_memrealtime s[98:99]
    s_waitcnt lgkmcnt(0)
    v_mov_b32 v10, s100
    v_mov_b32 v11, s98
    s_lshl_b32 s98, s2, 3
    s_add_u32 s98, s98, {DI}
    s_cmp_eq_u32 s36, 0
    s_cselect_b32 s98, s98, 0x40000000
    buffer_store_dwordx2 v[10:11], v4, s[20:23], s98 offen
    s_endpgm
"""
for lab in ("L_LKV:", "L_LQ:"):
    i=t.index(lab)
    j=t.rfind("    s_endpgm\n",0,i)
    t=t[:j]+endcode+t[j+len("    s_endpgm\n"):]
k2=f"""
.globl diag_kernel
.p2align 8
.type diag_kernel,@function
diag_kernel:
    s_cmp_ge_u32 s2, 1
    s_cbranch_scc1 L_dx
    s_memrealtime s[30:31]
    s_load_dwordx2 s[4:5], s[0:1], 64
    s_waitcnt lgkmcnt(0)
    s_mov_b32 s8, s4
    s_mov_b32 s9, s5
    s_mov_b32 s10, 0xE00000
    s_mov_b32 s11, 0x00020000
    s_mov_b32 s12, {DI}
    v_lshlrev_b32 v1, 5, v0
    buffer_load_dwordx4 v[4:7], v1, s[8:11], s12 offen
    buffer_load_dwordx4 v[8:11], v1, s[8:11], s12 offen offset:16
    s_waitcnt vmcnt(0)
    v_readfirstlane_b32 s13, v4
    s_sub_u32 s13, s13, 0x100000
"""
for r in range(4,12): k2+=f"    v_subrev_u32 v{r}, s13, v{r}\n"
k2+="""    v_min_u32 v12, v4, v6
    v_min3_u32 v12, v12, v8, v10
    v_max_u32 v13, v4, v6
    v_max3_u32 v13, v13, v8, v10
    v_max_u32 v14, v5, v7
    v_max3_u32 v14, v14, v9, v11
    s_mov_b32 s14, -1
    s_mov_b32 s15, 0
    s_mov_b32 s16, 0
    s_mov_b32 s17, 0
L_dl:
    v_readlane_b32 s18, v12, s17
    v_readlane_b32 s19, v13, s17
    v_readlane_b32 s20, v14, s17
    s_nop 3
    s_min_u32 s14, s14, s18
    s_max_u32 s15, s15, s19
    s_max_u32 s16, s16, s20
    s_add_u32 s17, s17, 1
    s_cmp_lt_u32 s17, 64
    s_cbranch_scc1 L_dl
"""
if what=="span": k2+="    s_sub_u32 s21, s16, s14\n"
elif what=="skew": k2+="    s_sub_u32 s21, s15, s14\n"
elif what=="gap": k2+="    s_sub_u32 s21, s30, s13\n    s_sub_u32 s21, s21, s16\n"
k2+=f"""    s_min_u32 s21, s21, 20000
    s_mul_i32 s21, s21, {X}
L_sp:
    s_memrealtime s[22:23]
    s_waitcnt lgkmcnt(0)
    s_sub_u32 s24, s22, s30
    s_cmp_lt_u32 s24, s21
    s_cbranch_scc1 L_sp
L_dx:
    s_endpgm
"""
t=t.replace('.section .rodata,"a"', k2+'.section .rodata,"a"')
t+="""
.p2align 6
.amdhsa_kernel diag_kernel
  .amdhsa_next_free_vgpr 32
  .amdhsa_next_free_sgpr 48
  .amdhsa_accum_offset 32
  .amdhsa_group_segment_fixed_size 0
  .amdhsa_kernarg_size 72
  .amdhsa_user_sgpr_count 2
  .amdhsa_user_sgpr_kernarg_segment_ptr 1
  .amdhsa_system_sgpr_workgroup_id_x 1
.end_amdhsa_kernel
"""
open(dst,"w").write(t)
```

```python
import sys, re
src, dst, what, X = sys.argv[1], sys.argv[2], sys.argv[3], int(sys.argv[4])
NAME="parallel_sum__linear_attn_block__dense_activation_relu__prompt_kernel"
t=open(src).read()
t=t.replace("; @launch grid=(256,1,1) block=(512,1,1) lds=163840", f"; @launch kernel={NAME} grid=(256,1,1) block=(512,1,1) lds=163840\n; @launch kernel=diag_kernel grid=(1,1,1) block=(64,1,1) lds=0")
t=t.replace(f"{NAME}:\n", f"{NAME}:\n    s_memrealtime s[100:101]\n",1)
DI=0xD7F000
endcode=f"""    s_waitcnt vmcnt(0)
    s_memrealtime s[98:99]
    s_waitcnt lgkmcnt(0)
    v_mov_b32 v10, s100
    v_mov_b32 v11, s98
    s_lshl_b32 s98, s2, 3
    s_add_u32 s98, s98, {DI}
    s_cmp_eq_u32 s36, 0
    s_cselect_b32 s98, s98, 0x40000000
    buffer_store_dwordx2 v[10:11], v4, s[20:23], s98 offen
    s_endpgm
"""
mark = sys.argv[5] if len(sys.argv) > 5 else None
if mark:
    code = endcode.replace("    s_waitcnt vmcnt(0)\n","").replace("    s_endpgm\n","").replace("v10","v250").replace("v11","v251").replace("v[10:11]","v[250:251]")
    for la, lb in (("L_LKV:", "L_SKV:"), ("L_LQ:", "L_SQ:")):
        i=t.index(la); j=t.index(lb)
        body=t[i:j]
        if mark=="dma0":
            k=body.index("    s_add_u32 m0,")
        else:
            n=int(mark.split(",")[0 if la=="L_LKV:" else 1]); k=-1
            for _ in range(n+1): k=body.index("    s_barrier\n",k+1)
            k+=len("    s_barrier\n")
        body=body[:k]+code+body[k:]
        t=t[:i]+body+t[j:]
for lab in (() if mark else ("L_LKV:", "L_LQ:")):
    i=t.index(lab)
    j=t.rfind("    s_endpgm\n",0,i)
    t=t[:j]+endcode+t[j+len("    s_endpgm\n"):]
k2=f"""
.globl diag_kernel
.p2align 8
.type diag_kernel,@function
diag_kernel:
    s_cmp_ge_u32 s2, 1
    s_cbranch_scc1 L_dx
    s_memrealtime s[30:31]
    s_load_dwordx2 s[4:5], s[0:1], 64
    s_waitcnt lgkmcnt(0)
    s_mov_b32 s8, s4
    s_mov_b32 s9, s5
    s_mov_b32 s10, 0xE00000
    s_mov_b32 s11, 0x00020000
    s_mov_b32 s12, {DI}
    v_lshlrev_b32 v1, 5, v0
    buffer_load_dwordx4 v[4:7], v1, s[8:11], s12 offen
    buffer_load_dwordx4 v[8:11], v1, s[8:11], s12 offen offset:16
    s_waitcnt vmcnt(0)
    v_readfirstlane_b32 s13, v4
    s_sub_u32 s13, s13, 0x100000
"""
for r in range(4,12): k2+=f"    v_subrev_u32 v{r}, s13, v{r}\n"
k2+="""    v_min_u32 v12, v4, v6
    v_min3_u32 v12, v12, v8, v10
    v_max_u32 v13, v4, v6
    v_max3_u32 v13, v13, v8, v10
    v_max_u32 v14, v5, v7
    v_max3_u32 v14, v14, v9, v11
    s_mov_b32 s14, -1
    s_mov_b32 s15, 0
    s_mov_b32 s16, 0
    s_mov_b32 s17, 0
L_dl:
    v_readlane_b32 s18, v12, s17
    v_readlane_b32 s19, v13, s17
    v_readlane_b32 s20, v14, s17
    s_nop 3
    s_min_u32 s14, s14, s18
    s_max_u32 s15, s15, s19
    s_max_u32 s16, s16, s20
    s_add_u32 s17, s17, 1
    s_cmp_lt_u32 s17, 64
    s_cbranch_scc1 L_dl
"""
if what=="span": k2+="    s_sub_u32 s21, s16, s14\n"
elif what=="skew": k2+="    s_sub_u32 s21, s15, s14\n"
elif what=="gap": k2+="    s_sub_u32 s21, s30, s13\n    s_sub_u32 s21, s21, s16\n"
k2+=f"""    s_min_u32 s21, s21, 20000
    s_mul_i32 s21, s21, {X}
L_sp:
    s_memrealtime s[22:23]
    s_waitcnt lgkmcnt(0)
    s_sub_u32 s24, s22, s30
    s_cmp_lt_u32 s24, s21
    s_cbranch_scc1 L_sp
L_dx:
    s_endpgm
"""
t=t.replace('.section .rodata,"a"', k2+'.section .rodata,"a"')
t+="""
.p2align 6
.amdhsa_kernel diag_kernel
  .amdhsa_next_free_vgpr 32
  .amdhsa_next_free_sgpr 48
  .amdhsa_accum_offset 32
  .amdhsa_group_segment_fixed_size 0
  .amdhsa_kernarg_size 72
  .amdhsa_user_sgpr_count 2
  .amdhsa_user_sgpr_kernarg_segment_ptr 1
  .amdhsa_system_sgpr_workgroup_id_x 1
.end_amdhsa_kernel
"""
open(dst,"w").write(t)
```

```python
import sys, struct, os

NAME = "parallel_sum__linear_attn_block__dense_activation_relu__prompt"

ACT_OFF = 0
W2R_OFF = 0x900000
KVA_OFF = 0xC00000
CSP_OFF = 0xC40000
RSTD_OFF = 0xD00000
FLG_OFF = 0xD10000
STP_OFF = 0xD20000
STAMP_OFF = 0xD80000
WS_SIZE = 0xE00000
OOB = 0x40000000
STAMP = os.environ.get("STAMP", "0") == "1"
DBGS = False
ROT2 = int(os.environ.get("ROT2", "1"))
HF = int(os.environ.get("HF", "5"))
HBURST = int(os.environ.get("HBURST", "1"))
H2F = int(os.environ.get("H2F", "3"))
AE = int(os.environ.get("AE", "0"))
PQB = int(os.environ.get("PQB", "0"))
SLP = int(os.environ.get("SLP", "4"))
NTK = int(os.environ.get("NTK", "7"))
NFQ = int(os.environ.get("NFQ", "18"))
NFG = int(os.environ.get("NFG", "30"))
PK0 = int(os.environ.get("PK0", "18"))
SCHED = {}

def f32bits(x):
    return struct.unpack("<I", struct.pack("<f", x))[0]

LOG2E = 1.4426950408889634
LN2 = 0.6931471805599453

SLOT1 = 45056
WA_OFF = 16384
G2S_Q = [90112, 0, 45056]
G2S_KV = [45056, 90112, 0]
CP_LDS = 0
TRASH = 28672
MISC = 135168
KVT_LDS = MISC
STAT_LDS = 156672
EXT_LDS = 159744
KVT_P = 176
OKW_LDS = KVT_LDS + 17792

S_X, S_WQKV, S_W1, S_WS, S_DBG, S_RP, S_CODE, S_OUT = 8, 12, 16, 20, 24, 28, 32, 84
sW, sI, sG, sT0, sT1, sT2, sT3, sXlim = 36, 37, 38, 39, 40, 41, 42, 43
sXoff, sWoffA, sWoffB = 60, 61, 62
sLx, sLa, sLb = 63, 64, 75
sC, sLn2, sHiMask = 65, 66, 67
sACT = 68
sTw = 69
sHIm = 70
sL16m = 72
sFlag = 74
sKVTP, sSpin, sRot = 81, 82, 83
sJ, sT64, sP, sA, sB, sCnt = 88, 89, 90, 91, 92, 93
sSlot, sD = 96, 97
sA0, sB0 = 76, 79
sRole = 80
vLane, vHi, vL31x4, vFl0, vL16, vL16b, vStamp, vPoll, vPollN = 1, 2, 3, 4, 5, 6, 7, 8, 9
vT = 10


class Em:
    def __init__(self, lab):
        self.L = []
        self.vm = []
        self.stamps = []
        self.nlab = 0
        self.lab = lab
        self.cap = None

    def __call__(self, s):
        for line in s.split("\n"):
            if self.cap is not None:
                self.cap[-1].append(line)
            else:
                self.L.append("    " + line)

    def capture(self):
        self.cap = [[]]

    def para(self):
        if self.cap is not None and self.cap[-1]:
            self.cap.append([])

    def end_capture(self):
        c = [p for p in self.cap if p]
        self.cap = None
        return c

    def label(self, s):
        self.L.append(s + ":")

    def c(self, s):
        self.L.append("    ; " + s)

    def vmop(self, s, tag):
        assert self.cap is None
        if len(self.vm) >= 60:
            self("s_waitcnt vmcnt(40)")
            self.vm = self.vm[-40:]
        self(s)
        self.vm.append(tag)

    def op(self, o):
        if isinstance(o, tuple):
            self.vmop(o[0], o[1])
        elif isinstance(o, list):
            for x in o:
                self.op(x)
        else:
            self(o)

    def merge(self, dm, paras):
        dm, paras = list(dm), list(paras)
        while dm or paras:
            if dm:
                self.op(dm.pop(0))
            k = -(-len(paras) // (len(dm) + 1)) if paras else 0
            for _ in range(k):
                self.op(paras.pop(0))

    def vm_n(self, tags):
        last = -1
        for k, t in enumerate(self.vm):
            if t in tags:
                last = k
        n = len(self.vm) - 1 - last
        self.vm = self.vm[last + 1:]
        return n

    def wait_vm(self, tags, lgkm=None):
        n = self.vm_n(tags)
        if lgkm is None:
            self(f"s_waitcnt vmcnt({n})")
        else:
            self(f"s_waitcnt vmcnt({n}) lgkmcnt({lgkm})")

    def pending(self, tag):
        return tag in self.vm

    def stamp(self, name, real=False):
        if DBGS:
            if self.lab[0] != "L" or name not in DBG_NAMES:
                return
            k = DBG_NAMES.index(name)
            self("s_waitcnt lgkmcnt(0)")
            self(("s_memtime" if name in ("start", "end") else "s_memrealtime") + " s[98:99]")
            self("s_waitcnt lgkmcnt(0)")
            self(f"v_writelane_b32 v{vStamp}, s98, {k}")
            return
        if not STAMP:
            return
        k = len(self.stamps)
        self.stamps.append(name)
        assert k < 60
        self("s_waitcnt lgkmcnt(0)")
        self(("s_memrealtime" if real else "s_memtime") + " s[98:99]")
        self("s_waitcnt lgkmcnt(0)")
        self(f"v_writelane_b32 v{vStamp}, s98, {k}")

    def stamp_flush(self):
        if DBGS:
            if self.lab[0] != "L":
                return
            self.srds(["DBG2"])
            self(f"v_lshlrev_b32 v{vT}, 2, v{vLane}")
            self(f"v_add_u32 v{vT}, 4, v{vT}")
            self(f"v_mov_b32 v{vT+1}, {OOB}")
            self(f"v_cmp_gt_u32 vcc, 15, v{vLane}")
            self("s_nop 1")
            self(f"v_cndmask_b32 v{vT}, v{vT+1}, v{vT}, vcc")
            self(f"s_cmp_eq_u32 s2, {DBGW}")
            self(f"s_cselect_b32 s98, 0, {OOB}")
            self(f"s_cmp_eq_u32 s{sW}, 0")
            self(f"s_cselect_b32 s98, s98, {OOB}")
            self(f"buffer_store_dword v{vStamp}, v{vT}, s[{S_DBG}:{S_DBG+3}], s98 offen")
            return
        if not STAMP:
            return
        self(f"s_lshl_b32 s98, s2, 3")
        self(f"s_add_u32 s98, s98, s{sW}")
        self(f"s_lshl_b32 s99, s{sRole}, 2")
        self(f"s_add_u32 s98, s98, s99")
        self(f"s_lshl_b32 s98, s98, 8")
        self(f"s_add_u32 s98, s98, {STAMP_OFF}")
        self(f"v_lshlrev_b32 v{vT}, 2, v{vLane}")
        self(f"buffer_store_dword v{vStamp}, v{vT}, s[{S_WS}:{S_WS+3}], s98 offen")
        print(f"stamps: {self.lab}:" + ",".join(self.stamps))

    def flag_store(self, val, off=0):
        self(f"v_mov_b32 v{vPollN}, {val}")
        self.vmop(f"buffer_store_dword v{vPollN}, v{vFl0}, s[{S_WS}:{S_WS+3}], s{sFlag} offen offset:{off} sc1", "flag")

    def poll_issue(self, vaddr, srd, tag, dst=None):
        self.vmop(f"buffer_load_dword v{dst or vPoll}, v{vaddr}, s[{srd}:{srd+3}], 0 offen sc1", tag)

    def poll_check(self, vaddr, srd, vneed, tag, dst=None):
        dst = dst or vPoll
        self.nlab += 1
        k = f"{self.lab}{self.nlab}"
        self.wait_vm({tag})
        self(f"v_cmp_lt_u32 vcc, v{dst}, v{vneed}")
        self(f"s_mov_b32 s{sSpin}, 0")
        self("s_nop 3")
        self(f"s_cbranch_vccz L_ok{k}")
        self.label(f"L_sp{k}")
        self(f"s_sleep {SLP}")
        self(f"buffer_load_dword v{dst}, v{vaddr}, s[{srd}:{srd+3}], 0 offen sc1")
        self("s_waitcnt vmcnt(0)")
        self(f"v_cmp_lt_u32 vcc, v{dst}, v{vneed}")
        self(f"s_add_u32 s{sSpin}, s{sSpin}, 1")
        self(f"s_cmp_lt_u32 s{sSpin}, 0x40000")
        self(f"s_cselect_b64 s[94:95], -1, 0")
        self(f"s_and_b64 vcc, vcc, s[94:95]")
        self(f"s_cbranch_vccnz L_sp{k}")
        self.label(f"L_ok{k}")

    def srds(self, lst):
        tab = {"X": (S_X, 44, 2048*1280), "WQKV": (S_WQKV, 46, 640*3840), "W1": (S_W1, 52, 640*3072),
               "WS": (S_WS, 58, WS_SIZE), "DBG": (S_DBG, 56, 256), "OUT": (S_OUT, 50, 2048*1280), "DBG2": (S_DBG, 100, 256)}
        for k in lst:
            srd, p, sz = tab[k]
            self(f"s_mov_b32 s{srd}, s{p}")
            self(f"s_mov_b32 s{srd+1}, s{p+1}")
            self(f"s_mov_b32 s{srd+2}, {sz}")
            self(f"s_mov_b32 s{srd+3}, 0x00020000")

    def text(self):
        return "\n".join(self.L) + "\n"


def r4(b):
    return f"v[{b}:{b+3}]"


IMG_KV = dict(kk=5120, s=1280, t=64)
IMG_H = dict(kk=4096, s=256, t=512, hi=2048)
IMG_H2 = dict(kk=2048, s=256, t=512, hi=1024)
H2_OFF0 = WA_OFF + 16384
Q2_OFF = WA_OFF + 8192
IMG_Q = dict(kk=3072, s=768, t=64)


def lane_part(e, img, d, t):
    e(f"v_bfe_u32 v{t}, v{vLane}, 2, 2")
    e(f"v_and_b32 v{t+1}, 3, v{vLane}")
    e(f"v_lshlrev_b32 v{t+1}, 3, v{t+1}")
    e(f"v_and_b32 v{t+2}, 16, v{vLane}")
    e(f"v_lshl_add_u32 v{t+1}, v{t+2}, 1, v{t+1}")
    if "hi" in img:
        e(f"v_lshl_add_u32 v{d}, v{t}, 6, v{t+1}")
        e(f"v_mul_u32_u24 v{t+2}, {img['hi']}, v{vHi}")
        e(f"v_add_u32 v{d}, v{d}, v{t+2}")
    else:
        e(f"v_lshl_add_u32 v{t+2}, v{vHi}, 3, v{t}")
        e(f"v_mul_u32_u24 v{d}, {320 if img is IMG_KV else 192}, v{t+2}")
        e(f"v_add_u32 v{d}, v{d}, v{t+1}")


def x_addrs(e, d, t):
    e(f"v_and_b32 v{t}, 31, v{vLane}")
    e(f"v_bfe_u32 v{t+1}, v{vLane}, 1, 3")
    e(f"v_xor_b32 v{t+1}, v{t+1}, v{vHi}")
    e(f"s_lshl_b32 s{sT0}, s{sW}, 12")
    e(f"v_lshl_add_u32 v{t}, v{t}, 7, s{sT0}")
    for kk in range(4):
        e(f"v_xor_b32 v{t+2}, {2*kk}, v{t+1}")
        e(f"v_lshl_add_u32 v{d+kk}, v{t+2}, 4, v{t}")


def slot_offsets(e, d_st, d_cs):
    e(f"s_mul_i32 s{d_st}, s{sI}, 10")
    e(f"s_add_u32 s{d_st}, s{d_st}, s{sRot}")
    e(f"s_lshl_b32 s{d_st}, s{d_st}, 10")
    e(f"s_add_u32 s{d_st}, s{d_st}, {STP_OFF}")
    e(f"s_cmp_lt_u32 s{sJ}, 10")
    e(f"s_cselect_b32 s{d_st}, s{d_st}, {OOB}")
    e(f"s_mul_i32 s{d_cs}, s{sJ}, 10")
    e(f"s_add_u32 s{d_cs}, s{d_cs}, s{sRot}")
    e(f"s_lshl_b32 s{d_cs}, s{d_cs}, 11")
    e(f"s_add_u32 s{d_cs}, s{d_cs}, {CSP_OFF}")
    e(f"s_cmp_lt_u32 s{sI}, 10")
    e(f"s_cselect_b32 s{d_cs}, s{d_cs}, {OOB}")


def pq_addr(e, d, t):
    e(f"s_lshr_b32 s{sT0}, s{sT64}, 1")
    e(f"s_lshl_b32 s{sT0}, s{sT0}, 11")
    e(f"s_and_b32 s{sT1}, s{sT64}, 1")
    e(f"s_lshl_b32 s{sT1}, s{sT1}, 5")
    e(f"s_add_u32 s{sT0}, s{sT0}, s{sT1}")
    e(f"s_add_u32 s{sT0}, s{sT0}, {FLG_OFF + 128}")
    e(f"v_lshrrev_b32 v{t}, 1, v{vLane}")
    e(f"v_and_b32 v{t+1}, 1, v{vLane}")
    e(f"v_lshl_add_u32 v{t+1}, v{t+1}, 4, s{sT0}")
    e(f"v_lshl_add_u32 v{d}, v{t}, 8, v{t+1}")


def pr_addr(e, d, t):
    e(f"s_lshr_b32 s{sT0}, s{sP}, 1")
    e(f"s_lshl_b32 s{sT0}, s{sT0}, 8")
    e(f"s_and_b32 s{sT1}, s{sP}, 1")
    e(f"s_lshl_b32 s{sT1}, s{sT1}, 13")
    e(f"s_add_u32 s{sT0}, s{sT0}, s{sT1}")
    e(f"s_add_u32 s{sT0}, s{sT0}, {FLG_OFF + 96}")
    e(f"v_and_b32 v{t}, 3, v{vLane}")
    e(f"v_lshl_add_u32 v{t}, v{t}, 11, s{sT0}")
    e(f"v_and_b32 v{t+1}, 4, v{vLane}")
    e(f"v_lshl_add_u32 v{t}, v{t+1}, 12, v{t}")
    e(f"v_and_b32 v{t+1}, 8, v{vLane}")
    e(f"v_lshl_add_u32 v{t}, v{t+1}, 4, v{t}")
    e(f"v_and_b32 v{t+1}, 48, v{vLane}")
    e(f"v_lshl_add_u32 v{d}, v{t+1}, 5, v{t}")


def compute_path(typ):
    KV = typ == "KV"
    e = Em("C" + typ)
    G2S = G2S_KV if KV else G2S_Q
    NT = NTK if KV else 10 - NTK
    T0 = 0 if KV else NTK
    KB = 4096 + NT*1024
    vXrd = 18
    vWA, vWB = 22, 23
    vSt = 24
    vAcc = 32
    A_ = lambda t: vAcc + 16*t
    vXext = 244
    vXp, vRstd, vSd, vRl = 248, 249, 250, 251
    if KV:
        P1, P2, ALL = [0, 1, 2, 3, 4], [], [3, 4, 2, 0, 1]
        wreg = lambda ps, par, t: 144 + 20*par + 4*t
        xreg = lambda ps, par: 184 + 4*par
        EXR = lambda t: 192 + 4*t
    else:
        P1, P2, ALL = [0, 1, 2, 3], [4, 5, 6, 7, 8], list(range(9))
        wreg = lambda ps, par, t: (176 + 16*par + 4*t) if ps == 1 else (176 + 20*par + 4*(t-4))
        xreg = lambda ps, par: 224 + 4*par
        EXR = lambda t: 176 + 4*t if t < 4 else (208 + 4*(t-4) if t < 8 else 232)
    img = lambda t: IMG_KV if KV else (IMG_H if t < 4 else (IMG_H2 if t < 6 else IMG_Q))
    tix = lambda t: t if KV or t < 4 else (t - 4 if t < 6 else t - 6)
    vWC = 28
    areg = lambda t: vWA if KV or t < 4 else (vWC if t < 6 else vWB)

    e.label(f"L_C{typ}")
    e.stamp("start_real", True)
    e.stamp("start")
    e(f"s_getpc_b64 s[{S_CODE}:{S_CODE+1}]")
    e.label(f"L_C{typ}_pc")
    e(f"s_mov_b32 s{S_CODE+2}, L_S{typ}_end-L_C{typ}_pc")
    e(f"s_mov_b32 s{S_CODE+3}, 0x00020000")
    e(f"v_lshlrev_b32 v{vT}, 7, v0")
    e.vmop(f"buffer_load_dword v255, v{vT}, s[{S_CODE}:{S_CODE+3}], 0 offen", "pf")
    for r in range(4):
        e(f"v_mov_b32 v{vAcc+r}, 0")
    slot_offsets(e, sT0, sT1)
    e(f"s_cmp_eq_u32 s{sW}, 0")
    e(f"s_cselect_b32 s{sT0}, s{sT0}, {OOB}")
    e(f"s_cselect_b32 s{sT1}, s{sT1}, {OOB}")
    e(f"s_and_b32 s{sT2}, s{sFlag}, 0xffffff80")
    e(f"v_mov_b32 v{vT+1}, {OOB}")
    e(f"v_cmp_gt_u32 vcc, 8, v0")
    if KV:
        e(f"s_lshl_b32 s{sT3}, s{sG}, 13")
        e(f"s_lshl_b32 s{sTw}, s{sI}, 10")
        e(f"s_add_u32 s{sT3}, s{sT3}, s{sTw}")
        e(f"s_add_u32 s{sT3}, s{sT3}, {KVA_OFF}")
        e(f"s_cmp_lt_u32 s{sI}, 7")
        e(f"s_cselect_b32 s{sT3}, s{sT3}, {OOB}")
        e(f"s_cmp_eq_u32 s{sW}, 0")
        e(f"s_cselect_b32 s{sT3}, s{sT3}, {OOB}")
    else:
        e("s_nop 1")
    e(f"v_cndmask_b32 v{vT}, v{vT+1}, v{vL16}, vcc")
    e("s_waitcnt lgkmcnt(0)")
    e.srds(["WS"])
    e.vmop(f"buffer_store_dwordx4 {r4(vAcc)}, v{vT}, s[{S_WS}:{S_WS+3}], s{sT2} offen sc1", "z")
    e.vmop(f"buffer_store_dwordx4 {r4(vAcc)}, v{vL16}, s[{S_WS}:{S_WS+3}], s{sT0} offen sc1", "z")
    e.vmop(f"buffer_store_dwordx4 {r4(vAcc)}, v{vL16}, s[{S_WS}:{S_WS+3}], s{sT1} offen sc1", "z")
    if KV:
        e.vmop(f"buffer_store_dwordx4 {r4(vAcc)}, v{vL16}, s[{S_WS}:{S_WS+3}], s{sT3} offen sc1", "z")
    else:
        e.vmop(f"buffer_store_dwordx4 {r4(vAcc)}, v{vT}, s[{S_WS}:{S_WS+3}], s{sT1} offen offset:1024 sc1", "z")
    e.srds(["X", "OUT", "DBG"])
    x_addrs(e, vXrd, vT)
    lane_part(e, img(0), vWA, vT)
    e(f"v_add_u32 v{vWA}, {WA_OFF}, v{vWA}")
    if not KV:
        lane_part(e, IMG_Q, vWB, vT)
        e(f"v_add_u32 v{vWB}, {Q2_OFF + SLOT1}, v{vWB}")
        lane_part(e, IMG_H2, vWC, vT)
        e(f"v_add_u32 v{vWC}, {WA_OFF + SLOT1}, v{vWC}")
    e(f"v_and_b32 v{vT}, 15, v{vLane}")
    e(f"v_lshlrev_b32 v{vT}, 4, v{vT}")
    e(f"v_lshl_add_u32 v{vT}, v{vHi}, 8, v{vT}")
    e(f"v_and_b32 v{vT+1}, 16, v{vLane}")
    e(f"v_lshl_add_u32 v{vT}, v{vT+1}, 6, v{vT}")
    e(f"s_and_b32 s{sT0}, s{sW}, 1")
    e(f"s_lshl_b32 s{sT0}, s{sT0}, 11")
    e(f"v_add_u32 v{vSt}, s{sT0}, v{vT}")
    e(f"s_lshr_b32 s{sT0}, s{sW}, 1")
    e(f"s_lshl_b32 s{sT1}, s{sI}, 1")
    e(f"s_add_u32 s{sT0}, s{sT0}, s{sT1}")
    e(f"s_mul_i32 s{sACT}, s{sT0}, {68*4096}")
    z = list(range(vAcc+4, vAcc+16*len(ALL))) + [wreg(1, 1, t)+k for t in P1 for k in range(4)] + \
        list(range(xreg(1, 1), xreg(1, 1)+4)) + [vXext+2, vXext+3]
    for r in z:
        e(f"v_mov_b32 v{r}, 0")
    e(f"v_lshlrev_b32 v25, 1, v{vL31x4}")
    e(f"v_add_u32 v25, {EXT_LDS}, v25")
    e(f"s_mul_i32 s{sT0}, s{sW}, 768")
    e(f"s_add_u32 s{sT0}, s{sT0}, {STAT_LDS}")
    e(f"v_lshl_add_u32 v26, v{vL31x4}, 2, s{sT0}")
    e(f"v_lshl_add_u32 v27, v{vHi}, 4, s{sT0}")
    e(f"s_and_b32 s{sT0}, s2, 1")
    e(f"s_lshl_b32 s{sT0}, s{sT0}, 7")
    e(f"v_mov_b32 v{vT}, s{sT0}")
    e(f"v_mov_b32 v{vT+1}, {OOB}")
    e(f"v_cmp_eq_u32 vcc, 0, v0")
    e(f"v_mov_b32 v{vT+2}, 1")
    e("s_nop 0")
    e(f"v_cndmask_b32 v{vT}, v{vT+1}, v{vT}, vcc")
    e.wait_vm({"z"})
    e.vmop(f"buffer_atomic_add v{vT+2}, v{vT}, s[{S_DBG}:{S_DBG+3}], 0 offen", "init")

    SYNC = "SYNC"
    CUR = [0]

    class Fill:
        def __init__(self, items):
            self.q = list(items)

        def release(self):
            if self.q and self.q[0] == SYNC:
                self.q.pop(0)

        def emit(self, n):
            while n > 0 and self.q and self.q[0] != SYNC:
                it = self.q.pop(0)
                if callable(it):
                    it()
                    continue
                e.op(it)
                n -= len(it) if isinstance(it, list) else 1

        def done(self):
            return not self.q

    def reads(ps, kk, TL):
        out = [f"ds_read_b128 {r4(xreg(ps, kk % 2))}, v{vXrd+kk}"]
        for t in TL:
            I = img(t)
            va = areg(t)
            for s in range(2):
                d = wreg(ps, kk % 2, t) + 2*s
                out.append(f"ds_read_b64_tr_b16 v[{d}:{d+1}], v{va} offset:{kk*I['kk'] + s*I['s'] + I['t']*tix(t)}")
        return out

    def mf(t, x, w):
        acc = f"v[{A_(t)}:{A_(t)+15}]"
        if KV:
            return f"v_mfma_f32_32x32x16_bf16 {acc}, {x}, {w}, {acc}"
        return f"v_mfma_f32_32x32x16_bf16 {acc}, {w}, {x}, {acc}"

    def mfm(ps, par, t):
        return mf(t, r4(xreg(ps, par)), r4(wreg(ps, par, t)))

    def g1_body(ps, TL, fill=None, nf=0, first=False, gs=None, count=None):
        aregs = list(range(vXrd, vXrd+4)) + ([vWA] if ps == 1 else [vWB, vWC])
        e("s_waitcnt lgkmcnt(0)")
        e("s_barrier")
        per = 4 if len(TL) >= 4 else 8
        for kk in range(4):
            if kk:
                e("s_waitcnt lgkmcnt(0)")
            if fill:
                fill.release()
            rd = reads(ps, kk, TL)
            mm = [] if (first and kk == 0) else [mfm(ps, (kk + 1) % 2, t) for t in TL]
            if not mm:
                for x in rd:
                    e(x)
                rd = []
                if fill:
                    fill.emit(nf)
            for k, m in enumerate(mm):
                e(m)
                for _ in range(per):
                    if rd:
                        e(rd.pop(0))
                if fill:
                    fill.emit(-(-nf // len(mm)))
            assert not rd
            if gs is None and kk == 2:
                for x in [f"s_add_u32 s{sSlot}, s{sSlot}, 1", f"s_cmp_eq_u32 s{sSlot}, 3", f"s_cselect_b32 s{sSlot}, 0, s{sSlot}",
                          f"s_mov_b32 s{sD}, {SLOT1}", f"s_cselect_b32 s{sD}, {(-2*SLOT1) & 0xffffffff:#x}, s{sD}",
                          f"s_add_u32 s{sCnt}, s{sCnt}, 1", f"s_cmp_lt_u32 s{sCnt}, {count}"]:
                    e(x)
        for r in aregs:
            if gs is None:
                e(f"v_add_u32 v{r}, s{sD}, v{r}")
            else:
                d = SLOT1 if (gs + 1) % 3 else -2*SLOT1
                e(f"v_add_u32 v{r}, {d & 0xffffffff:#x}, v{r}")

    def g1_loop(name, ps, TL, gs0, count):
        if count <= 0:
            return
        e(f"s_mov_b32 s{sCnt}, 0")
        e(f"s_mov_b32 s{sSlot}, {gs0 % 3}")
        e(".p2align 3")
        e.label(name)
        g1_body(ps, TL, count=count)
        e(f"s_cbranch_scc1 {name}")

    def phi2(dst, a0, a1, r0, r1):
        t = vT
        return [f"v_fma_f32 v{t}, v{a0}, v{r0}, s{sC}", f"v_fma_f32 v{t+2}, v{a1}, v{r1}, s{sC}",
                f"v_exp_f32 v{t+1}, v{t} clamp", f"v_exp_f32 v{t+3}, v{t+2} clamp",
                f"v_max_f32 v{t}, s{sC}, v{t}", f"v_max_f32 v{t+2}, s{sC}, v{t+2}",
                f"v_fma_f32 v{t}, v{t}, s{sLn2}, v{t+1}", f"v_fma_f32 v{t+2}, v{t+2}, s{sLn2}, v{t+3}",
                f"v_cvt_pk_bf16_f32 v{dst}, v{t}, v{t+2}"]

    def flag_item(tag, val, name):
        def f():
            e.wait_vm({tag})
            e.flag_store(val)
            e.stamp(name)
            SCHED[typ + name] = CUR[0]
        return f

    g1_loop(f"L_C{typ}_p1", 1, P1, 0, 10)
    e("s_waitcnt lgkmcnt(0)")
    e("s_barrier")
    e.stamp("E1")
    RL, RS = 112, 128
    e(f"ds_read_b128 {r4(vXp)}, v26")
    for t in ALL:
        e(f"ds_read_b64 v[{EXR(t)}:{EXR(t)+1}], v25 offset:{t*256}")
    if KV:
        for q in range(4):
            e(f"ds_read_b128 {r4(RS+4*q)}, v27 offset:{640+32*q}")
        for q in range(4):
            e(f"ds_read_b128 {r4(RL+4*q)}, v27 offset:{512+32*q}")
    zz = [f"v_mov_b32 v{EXR(t)+k}, 0" for t in ALL for k in (2, 3)]
    for t in ALL:
        if t in P1:
            e(mfm(1, 1, t))
            for _ in range(5):
                if zz:
                    e(zz.pop(0))
    assert not zz
    e(f"s_waitcnt lgkmcnt({8 if KV else 0})")
    e(f"v_lshrrev_b32 v{vT+4}, 16, v{vXp}")
    e(f"v_cndmask_b32 v{vXext}, v{vXp}, 0, s[{sHIm}:{sHIm+1}]")
    e(f"v_cndmask_b32 v{vXext+1}, v{vT+4}, 0, s[{sHIm}:{sHIm+1}]")
    e("s_nop 1")
    for t in ALL:
        e(mf(t, r4(vXext), r4(EXR(t))))

    PQ = 200
    F = []
    if KV:
        Vp = [144, 152, 160]
        Kp = [168, 176, 212]
        PRG = {0: [A_(3), A_(4), RS], 1: [A_(0), 220, 192 - 8], 2: [None, A_(1), A_(2)]}
        PRG[1] = [A_(0), 224, A_(3)]
        vCa, vCb, vCc, vCt = 28, 29, 30, 31
        F += [f"v_mul_u32_u24 v{vCa}, 21, v{vHi}", f"v_and_b32 v{vCb}, 31, v{vLane}",
              [f"v_cmp_eq_u32 vcc, 0, v{vCb}", f"v_add_u32 v{vCc}, 20, v{vCa}", f"v_add_u32 v{vCa}, v{vCa}, v{vCb}",
               f"v_subrev_u32 v{vCt}, 12, v{vCa}", f"v_cndmask_b32 v{vCc}, v{vCt}, v{vCc}, vcc"],
              f"v_add_u32 v{vCb}, v{vHi}, v{vCb}",
              [f"s_mul_i32 s{sT0}, s{sW}, 6784", f"s_add_u32 s{sT0}, s{sT0}, {CP_LDS}"],
              f"v_lshl_add_u32 v{vCa}, v{vCa}, 4, s{sT0}", f"v_lshl_add_u32 v{vCb}, v{vCb}, 4, s{sT0}",
              f"v_lshl_add_u32 v{vCc}, v{vCc}, 4, s{sT0}", f"v_add_u32 v{vCt}, {TRASH}, v{vL16}",
              "s_waitcnt lgkmcnt(0)"]
        for (t, dst) in [(3, Vp[0]), (4, Vp[1]), (2, Vp[2])]:
            a = A_(t)
            for j in range(0, 8, 2):
                F += [f"v_mul_f32 v{vT}, v{a+2*j}, v{RS+2*j}", f"v_mul_f32 v{vT+1}, v{a+2*j+1}, v{RS+2*j+1}",
                      f"v_mul_f32 v{vT+2}, v{a+2*j+2}, v{RS+2*j+2}", f"v_mul_f32 v{vT+3}, v{a+2*j+3}, v{RS+2*j+3}",
                      f"v_cvt_pk_bf16_f32 v{dst+j}, v{vT}, v{vT+1}", f"v_cvt_pk_bf16_f32 v{dst+j+1}, v{vT+2}, v{vT+3}"]
        F.append(f"v_mov_b32 v{vT}, 0x3f803f80")
        for j in range(8):
            F.append(f"v_cndmask_b32 v{Vp[2]+j}, v{vT}, v{Vp[2]+j}, s[{sL16m}:{sL16m+1}]")
        PR_ = [A_(3), A_(4), RS]

        def cwrites(a, b):
            out = []
            base = PR_[b]
            for q in range(4):
                C0 = 8*a + 2*q
                if C0 >= 20:
                    continue
                heads = [C0 // 5, (C0+1) // 5]
                ebase = [0, 32, 48][b]
                mask = 0
                for hi in range(2):
                    for l in range(32):
                        if b == 2 and l < 16:
                            if l == 0:
                                mask |= 1 << (32*hi)
                            continue
                        if (ebase + l) // 20 == heads[hi]:
                            mask |= 1 << (32*hi + l)
                if not mask:
                    continue
                if b == 2:
                    va, imm = vCc, 16*21*C0
                else:
                    va, imm = (vCa if heads[0] == heads[1] else vCb), 16*(21*C0 + ebase - 20*heads[0])
                t = vT + 6 + (len(out) % 2)
                out.append([f"s_mov_b32 s94, {mask & 0xffffffff:#x}", f"s_mov_b32 s95, {mask >> 32:#x}",
                            f"v_cndmask_b32 v{t}, v{vCt}, v{va}, s[94:95]", f"ds_write_b128 v{t}, {r4(base+4*q)} offset:{imm}"])
            return out

        def prods(a_):
            bs = [0, 1, 2] if a_ < 2 else [1, 2]
            out = []
            for h in range(2):
                for b in bs:
                    d = f"v[{PR_[b]}:{PR_[b]+15}]"
                    out.append(f"v_mfma_f32_32x32x16_bf16 {d}, {r4(Kp[a_]+4*h)}, {r4(Vp[b]+4*h)}, {'0' if h == 0 else d}")
            return out, [w for b in bs for w in cwrites(a_, b)]

        pm, pw = [], []
        for a_ in range(3):
            a = A_(a_)
            for j in range(8):
                F += phi2(Kp[a_] + j, a+2*j, a+2*j+1, RL+2*j, RL+2*j+1)
                if j < 3:
                    F += pm[2*j:2*j+2]
                if j >= 4 and pw:
                    k = -(-len(pw) // (8 - j))
                    F += pw[:k]
                    pw = pw[k:]
            pm, pw = prods(a_)
        F += ["s_nop 1"] + pm + ["s_nop 7", "s_nop 7"] + pw
        Fill(F).emit(100000)
        e.stamp("kv_done")
    else:
        sHb = sA
        F += [[f"s_lshl_b32 s{sT2}, s{sI}, 2", f"s_add_u32 s{sT2}, s{sT2}, s{sW}", f"s_lshl_b32 s{sT2}, s{sT2}, 7",
               f"s_add_u32 s{sT2}, s{sT2}, {RSTD_OFF}", f"s_cmp_eq_u32 s{sG}, 0", f"s_cselect_b32 s{sT2}, s{sT2}, {OOB}"],
              (f"buffer_store_dword v{vRstd}, v{vL31x4}, s[{S_WS}:{S_WS+3}], s{sT2} offen sc1", "hst"),
              f"s_lshl_b32 s{sHb}, s{sG}, 14", f"s_add_u32 s{sHb}, s{sHb}, s{sACT}"]
        for t in range(4):
            a = A_(t)
            for j in range(8):
                F += [f"v_max_f32 v{a+2*j}, 0, v{a+2*j}", f"v_max_f32 v{a+2*j+1}, 0, v{a+2*j+1}",
                      f"v_cvt_pk_bf16_f32 v{a+j}, v{a+2*j}, v{a+2*j+1}"]
            F += [f"s_add_u32 s{sT1}, s{sHb}, {t*4096}",
                  (f"buffer_store_dwordx4 {r4(a)}, v{vSt}, s[{S_WS}:{S_WS+3}], s{sT1} offen sc1", "hst"),
                  (f"buffer_store_dwordx4 {r4(a+4)}, v{vSt}, s[{S_WS}:{S_WS+3}], s{sT1} offen offset:512 sc1", "hst")]
        if HBURST:
            e("s_nop 3")
            Fill(F).emit(100000)
            e.stamp("h_stored")
            F = []
        F += [SYNC] * HF + [flag_item("hst", 1, "h_flag")]
        fill = Fill(F)
        gs = 10
        while not fill.done():
            CUR[0] = gs
            g1_body(2, P2, fill, NFQ, first=(gs == 10), gs=gs)
            gs += 1
            assert gs <= 20
        g1_loop(f"L_C{typ}_p2", 2, P2, gs, 20 - gs)
    e("s_waitcnt lgkmcnt(0)")
    e("s_barrier")
    e.stamp("E3")
    for t in P2:
        e(mfm(2, 1, t))
    if not KV:
        e(f"s_lshl_b32 s{sHb}, s{sG}, 13")
        e(f"s_add_u32 s{sHb}, s{sHb}, {32*4096}")
        e(f"s_add_u32 s{sHb}, s{sHb}, s{sACT}")
        e("s_nop 4")
        for n, t in enumerate((4, 5)):
            a, o = A_(t), 176 + 8*n
            for j in range(8):
                e(f"v_max_f32 v{a+2*j}, 0, v{a+2*j}")
                e(f"v_max_f32 v{a+2*j+1}, 0, v{a+2*j+1}")
                e(f"v_cvt_pk_bf16_f32 v{o+j}, v{a+2*j}, v{a+2*j+1}")
            e(f"s_add_u32 s{sT1}, s{sHb}, {n*4096}")
            e.vmop(f"buffer_store_dwordx4 {r4(o)}, v{vSt}, s[{S_WS}:{S_WS+3}], s{sT1} offen sc1", "h2")
            e.vmop(f"buffer_store_dwordx4 {r4(o+4)}, v{vSt}, s[{S_WS}:{S_WS+3}], s{sT1} offen offset:512 sc1", "h2")

    vA2, vB2 = 18, 19
    vG = 32
    FS = 4*(NT + 1)
    fb = 64 if KV else 48
    vF2 = [fb + FS*k for k in range(4)]
    CH = 2*NT
    R = -(-16*CH // 64)
    PITCH = NT*64 + 16
    OUT_LDS = G2S[0]
    if KV:
        vGo, vLr, vRa, vRs, vLw, vXd, RB, vO = 192, 196, 200, 204, 208, 212, 64, 228
    else:
        vGo, vLr, vRa, vRs, vLw, vXd, RB, vO = 220, 224, 228, 232, 236, 128, 48, 144
    e(f"s_lshl_b32 s{sT0}, s{sW}, 10")
    e(f"s_add_u32 s{sT0}, s{sT0}, {G2S[0]}")
    e(f"v_add_u32 v{vA2}, s{sT0}, v{vL16}")
    e(f"v_add_u32 v{vB2}, {G2S[0]}, v{vL16b}")

    def reads2(kk):
        f = vF2[kk]
        return [f"ds_read_b128 {r4(f)}, v{vA2} offset:{kk*KB}"] + \
               [f"ds_read_b128 {r4(f+4+4*nu)}, v{vB2} offset:{kk*KB+nu*1024}" for nu in range(NT)]

    def mfmas2(kk, zero=False):
        f = vF2[kk]
        return [f"v_mfma_f32_16x16x32_bf16 {r4(vG+4*nu)}, {r4(f+4+4*nu)}, {r4(f)}, {'0' if zero else r4(vG+4*nu)}" for nu in range(NT)]

    def g2_body(fill=None, nf=0, gs=None, count=None, okw=False):
        first = gs == 0
        e("s_waitcnt lgkmcnt(0)")
        e("s_barrier")
        if okw:
            e(f"ds_read_b64 v[22:23], v21")
        for half in range(2):
            rd = reads2(2*half) + reads2(2*half+1)
            mm = mfmas2(2*(1-half), zero=(first and half == 1)) + mfmas2(2*(1-half)+1)
            if first and half == 0:
                mm = []
            if half == 1:
                e("s_waitcnt lgkmcnt(0)" if fill else f"s_waitcnt lgkmcnt({NT+1})")
            if fill:
                fill.release()
            for x in rd[:2]:
                e(x)
            rd = rd[2:]
            for k, m in enumerate(mm):
                if half == 1 and k == NT and not fill:
                    e(f"s_waitcnt lgkmcnt({NT+2})")
                e(m)
                if rd:
                    e(rd.pop(0))
            for x in rd:
                e(x)
            if fill:
                fill.emit(nf)
        if gs is None:
            e(f"s_mov_b32 s{sD}, {(G2S[1]-G2S[0]) & 0xffffffff:#x}")
            e(f"s_cmp_eq_u32 s{sSlot}, 1")
            e(f"s_cselect_b32 s{sD}, {(G2S[2]-G2S[1]) & 0xffffffff:#x}, s{sD}")
            e(f"s_cmp_eq_u32 s{sSlot}, 2")
            e(f"s_cselect_b32 s{sD}, {(G2S[0]-G2S[2]) & 0xffffffff:#x}, s{sD}")
            e(f"s_cselect_b32 s{sSlot}, -1, s{sSlot}")
            e(f"s_add_u32 s{sSlot}, s{sSlot}, 1")
            e(f"v_add_u32 v{vA2}, s{sD}, v{vA2}")
            e(f"v_add_u32 v{vB2}, s{sD}, v{vB2}")
            e(f"s_add_u32 s{sCnt}, s{sCnt}, 1")
            e(f"s_cmp_lt_u32 s{sCnt}, {count}")
        else:
            d = (G2S[(gs+1) % 3] - G2S[gs % 3]) & 0xffffffff
            e(f"v_add_u32 v{vA2}, {d:#x}, v{vA2}")
            e(f"v_add_u32 v{vB2}, {d:#x}, v{vB2}")

    def g2_loop(name, gs0, upto, init=True):
        if init:
            e(f"s_mov_b32 s{sCnt}, {gs0}")
            e(f"s_mov_b32 s{sSlot}, {gs0 % 3}")
        e(".p2align 3")
        e.label(name)
        g2_body(count=upto)
        e(f"s_cbranch_scc1 {name}")

    magic = -(-65536 // CH)

    def fin_items():
        out = [[f"s_lshl_b32 s{sT0}, s{sT64}, 6", f"s_lshl_b32 s{sT1}, s{sW}, 4", f"s_add_u32 s{sT0}, s{sT0}, s{sT1}",
                f"s_mul_i32 s{sT2}, s{sT0}, 1280", f"s_mul_i32 s{sT3}, s{sP}, 320", f"s_add_u32 s{sT2}, s{sT2}, s{sT3}",
                f"s_add_u32 s{sT2}, s{sT2}, {T0*32}",
                f"s_lshl_b32 s{sA0}, s{sT0}, 2", f"s_add_u32 s{sA0}, s{sA0}, {RSTD_OFF}",
                f"s_mul_i32 s{sT1}, s{sW}, {16*PITCH}", f"s_add_u32 s{sT1}, s{sT1}, {OUT_LDS}"]]
        for r in range(R):
            out += [f"v_add_u32 v{vT}, {64*r}, v{vLane}", f"v_mul_u32_u24 v{vT+1}, {magic}, v{vT}", f"v_lshrrev_b32 v{vT+1}, 16, v{vT+1}",
                    f"v_mul_u32_u24 v{vT+2}, {CH}, v{vT+1}", f"v_sub_u32 v{vT+2}, v{vT}, v{vT+2}",
                    f"v_mul_u32_u24 v{vT+3}, 1280, v{vT+1}", f"v_lshl_add_u32 v{vT+3}, v{vT+2}, 4, v{vT+3}",
                    f"v_add_u32 v{vGo+r}, s{sT2}, v{vT+3}", f"v_mul_u32_u24 v{vT+3}, {PITCH}, v{vT+1}",
                    f"v_lshl_add_u32 v{vT+3}, v{vT+2}, 5, v{vT+3}", f"v_add_u32 v{vLr+r}, s{sT1}, v{vT+3}",
                    f"v_lshlrev_b32 v{vRa+r}, 2, v{vT+1}"]
        if (16*CH) % 64:
            assert (16*CH) % 64 == 32
            r = R - 1
            out += [f"v_mov_b32 v{vT+4}, {OOB}",
                    f"v_cndmask_b32 v{vGo+r}, v{vGo+r}, v{vT+4}, s[{sHIm}:{sHIm+1}]",
                    f"v_cndmask_b32 v{vRa+r}, v{vRa+r}, v{vT+4}, s[{sHIm}:{sHIm+1}]",
                    f"v_cndmask_b32 v{vLr+r}, v{vLr+r}, v{vLr}, s[{sHIm}:{sHIm+1}]"]
        out += [f"v_and_b32 v{vT}, 15, v{vLane}", f"v_mul_u32_u24 v{vT}, {PITCH}, v{vT}", f"v_lshrrev_b32 v{vT+1}, 4, v{vLane}",
                f"v_lshl_add_u32 v{vT}, v{vT+1}, 4, v{vT}", f"v_add_u32 v{vLw}, s{sT1}, v{vT}"]
        ld = []
        for r in range(R):
            ld.append((f"buffer_load_dwordx4 {r4(vXd+4*r)}, v{vGo+r}, s[{S_X}:{S_X+3}], 0 offen", "x"))
            ld.append((f"buffer_load_dword v{vRs+r}, v{vRa+r}, s[{S_WS}:{S_WS+3}], s{sA0} offen sc1", "x"))
        return out, ld

    gs = 0

    def run_fill(items):
        nonlocal gs
        fl = Fill(items)
        while not fl.done():
            CUR[0] = gs
            g2_body(fl, NFG, gs=gs)
            gs += 1

    fa, fl_ = fin_items()
    if KV:
        run_fill(fa)
        g2_loop(f"L_C{typ}_g2", gs, 15)
    else:
        F = []
        for s in range(5):
            a = A_(6) + 8*s
            for j in range(4):
                F += phi2(PQ+4*s+j, a+2*j, a+2*j+1, vRl, vRl)
            if s == H2F:
                F.append(flag_item("h2", 2, "h2_flag"))
        if PQB:
            e("s_nop 7")
            Fill(F).emit(100000)
            F = ["s_nop 0"]
        run_fill(F)
        vKr = 20
        e(f"v_and_b32 v{vKr}, 31, v{vLane}")
        e(f"v_mul_u32_u24 v{vKr}, {KVT_P}, v{vKr}")
        e(f"v_lshl_add_u32 v{vKr}, v{vHi}, 4, v{vKr}")
        e(f"v_add_u32 v{vKr}, {KVT_LDS}, v{vKr}")
        e(f"v_mov_b32 v21, {OKW_LDS}")
        e(f"ds_read_b64 v[22:23], v21")
        e(f"s_lshr_b32 s{sT0}, s{sG}, 1")
        e(f"s_mul_i32 s{sT0}, s{sT0}, {5*4096}")
        e(f"s_add_u32 s{sT0}, s{sT0}, {48*4096}")
        e(f"s_add_u32 s{sT0}, s{sT0}, s{sACT}")
        e(f"s_and_b32 s{sT1}, s{sG}, 1")
        e(f"s_mul_i32 s{sT2}, s{sT1}, {3*4096}")
        e(f"s_add_u32 s{sT2}, s{sT2}, s{sT0}")
        e(f"s_add_u32 s{sT3}, s{sT2}, 4096")
        e(f"s_lshl_b32 s{sT1}, s{sT1}, 9")
        e(f"s_add_u32 s{sT0}, s{sT0}, s{sT1}")
        e(f"s_add_u32 s{sT0}, s{sT0}, {2*4096}")
        e(f"s_mov_b32 s{sCnt}, {gs}")
        e(f"s_mov_b32 s{sSlot}, {gs % 3}")
        e(f"s_mov_b32 s{sTw}, 0")
        e("s_waitcnt lgkmcnt(0)")
        e("s_branch L_CQ_chk")
        e(".p2align 3")
        e.label("L_CQ_dyn")
        g2_body(count=10, okw=True)
        e(f"s_cselect_b32 s{sTw}, 0, 1")
        e.label("L_CQ_chk")
        e(f"v_min_u32 v22, v22, v23")
        e("s_nop 0")
        e(f"v_readfirstlane_b32 s{sB}, v22")
        e("s_nop 3")
        e(f"s_or_b32 s{sTw}, s{sTw}, s{sB}")
        e("s_cbranch_scc0 L_CQ_dyn")
        e.stamp("g2_mid")
        OA = 128
        free = list(range(vF2[0], vF2[2], 4)) + list(range(176, 200, 4))
        frs = free[:12]
        need = [(2, 0), (0, 0), (2, 1), (0, 1), (1, 1), (2, 2), (0, 2), (1, 2), (2, 3), (1, 3), (2, 4), (1, 4)]
        for n, (o, s) in enumerate(need):
            e(f"ds_read_b128 {r4(frs[n])}, v{vKr} offset:{o*32*KVT_P+32*s}")
        first = {}
        for n, (o, s) in enumerate(need):
            e(f"s_waitcnt lgkmcnt({11-n})")
            d = f"v[{OA+16*o}:{OA+16*o+15}]"
            e(f"v_mfma_f32_32x32x16_bf16 {d}, {r4(frs[n])}, {r4(PQ+4*s)}, {'0' if o not in first else d}")
            first[o] = 1
        e("s_nop 9")
        Fr = vT
        for h in range(4):
            e(f"v_add_f32 v{Fr+h}, {f32bits(1e-6):#x}, v{OA+32+h}")
        for h in range(4):
            e(f"v_rcp_f32 v{Fr+h}, v{Fr+h}")
        e("s_nop 0")
        for h in range(4):
            e(f"v_mul_f32 v{Fr+h}, v{Fr+h}, v{vSd}")
        e(f"v_cndmask_b32 v{Fr+4}, v{Fr}, v{Fr+1}, s[{sHIm}:{sHIm+1}]")
        e(f"v_cndmask_b32 v{Fr+5}, v{Fr+2}, v{Fr+3}, s[{sHIm}:{sHIm+1}]")
        OP = 176
        k = 0
        dests = [(sT2, 0), (sT2, 512), (sT3, 0), (sT3, 512), (sT0, 0)]
        for o in range(3):
            for q in range(4):
                if o == 2 and q < 2:
                    continue
                C0 = 8*o + 2*q if o < 2 else 16 + 2*(q-2)
                f = Fr + C0 // 5 if C0 // 5 == (C0+1) // 5 else Fr + 4 + (0 if C0 == 4 else 1)
                a = OA + 16*o + 4*q
                for r in range(4):
                    e(f"v_mul_f32 v{a+r}, v{a+r}, v{f}")
                e(f"v_cvt_pk_bf16_f32 v{OP+k}, v{a}, v{a+1}")
                e(f"v_cvt_pk_bf16_f32 v{OP+k+1}, v{a+2}, v{a+3}")
                k += 2
                if k % 4 == 0:
                    sg, off = dests[k//4 - 1]
                    e.vmop(f"buffer_store_dwordx4 {r4(OP+k-4)}, v{vSt}, s[{S_WS}:{S_WS+3}], s{sg} offen offset:{off} sc1", "ost")
        e.op(fa)
        e(f"s_cmp_ge_u32 s{sCnt}, 9")
        e("s_cbranch_scc1 L_CQ_of")
        g2_body(count=99)
        e.label("L_CQ_of")
        e.wait_vm({"ost"})
        e.flag_store(3)
        e.stamp("o_flag")
        g2_loop("L_CQ_g2c", None, 15, init=False)
    e.op(fl_)
    g2_loop(f"L_C{typ}_g2e", None, 17, init=False)
    e("s_waitcnt lgkmcnt(0)")
    for m in mfmas2(2) + mfmas2(3):
        e(m)
    e.stamp("g2_done")
    e("s_nop 7")
    for nu in range(NT):
        e(f"ds_write_b128 v{vLw}, {r4(vG+4*nu)} offset:{nu*64}")
    e("s_waitcnt lgkmcnt(0)")
    for r in range(R):
        for h in range(2):
            e(f"ds_read_b128 {r4(RB+r*8+h*4)}, v{vLr+r} offset:{h*16}")
    e.wait_vm({"x"})
    for r in range(R):
        e(f"s_waitcnt lgkmcnt({2*(R-1-r)})")
        b = RB + r*8
        o = vO + 4*r
        for k in range(4):
            xr = vXd + 4*r + k
            e(f"v_lshlrev_b32 v{vT}, 16, v{xr}")
            e(f"v_and_b32 v{vT+1}, s{sHiMask}, v{xr}")
            e(f"v_fma_f32 v{vT}, v{b+2*k}, v{vRs+r}, v{vT}")
            e(f"v_fma_f32 v{vT+1}, v{b+2*k+1}, v{vRs+r}, v{vT+1}")
            e(f"v_cvt_pk_bf16_f32 v{o+k}, v{vT}, v{vT+1}")
        e(f"buffer_store_dwordx4 {r4(o)}, v{vGo+r}, s[{S_OUT}:{S_OUT+3}], 0 offen")
    e.stamp("end")
    e.stamp("end_real", True)
    e.stamp_flush()
    e("s_endpgm")
    return e


class HR:
    vC = 32
    vCs = 36
    vOOB = 45
    vU = 58
    vD = 64
    vXa = 112
    vSx = 116
    vXd = 120
    sTi = [96, 97, 95 - 0]


TI = [96, 97, 78]


def sets(KV):
    return [IMG_KV, IMG_KV] if KV else [IMG_H, IMG_H2, IMG_Q]


def partial_setup(e, KV):
    H = HR
    vU = H.vU
    S = sets(KV)
    lane_part(e, S[0], vU, vT)
    e(f"s_mul_i32 s{sT0}, s{sW}, {S[0]['t']}")
    e(f"s_add_u32 s{sT0}, s{sT0}, {WA_OFF}")
    e(f"v_add_u32 v{H.vC}, s{sT0}, v{vU}")
    e(f"s_lshl_b32 s{TI[0]}, s{sW}, 7")
    if KV:
        e(f"v_add_u32 v{H.vC+1}, {WA_OFF + 256}, v{vU}")
        e(f"s_mov_b32 s{TI[1]}, 512")
    else:
        e.para()
        lane_part(e, IMG_H2, vU, vT)
        e(f"s_and_b32 s{TI[1]}, s{sW}, 1")
        e(f"s_lshl_b32 s{sT0}, s{TI[1]}, 9")
        e(f"s_add_u32 s{sT0}, s{sT0}, {H2_OFF0}")
        e(f"v_add_u32 v{H.vC+1}, s{sT0}, v{vU}")
        e(f"s_add_u32 s{TI[1]}, s{TI[1]}, 4")
        e(f"s_lshl_b32 s{TI[1]}, s{TI[1]}, 7")
    e.para()
    if not KV:
        lane_part(e, IMG_Q, vU, vT)
        e(f"s_min_u32 s{TI[2]}, s{sW}, 2")
        e(f"s_lshl_b32 s{sT0}, s{TI[2]}, 6")
        e(f"s_add_u32 s{sT0}, s{sT0}, {MISC}")
        e(f"v_add_u32 v{H.vC+2}, s{sT0}, v{vU}")
        e(f"s_add_u32 s{TI[2]}, s{TI[2]}, 6")
        e(f"s_lshl_b32 s{TI[2]}, s{TI[2]}, 7")
        e.para()
    x_addrs(e, H.vXa, vT)
    e.para()


def partial_reads(KV):
    H = HR
    rd = [f"ds_read_b128 {r4(H.vXd+4*kk)}, v{H.vXa+kk}" for kk in range(4)]
    for k, I in enumerate(sets(KV)):
        for kk in range(4):
            for h in range(2):
                d = H.vD + 16*k + 4*kk + 2*h
                rd.append(f"ds_read_b64_tr_b16 v[{d}:{d+1}], v{H.vC+k} offset:{kk*I['kk'] + h*I['s']}")
    return rd


def partial_valu(KV):
    H = HR
    n = len(sets(KV))
    vSx, vCs, a = H.vSx, H.vCs, H.vU
    P = [[f"v_mov_b32 v{vSx+r}, 0" for r in range(4)] + [f"v_mov_b32 v{vCs+r}, 0" for r in range(2*n)]]
    for r in range(0, 16, 2):
        x = H.vXd + r
        P.append([f"v_lshlrev_b32 v{a}, 16, v{x}", f"v_and_b32 v{a+1}, s{sHiMask}, v{x}",
                  f"v_lshlrev_b32 v{a+2}, 16, v{x+1}", f"v_and_b32 v{a+3}, s{sHiMask}, v{x+1}",
                  f"v_add_f32 v{vSx}, v{vSx}, v{a}", f"v_add_f32 v{vSx+1}, v{vSx+1}, v{a+1}",
                  f"v_fmac_f32 v{vSx+2}, v{a}, v{a}", f"v_fmac_f32 v{vSx+3}, v{a+1}, v{a+1}",
                  f"v_add_f32 v{vSx}, v{vSx}, v{a+2}", f"v_add_f32 v{vSx+1}, v{vSx+1}, v{a+3}",
                  f"v_fmac_f32 v{vSx+2}, v{a+2}, v{a+2}", f"v_fmac_f32 v{vSx+3}, v{a+3}, v{a+3}"])
    for r in range(16):
        g = []
        for k in range(n):
            x = H.vD + 16*k + r
            g += [f"v_lshlrev_b32 v{a+2*k}, 16, v{x}", f"v_and_b32 v{a+2*k+1}, s{sHiMask}, v{x}"]
        for k in range(2*n):
            g.append(f"v_add_f32 v{vCs+k}, v{vCs+k}, v{a+k}")
        P.append(g)
    cs = [vSx, vSx+1] + [vCs+2*k for k in range(n)]
    P.append([f"v_add_f32 v{vSx}, v{vSx}, v{vSx+1}", f"v_add_f32 v{vSx+1}, v{vSx+2}, v{vSx+3}"] +
             [f"v_add_f32 v{vCs+2*k}, v{vCs+2*k}, v{vCs+2*k+1}" for k in range(n)] +
             [f"v_mov_b32 v{a+k}, v{c}" for k, c in enumerate(cs)] + ["s_nop 1"] +
             [f"v_permlane32_swap_b32 v{c}, v{a+k}" for k, c in enumerate(cs)] + ["s_nop 1"] +
             [f"v_add_f32 v{c}, v{c}, v{a+k}" for k, c in enumerate(cs)] +
             [f"v_max_u32 v{c}, 1, v{c}" for c in cs])
    return P


def partial_publish(e, KV):
    H = HR
    vU = H.vU
    slot_offsets(e, sT0, sT3)
    e(f"s_lshl_b32 s{sT1}, s{sW}, 8")
    e(f"s_add_u32 s{sT0}, s{sT0}, s{sT1}")
    e(f"v_lshlrev_b32 v{vU}, 1, v{vL31x4}")
    e(f"v_cndmask_b32 v{vU}, v{vU}, v{H.vOOB}, s[{sHIm}:{sHIm+1}]")
    e.vmop(f"buffer_store_dwordx2 v[{H.vSx}:{H.vSx+1}], v{vU}, s[{S_WS}:{S_WS+3}], s{sT0} offen sc1", "pp")
    e(f"v_add_u32 v{vU+1}, s{TI[0]}, v{vL31x4}")
    e(f"v_add_u32 v{vU+2}, s{TI[1]}, v{vL31x4}")
    e(f"v_cndmask_b32 v{vU+1}, v{vU+1}, v{vU+2}, s[{sHIm}:{sHIm+1}]")
    e(f"v_cndmask_b32 v{H.vCs}, v{H.vCs}, v{H.vCs+2}, s[{sHIm}:{sHIm+1}]")
    e.vmop(f"buffer_store_dword v{H.vCs}, v{vU+1}, s[{S_WS}:{S_WS+3}], s{sT3} offen sc1", "pp")
    if not KV:
        e(f"v_add_u32 v{vU+3}, s{TI[2]}, v{vL31x4}")
        e(f"v_cndmask_b32 v{vU+3}, v{vU+3}, v{H.vOOB}, s[{sHIm}:{sHIm+1}]")
        e.vmop(f"buffer_store_dword v{H.vCs+4}, v{vU+3}, s[{S_WS}:{S_WS+3}], s{sT3} offen sc1", "pp")


def loader_path(typ):
    KV = typ == "KV"
    e = Em("L" + typ)
    H = HR
    G2S = G2S_KV if KV else G2S_Q
    NT = NTK if KV else 10 - NTK
    T0 = 0 if KV else NTK
    KB = 4096 + NT*1024
    NS1 = 10 if KV else 20
    vXsrc = 18
    vWsrcA = 22
    vWsrcB = 28
    vOOB = H.vOOB
    sX2, sA2, sB2 = 77, 49, 48
    sCa, sCb, sR3 = 47, 50, 51
    sL2 = 57
    nA, nB = (5, 0) if KV else (4, 3)
    pA, pB = (3840, 3840) if KV else (3072, 3840)
    lA, lB = (5120, 0) if KV else (4096, 3072)
    vWsrcC = 26
    sLc = 56

    e.label(f"L_L{typ}")
    e.stamp("start_real", True)
    e.stamp("start")
    e(f"v_lshrrev_b32 v{vT}, 3, v{vLane}")
    e(f"v_and_b32 v{vT+1}, 7, v{vLane}")
    e(f"v_lshrrev_b32 v{vT+2}, 1, v{vT}")
    e(f"v_xor_b32 v{vT+1}, v{vT+1}, v{vT+2}")
    e(f"v_xor_b32 v{vT+2}, 4, v{vT+1}")
    e(f"v_mul_u32_u24 v{vT}, 1280, v{vT}")
    e(f"v_lshl_add_u32 v{vXsrc}, v{vT+1}, 4, v{vT}")
    e(f"v_lshl_add_u32 v{vXsrc+1}, v{vT+2}, 4, v{vT}")
    e(f"v_add_u32 v{vXsrc+1}, {8*1280}, v{vXsrc+1}")
    e(f"v_add_u32 v{vXsrc+2}, {16*1280}, v{vXsrc}")
    e(f"v_add_u32 v{vXsrc+3}, {16*1280}, v{vXsrc+1}")
    e(f"s_lshl_b32 s{sT3}, s{sW}, 1")
    e(f"s_lshl_b32 s{sT0}, s{sI}, 2")
    e(f"s_add_u32 s{sT0}, s{sT0}, s{sT3}")
    e(f"s_mul_i32 s{sXoff}, s{sT0}, {32*1280}")
    e(f"s_add_u32 s{sXlim}, s{sXoff}, 1280")
    e(f"s_lshl_b32 s{sT0}, s{sRot}, 7")
    e(f"s_add_u32 s{sXoff}, s{sXoff}, s{sT0}")
    e(f"s_lshl_b32 s{sLx}, s{sT3}, 12")
    e(f"s_lshl_b32 s{sT1}, s{sRot}, 2")
    e(f"s_add_u32 s{sT1}, s{sT1}, s{sT3}")
    e(f"s_mul_i32 s{sWoffA}, s{sT1}, {16*pA}")
    e(f"s_mul_i32 s{sWoffB}, s{sT1}, {16*pB}")
    e(f"s_mul_i32 s{sLa}, s{sT3}, {lA}")
    e(f"s_mul_i32 s{sLb}, s{sT3}, {lB}")
    e(f"s_add_u32 s{sX2}, s{sXoff}, {32*1280}")
    e(f"v_mov_b32 v{vOOB}, {OOB}")

    def rowmajor_src(dst, n, div, magic, kind):
        for u in range(n):
            e(f"v_add_u32 v{vT}, {64*u}, v{vLane}")
            e(f"v_mul_u32_u24 v{vT+1}, {magic}, v{vT}")
            e(f"v_lshrrev_b32 v{vT+1}, 16, v{vT+1}")
            e(f"v_mul_u32_u24 v{vT+2}, {div}, v{vT+1}")
            e(f"v_sub_u32 v{vT+2}, v{vT}, v{vT+2}")
            e(f"v_cmp_lt_u32 vcc, 9, v{vT+2}")
            e(f"v_mul_u32_u24 v{vT+1}, 3840, v{vT+1}")
            e(f"v_lshl_add_u32 v{vT+1}, v{vT+2}, 4, v{vT+1}")
            if kind == "kv":
                e(f"v_cndmask_b32 v{vT+3}, v{vT+6}, v{vT+4}, vcc")
                e(f"v_cmp_lt_u32 vcc, 11, v{vT+2}")
                e(f"v_add_u32 v{vT+1}, s{sT0}, v{vT+1}")
                e(f"s_nop 0")
                e(f"v_cndmask_b32 v{vT+3}, v{vT+3}, v{vT+5}, vcc")
                e(f"v_add_u32 v{dst+u}, v{vT+1}, v{vT+3}")
            else:
                e(f"v_add_u32 v{vT+1}, s{sT0}, v{vT+1}")
                e(f"v_cndmask_b32 v{dst+u}, v{vT+1}, v{vOOB}, vcc")

    e(f"s_mul_i32 s{sT0}, s{sG}, 160")
    if KV:
        e(f"v_mov_b32 v{vT+4}, 2528")
        e(f"v_mov_b32 v{vT+5}, 2368")
        e(f"v_mov_b32 v{vT+6}, 1280")
        rowmajor_src(vWsrcA, 5, 20, 3277, "kv")
    else:
        rowmajor_src(vWsrcB, 3, 12, 5462, "q")
        e(f"v_bfe_u32 v{vT}, v{vLane}, 2, 3")
        e(f"v_mul_u32_u24 v{vT}, 3072, v{vT}")
        e(f"v_and_b32 v{vT+1}, 3, v{vLane}")
        e(f"v_lshl_add_u32 v{vT}, v{vT+1}, 4, v{vT}")
        e(f"v_lshl_add_u32 v{vT}, v{vHi}, 6, v{vT}")
        e(f"s_mul_i32 s{sT0}, s{sG}, 384")
        e(f"v_add_u32 v{vWsrcC}, s{sT0}, v{vT}")
        e(f"v_add_u32 v{vWsrcC+1}, {8*3072}, v{vWsrcC}")
        for u in range(4):
            e(f"v_add_u32 v{vWsrcA+u}, {(u // 2)*8*3072 + (u % 2)*128 + 128}, v{vWsrcC}")
    e("s_waitcnt lgkmcnt(0)")
    e.srds(["X", "WQKV", "W1", "WS"])
    e(f"s_add_u32 s{sA2}, s{sWoffA}, {16*pA}")
    e(f"s_add_u32 s{sB2}, s{sWoffB}, {16*pB}")
    e(f"s_lshl_b32 s{sLc}, s{sW}, 12")
    SW_A = S_WQKV if KV else S_W1
    stepA, stepB = 64*pA, 64*pB

    def g1_dmas(s):
        if s >= NS1:
            return []
        base = (s % 3) * SLOT1
        g = []
        doA = s < 10
        doB = (not KV) and (s == 0 or s >= 10)
        bB = MISC if s == 0 else base + Q2_OFF
        bC = base + (H2_OFF0 if s == 0 else WA_OFF)
        for k in range(2):
            for b in range(4):
                g.append([f"s_add_u32 m0, s{sLx}, {base + k*4096 + b*1024}", "s_nop 0",
                          (f"buffer_load_dwordx4 v{vXsrc+b}, s[{S_X}:{S_X+3}], s{[sXoff, sX2][k]} offen lds", ("st", s))])
            if doA:
                for u in range(nA):
                    g.append([f"s_add_u32 m0, s{sLa}, {base + WA_OFF + k*lA + u*1024}", "s_nop 0",
                              (f"buffer_load_dwordx4 v{vWsrcA+u}, s[{SW_A}:{SW_A+3}], s{[sWoffA, sA2][k]} offen lds", ("st", s))])
            if doB:
                for u in range(2):
                    g.append([f"s_add_u32 m0, s{sLc}, {bC + k*2048 + u*1024}", "s_nop 0",
                              (f"buffer_load_dwordx4 v{vWsrcC+u}, s[{S_W1}:{S_W1+3}], s{[sWoffA, sA2][k]} offen lds", ("st", s))])
                for u in range(nB):
                    g.append([f"s_add_u32 m0, s{sLb}, {bB + k*lB + u*1024}", "s_nop 0",
                              (f"buffer_load_dwordx4 v{vWsrcB+u}, s[{S_WQKV}:{S_WQKV+3}], s{[sWoffB, sB2][k]} offen lds", ("st", s))])
        adv = [f"s_add_u32 s{sXoff}, s{sXoff}, 128", f"s_cmp_ge_u32 s{sXoff}, s{sXlim}", f"s_cselect_b32 s{sTw}, 1280, 0",
               f"s_sub_u32 s{sXoff}, s{sXoff}, s{sTw}", f"s_add_u32 s{sX2}, s{sXoff}, {32*1280}"]
        for (do, so, s2, st, p) in ((True, sWoffA, sA2, stepA, pA), (s >= 10, sWoffB, sB2, stepB, pB)):
            if do:
                adv += [f"s_add_u32 s{so}, s{so}, {st}", f"s_cmp_ge_u32 s{so}, {10*st}", f"s_cselect_b32 s{sTw}, {10*st}, 0",
                        f"s_sub_u32 s{so}, s{so}, s{sTw}", f"s_add_u32 s{s2}, s{so}, {16*p}"]
        g[-1] = g[-1] + adv
        return g

    vPa, vTwo, vPb, vPm = 46, 47, 48, 49
    e.capture()
    partial_setup(e, KV)
    e(f"s_lshl_b32 s{sT3}, s{sW}, 1")
    e(f"s_mul_i32 s{sA0}, s{sT64}, 68")
    e(f"s_add_u32 s{sA0}, s{sA0}, s{sT3}")
    e(f"s_lshl_b32 s{sA0}, s{sA0}, 12")
    e(f"s_mul_i32 s{sB0}, s{sP}, 68")
    e(f"s_add_u32 s{sB0}, s{sB0}, s{sT3}")
    e(f"s_mul_i32 s{sB0}, s{sB0}, 10240")
    e(f"s_add_u32 s{sB0}, s{sB0}, {W2R_OFF + T0*1024}")
    e(f"s_mul_i32 s{sL2}, s{sT3}, {KB}")
    e.para()
    e(f"s_mov_b32 s{sCa}, 0")
    e(f"s_mov_b32 s{sCb}, 0")
    if KV:
        e.para()
        pr_addr(e, vPa, vT)
        e(f"v_mov_b32 v{vTwo}, 2")
        e.para()
        pq_addr(e, vT+2, vT)
        e(f"v_cmp_gt_u32 vcc, 16, v{vLane}")
        e(f"v_mov_b32 v{vT+3}, 1")
        e("s_nop 0")
        e(f"v_cndmask_b32 v{vPb}, v{vOOB}, v{vT+2}, vcc")
        e(f"v_cndmask_b32 v{vPm}, 0, v{vT+3}, vcc")
    setup = e.end_capture()
    d0 = g1_dmas(0)
    e.op(d0[:10])
    e.merge(d0[10:], setup)
    e.stamp("st0_issued")
    e.op(g1_dmas(1))
    e.stamp("st1_issued")

    def cursor(cur, s):
        return [f"s_add_u32 s{cur}, s{cur}, 1"]

    def a_dmas(s):
        base = G2S[s % 3]
        g = [f"s_lshl_b32 s{sA}, s{sCa}, 14", f"s_add_u32 s{sA}, s{sA}, s{sA0}"]
        for k in range(2):
            g += [f"s_add_u32 m0, s{sL2}, {base + k*KB}", "s_nop 0"]
            for m in range(4):
                g.append((f"buffer_load_dwordx4 v{[vL16, vL16b][k]}, s[{S_WS}:{S_WS+3}], s{sA} offen offset:{1024*m} sc1 lds", ("g2", s)))
        return g + cursor(sCa, s)

    def b_dmas(s):
        base = G2S[s % 3] + 4096
        g = [f"s_mul_i32 s{sB}, s{sCb}, {4*10240}", f"s_add_u32 s{sB}, s{sB}, s{sB0}"]
        for k in range(2):
            for nu in range(NT):
                if nu % 4 == 0:
                    g += [f"s_add_u32 m0, s{sL2}, {base + k*KB + nu*1024}", "s_nop 0"]
                g.append((f"buffer_load_dwordx4 v{[vL16, vL16b][nu // 4]}, s[{S_WS}:{S_WS+3}], s{sB} offen offset:{1024*(nu % 4)} sc1 lds", ("g2", s)))
            if k == 0:
                g.append(f"s_add_u32 s{sB}, s{sB}, 10240")
        return g + cursor(sCb, s)

    PV = partial_valu(KV)
    n2 = len(PV) // 2
    for s in range(NS1):
        e.c(f"--- G1 stage {s} ---")
        e.wait_vm({("st", s)}, lgkm=0)
        e("s_barrier")
        e.stamp(f"B{s}")
        dm = g1_dmas(s + 2) if s != 10 else []
        va = []
        if s == 0:
            for x in partial_reads(KV):
                e(x)
            e.op(dm.pop(0))
            e.op(dm.pop(0))
            e("s_waitcnt lgkmcnt(0)")
            va = PV[:n2]
        if s == 1:
            va = PV[n2:]
        e.merge(dm, va)
        if s == 1:
            partial_publish(e, KV)
        if s == 9:
            e("s_barrier")
            e.stamp("E1")
            e.op(g1_dmas(12))
        if s == 18:
            e.op(a_dmas(0))
            e.op(b_dmas(0))
        if s == 19:
            e.op(a_dmas(1))
    if KV:
        e.poll_issue(vPa, S_WS, "pr")
        e.poll_check(vPa, S_WS, vTwo, "pr")
        e.stamp("PR_ok")
        e.op(b_dmas(0))
        e.op(b_dmas(1))
        e.poll_issue(vPb, S_WS, "pq")
        if not AE:
            e("s_barrier")
            e.stamp("E3")
        e.poll_check(vPb, S_WS, vPm, "pq")
        e.stamp("PQ_ok")
        e.op(a_dmas(0))
        e.op(a_dmas(1))
        if AE:
            e("s_barrier")
            e.stamp("E3")
    else:
        e("s_barrier")
        e.stamp("E3")
        e.op(b_dmas(1))
        e.op(a_dmas(2))
        e.op(b_dmas(2))
    for s in range(17):
        e.c(f"--- G2 stage {s} ---")
        e.wait_vm({("g2", s)})
        e("s_barrier")
        e.stamp(f"G{s}")
        n = s + 2
        if (s >= 1 or KV) and n < 17:
            e.op(a_dmas(n))
            e.op(b_dmas(n))
    e.stamp("end")
    e.stamp("end_real", True)
    e.stamp_flush()
    e("s_endpgm")
    return e


def service_path(typ):
    KV = typ == "KV"
    e = Em("S" + typ)
    H = HR
    vOOB, vU, vD = H.vOOB, H.vU, H.vD
    vOne, vThree = 46, 31
    vPRa, vPQa, vPKa, vInA = 47, 48, 50, 51
    vN16_1, vN16_2, vNR, vInN = 52, 53, 54, 55
    vTid = 56
    vN16_3 = 49
    vN32_3 = 44
    vRs = 140
    vRPa = 150
    vPL = 152
    KA = 160
    vRD = 176
    vP2 = 220
    sSW = 49
    sRd = [77, 63]
    S_RP2 = 12
    sPs, sPc = 44, 45
    sSt = 64

    e.label(f"L_S{typ}")
    e.stamp("start_real", True)
    e.stamp("start")
    e(f"v_mov_b32 v{vOOB}, {OOB}")
    partial_setup(e, KV)
    e(f"s_sub_u32 s{sTw}, s{sW}, 2")
    e("s_waitcnt lgkmcnt(0)")
    e.srds(["WS", "DBG"])
    half = 0 if KV else 1
    for n in range(2):
        srd = [S_RP, S_RP2][n]
        e(f"s_lshl_b32 s{sT1}, s{sTw}, 5")
        e(f"s_add_u32 s{sT1}, s{sT1}, s{sT64}")
        if n:
            e(f"s_add_u32 s{sT1}, s{sT1}, 64")
        e(f"s_sub_u32 s76, s{sT1}, 48")
        e(f"s_mul_i32 s60, s76, 13108")
        e(f"s_lshr_b32 s60, s60, 16")
        e(f"s_mul_i32 s61, s60, 5")
        e(f"s_sub_u32 s61, s76, s61")
        e(f"s_lshl_b32 s79, s61, 1")
        e(f"s_cmp_lt_u32 s61, 3")
        e(f"s_cselect_b32 s{sT2}, 0, 1")
        e(f"s_sub_u32 s79, s79, s{sT2}")
        e(f"s_add_u32 s{sT2}, s79, 1")
        e(f"s_cmp_eq_u32 s61, 2")
        e(f"s_cselect_b32 s{sT2}, 9, s{sT2}")
        e(f"s_mul_i32 s60, s60, 10")
        e(f"s_add_u32 s79, s79, s60")
        e(f"s_add_u32 s{sT2}, s{sT2}, s60")
        e(f"s_lshr_b32 s76, s{sT1}, 2")
        e(f"s_mul_i32 s76, s76, 12")
        e(f"s_and_b32 s60, s{sT1}, 3")
        e(f"s_lshl_b32 s60, s60, 1")
        e(f"s_add_u32 s76, s76, s60")
        e(f"s_add_u32 s76, s76, 4")
        e(f"s_sub_u32 s60, s{sT1}, 32")
        e(f"s_lshr_b32 s60, s60, 1")
        e(f"s_mul_i32 s60, s60, 12")
        e(f"s_and_b32 s61, s{sT1}, 1")
        e(f"s_lshl_b32 s61, s61, 1")
        e(f"s_add_u32 s60, s60, s61")
        e(f"s_cmp_lt_u32 s{sT1}, 32")
        e(f"s_cselect_b32 s76, s76, s60")
        e(f"s_add_u32 s60, s76, 1")
        e(f"s_cmp_lt_u32 s{sT1}, 48")
        e(f"s_cselect_b32 s79, s76, s79")
        e(f"s_cselect_b32 s{sT2}, s60, s{sT2}")
        e(f"s_cselect_b32 s{srd}, s54, s48")
        e(f"s_cselect_b32 s{srd+1}, s55, s49")
        e(f"s_mov_b32 s{srd+2}, {640*1280}")
        e(f"s_cselect_b32 s{srd+2}, {1536*1280}, s{srd+2}")
        e(f"s_mov_b32 s{srd+3}, 0x00020000")
        e(f"s_mul_i32 s76, s{sP}, 320")
        e(f"s_add_u32 s76, s76, {160*half}")
        e(f"s_mul_i32 s79, s79, {16*1280}")
        e(f"s_mul_i32 s{sT2}, s{sT2}, {16*1280}")
        e(f"s_sub_u32 s{sT2}, s{sT2}, {16*1280}")
        e(f"s_add_u32 s79, s79, s76")
        e(f"s_add_u32 s{sT2}, s{sT2}, s76")
        e(f"s_mul_i32 s{sRd[n]}, s{sP}, 68")
        e(f"s_add_u32 s{sRd[n]}, s{sRd[n]}, s{sT1}")
        e(f"s_mul_i32 s{sRd[n]}, s{sRd[n]}, 10240")
        e(f"s_add_u32 s{sRd[n]}, s{sRd[n]}, {W2R_OFF + 5120*half}")
        e(f"s_cmp_lt_u32 s{sT1}, 68")
        e(f"s_cselect_b32 s79, s79, {OOB}")
        e(f"s_cselect_b32 s{sT2}, s{sT2}, {OOB}")
        e(f"s_cselect_b32 s{sRd[n]}, s{sRd[n]}, {OOB}")
        e(f"v_mov_b32 v{vT+3}, s79")
        e(f"v_mov_b32 v{vT+4}, s{sT2}")
        for u in range(5):
            e(f"v_add_u32 v{vU}, {64*u}, v{vLane}")
            e(f"v_mul_u32_u24 v{vT+1}, 6554, v{vU}")
            e(f"v_lshrrev_b32 v{vT+1}, 16, v{vT+1}")
            e(f"v_mul_u32_u24 v{vT+2}, 10, v{vT+1}")
            e(f"v_sub_u32 v{vT+2}, v{vU}, v{vT+2}")
            e(f"v_cmp_lt_u32 vcc, 15, v{vT+1}")
            e(f"v_mul_u32_u24 v{vT+1}, 1280, v{vT+1}")
            e(f"v_lshl_add_u32 v{vT+1}, v{vT+2}, 4, v{vT+1}")
            e(f"v_cndmask_b32 v{vT+5}, v{vT+3}, v{vT+4}, vcc")
            e(f"v_add_u32 v{vRs+5*n+u}, v{vT+1}, v{vT+5}")
    e(f"s_mov_b32 s{sSW}, s{sTw}")
    e(f"s_mul_i32 s{sLa}, s{sSW}, 10240")
    e(f"s_add_u32 s{sLa}, s{sLa}, {MISC}")
    e(f"v_bfe_u32 v{vU}, v{vLane}, 4, 1")
    e(f"v_bfe_u32 v{vT+1}, v{vLane}, 2, 2")
    e(f"v_lshl_add_u32 v{vU}, v{vU}, 2, v{vT+1}")
    e(f"v_lshl_add_u32 v{vU}, v{vHi}, 4, v{vU}")
    e(f"v_mul_u32_u24 v{vU}, 160, v{vU}")
    e(f"v_and_b32 v{vT+1}, 3, v{vLane}")
    e(f"v_lshl_add_u32 v{vU}, v{vT+1}, 3, v{vU}")
    e(f"v_add_u32 v{vRPa}, s{sLa}, v{vU}")
    e(f"v_subrev_u32 v{vTid}, 384, v0")
    e(f"v_mov_b32 v{vOne}, 1")
    e(f"v_mov_b32 v{vThree}, 3")
    e(f"v_cmp_gt_u32 vcc, 2, v{vTid}")
    e(f"v_lshlrev_b32 v{vT+1}, 7, v{vLane}")
    e(f"v_mov_b32 v{vT+3}, 128")
    e(f"v_cndmask_b32 v{vInA}, v{vOOB}, v{vT+1}, vcc")
    e(f"v_cndmask_b32 v{vInN}, 0, v{vT+3}, vcc")
    pq_addr(e, vT+2, vT)
    e(f"v_cmp_gt_u32 vcc, 16, v{vTid}")
    e(f"v_mov_b32 v{vT+3}, 2")
    e("s_nop 0")
    e(f"v_cndmask_b32 v{vPQa}, v{vOOB}, v{vT+2}, vcc")
    e(f"v_cndmask_b32 v{vN16_1}, 0, v{vOne}, vcc")
    e(f"v_cndmask_b32 v{vN16_2}, 0, v{vT+3}, vcc")
    e(f"v_cndmask_b32 v{vN16_3}, 0, v{vThree}, vcc")
    if not KV:
        pr_addr(e, vT+2, vT)
        e(f"v_cmp_gt_u32 vcc, 64, v{vTid}")
        e("s_nop 1")
        e(f"v_cndmask_b32 v{vPRa}, v{vOOB}, v{vT+2}, vcc")
        e(f"v_cndmask_b32 v{vNR}, 0, v{vT+3}, vcc")
    ncol = 160 if KV else 256
    e(f"v_lshlrev_b32 v{vT+1}, 2, v{vL31x4}")
    e(f"s_lshl_b32 s{sT0}, s{sSW}, 9")
    e(f"v_add_u32 v{vT+1}, s{sT0}, v{vT+1}")
    e(f"v_lshl_add_u32 v{vPL}, v{vHi}, 10, v{vT+1}")
    e(f"v_cmp_gt_u32 vcc, {ncol*4}, v{vT+1}")
    e(f"v_and_b32 v{vT+2}, 0x7f, v{vT+1}")
    e(f"s_mul_i32 s{sPs}, s{sI}, 10240")
    e(f"s_add_u32 s{sPs}, s{sPs}, {STP_OFF}")
    e(f"v_cndmask_b32 v{vT+3}, v{vT+2}, v{vT+1}, vcc")
    e(f"v_lshl_add_u32 v{vPL+1}, v{vHi}, 11, v{vT+3}")
    e(f"v_lshl_add_u32 v{vPL+4}, v{vHi}, 11, v{vT+2}")
    e(f"s_mul_i32 s{sPc}, s{sJ}, 20480")
    e(f"s_add_u32 s{sPc}, s{sPc}, {CSP_OFF}")
    e(f"v_lshlrev_b32 v{vPL+3}, 1, v{vT+1}")
    e(f"v_lshl_add_u32 v{vPL+3}, v{vHi}, 4, v{vPL+3}")
    e(f"v_add_u32 v{vPL+3}, {EXT_LDS}, v{vPL+3}")
    e(f"v_lshlrev_b32 v{vT+2}, 1, v{vT+2}")
    e(f"v_lshl_add_u32 v{vT+2}, v{vHi}, 4, v{vT+2}")
    e(f"v_add_u32 v{vPL+5}, {EXT_LDS + 2048}, v{vT+2}")
    e(f"v_lshrrev_b32 v{vT+1}, 3, v{vT+1}")
    e(f"v_add_u32 v{vPL+2}, v{vT+1}, v{vHi}")
    if not KV:
        e(f"s_lshl_b32 s{sT0}, s{sG}, 8")
        e(f"s_add_u32 s{sT0}, s{sT0}, {FLG_OFF + 96 + 4}")
        e(f"v_lshrrev_b32 v{vT+1}, 1, v{vLane}")
        e(f"v_lshlrev_b32 v{vT+1}, 11, v{vT+1}")
        e(f"v_and_b32 v{vT+3}, 1, v{vLane}")
        e(f"v_lshl_add_u32 v{vT+1}, v{vT+3}, 4, v{vT+1}")
        e(f"v_add_u32 v{vT+1}, s{sT0}, v{vT+1}")
        e(f"v_cndmask_b32 v{vPKa}, v{vT+1}, v{vOOB}, s[{sHIm}:{sHIm+1}]")
        e(f"v_cndmask_b32 v{vN32_3}, v{vThree}, 0, s[{sHIm}:{sHIm+1}]")
        for rnd in range(4):
            A1 = KA + 2*rnd
            A2 = A1 + 1
            e(f"v_add_u32 v{vT}, {128*rnd}, v{vTid}")
            e(f"v_mul_u32_u24 v{vT+1}, 3121, v{vT}")
            e(f"v_lshrrev_b32 v{vT+1}, 16, v{vT+1}")
            e(f"v_mul_u32_u24 v{vT+2}, 21, v{vT+1}")
            e(f"v_sub_u32 v{vT+2}, v{vT}, v{vT+2}")
            e(f"v_mul_u32_u24 v{vT+3}, 13108, v{vT+1}")
            e(f"v_lshrrev_b32 v{vT+3}, 16, v{vT+3}")
            e(f"v_mul_u32_u24 v{vT+4}, 20, v{vT+3}")
            e(f"v_add_u32 v{vT+4}, v{vT+4}, v{vT+2}")
            e(f"v_add_u32 v{vT+5}, 16, v{vT+4}")
            e(f"v_cmp_lt_u32 vcc, 63, v{vT+4}")
            e(f"v_add_u32 v{vT+3}, 64, v{vT+3}")
            e(f"v_lshlrev_b32 v{KA+8+rnd}, 4, v{vT}")
            e(f"v_cndmask_b32 v{vT+4}, v{vT+4}, v{vT+5}, vcc")
            e(f"v_cmp_eq_u32 vcc, 20, v{vT+2}")
            e(f"v_add_u32 v{vT+5}, 4, v{vT+3}")
            e("s_nop 0")
            e(f"v_cndmask_b32 v{vT+5}, v{vT+4}, v{vT+5}, vcc")
            e(f"v_cndmask_b32 v{vT+4}, v{vT+4}, v{vT+3}, vcc")
            e(f"v_lshrrev_b32 v{vT+2}, 2, v{vT+1}")
            e(f"v_lshlrev_b32 v{vT+2}, 5, v{vT+2}")
            e(f"v_and_b32 v{vT+3}, 1, v{vT+1}")
            e(f"v_lshl_add_u32 v{vT+2}, v{vT+3}, 4, v{vT+2}")
            e(f"v_and_b32 v{vT+3}, 2, v{vT+1}")
            e(f"v_lshl_add_u32 v{vT+2}, v{vT+3}, 2, v{vT+2}")
            e(f"v_add_u32 v{vT+2}, {KVT_LDS}, v{vT+2}")
            e(f"v_mad_u32_u24 v{A1}, v{vT+4}, s{sKVTP}, v{vT+2}")
            e(f"v_mad_u32_u24 v{A2}, v{vT+5}, s{sKVTP}, v{vT+2}")
        e(f"v_mov_b32 v{vT}, {KVT_LDS + 100*KVT_P}")
        e(f"v_cmp_gt_u32 vcc, 36, v{vTid}")
        e("s_nop 1")
        e(f"v_cndmask_b32 v{KA+6}, v{vT}, v{KA+6}, vcc")
        e(f"v_cndmask_b32 v{KA+7}, v{vT}, v{KA+7}, vcc")
        e(f"v_cndmask_b32 v{KA+11}, v{vOOB}, v{KA+11}, vcc")
    e.stamp("setup_done")

    NG = 2 if KV else 3
    PLI = []
    for k in range(5):
        PLI.append([f"s_add_u32 s{sT0}, s{sPs}, {k*2048}", f"buffer_load_dwordx4 {r4(vD+4*k)}, v{vPL}, s[{S_WS}:{S_WS+3}], s{sT0} offen sc1"])
        PLI.append([f"s_add_u32 s{sT0}, s{sPc}, {k*4096}", f"buffer_load_dwordx4 {r4(vD+20+4*k)}, v{vPL+1}, s[{S_WS}:{S_WS+3}], s{sT0} offen sc1"])
        if not KV:
            PLI.append(["s_nop 0", f"buffer_load_dwordx4 {r4(vD+40+4*k)}, v{vPL+4}, s[{S_WS}:{S_WS+3}], s{sT0} offen offset:1024 sc1"])

    def partial_loads(track, lo=0, hi=99):
        for (a_, ins) in PLI[lo:hi]:
            e(a_)
            if track:
                e.vmop(ins, "pl")
            else:
                e(ins)

    def partial_validate():
        regs = list(range(vD, vD+20*NG))
        e.wait_vm({"pl"})
        e(f"s_mov_b32 s{sSpin}, 0")
        e.label(f"L_pv{typ}")
        e(f"v_min_u32 v{vU}, v{regs[0]}, v{regs[1]}")
        e(f"v_min_u32 v{vU+1}, v{regs[2]}, v{regs[3]}")
        for k in range(4, len(regs), 4):
            e(f"v_min3_u32 v{vU}, v{vU}, v{regs[k]}, v{regs[k+1]}")
            e(f"v_min3_u32 v{vU+1}, v{vU+1}, v{regs[k+2]}, v{regs[k+3]}")
        e(f"v_min_u32 v{vU}, v{vU}, v{vU+1}")
        e(f"v_cmp_eq_u32 vcc, 0, v{vU}")
        e(f"s_add_u32 s{sSpin}, s{sSpin}, 1")
        e(f"s_cmp_lt_u32 s{sSpin}, 0x20000")
        e(f"s_cselect_b64 s[94:95], -1, 0")
        e(f"s_and_b64 vcc, vcc, s[94:95]")
        e(f"s_cbranch_vccz L_pvok{typ}")
        e("s_sleep 2")
        partial_loads(False)
        e("s_waitcnt vmcnt(0)")
        e(f"s_branch L_pv{typ}")
        e.label(f"L_pvok{typ}")

    def partial_finish():
        G = [vD + 20*k for k in range(NG)]
        D = G[0]
        for k in range(1, 5):
            for r in range(4):
                for g in G:
                    e(f"v_add_f32 v{g+r}, v{g+r}, v{g+4*k+r}")
        e("s_nop 1")
        for g in G:
            e(f"v_permlane32_swap_b32 v{g}, v{g+2}")
            e(f"v_permlane32_swap_b32 v{g+1}, v{g+3}")
        e("s_nop 1")
        e(f"v_add_f32 v{D}, v{D}, v{D+2}")
        e(f"v_add_f32 v{D+1}, v{D+1}, v{D+3}")
        CS = []
        for g in G[1:]:
            e(f"v_add_f32 v{g+4}, v{g}, v{g+2}")
            e(f"v_add_f32 v{g+12}, v{g+1}, v{g+3}")
            CS += [g+4, g+12]
        O = D + 4
        sp = []
        for c in CS:
            u, x = c + 4, c + 2
            sp.append([f"v_and_b32 v{u}, s{sHiMask}, v{c}", f"v_sub_f32 v{u}, v{c}, v{u}", f"v_lshrrev_b32 v{c}, 16, v{c}",
                       f"v_and_or_b32 v{x}, v{u}, s{sHiMask}, v{c}", f"v_and_b32 v{u+1}, s{sHiMask}, v{u}",
                       f"v_sub_f32 v{u+1}, v{u}, v{u+1}", f"v_lshrrev_b32 v{x+1}, 16, v{u+1}"])
        sp = [y for p in zip(*sp) for y in p]
        st = [f"v_mul_f32 v{vT+5}, {f32bits(1.0/640):#x}, v{D}", f"v_mul_f32 v{vT+4}, {f32bits(1.0/640):#x}, v{D+1}",
              f"v_fma_f32 v{vT+4}, -v{vT+5}, v{vT+5}, v{vT+4}", f"v_max_f32 v{vT+4}, 0, v{vT+4}",
              f"v_cvt_pk_bf16_f32 v{vT+2}, v{vT+5}, v{vT+4}", f"v_lshlrev_b32 v{vT+3}, 16, v{vT+2}",
              f"v_and_b32 v{vT+4}, s{sHiMask}, v{vT+2}", f"v_add_f32 v{vT+4}, {f32bits(1e-5):#x}, v{vT+4}",
              f"v_cvt_pk_bf16_f32 v{vT+4}, v{vT+4}, v{vT+4}", f"v_and_b32 v{vT+4}, s{sHiMask}, v{vT+4}",
              f"v_sqrt_f32 v{vT+4}, v{vT+4}", f"v_xor_b32 v{vT+2}, 0x80000000, v{vT+3}",
              f"v_cvt_pk_bf16_f32 v{vT+4}, v{vT+4}, v{vT+4}", f"v_and_b32 v{O+2}, s{sHiMask}, v{vT+4}",
              f"v_rcp_f32 v{O+1}, v{O+2}", f"v_lshrrev_b32 v{vT+4}, 16, v{vT+2}",
              f"v_mul_f32 v{O+3}, {f32bits(LOG2E):#x}, v{O+1}", f"v_or_b32 v{O}, v{vT+2}, v{vT+4}"]
        while st or sp:
            if st:
                e(st.pop(0))
            for _ in range(NG - 1):
                if sp:
                    e(sp.pop(0))
        e(f"v_lshrrev_b32 v{vT+1}, 5, v{vPL+2}")
        e(f"v_mul_u32_u24 v{vT+1}, 768, v{vT+1}")
        e(f"v_add_u32 v{vT+1}, {STAT_LDS}, v{vT+1}")
        e(f"v_and_b32 v{vT+3}, 31, v{vPL+2}")
        e(f"v_lshl_add_u32 v{vT+2}, v{vT+3}, 2, v{vT+1}")
        e(f"v_lshl_add_u32 v{vT+1}, v{vT+3}, 4, v{vT+1}")
        e(f"ds_write_b128 v{vT+1}, {r4(O)}")
        if KV:
            e(f"ds_write_b32 v{vT+2}, v{O+3} offset:512")
            e(f"ds_write_b32 v{vT+2}, v{O+1} offset:640")
        for n, c in enumerate(CS):
            e(f"ds_write_b64 v{[vPL+3, vPL+5][n // 2]}, v[{c+2}:{c+3}] offset:{8*(n % 2)}")

    def kv_atomics():
        e(f"v_lshlrev_b32 v{vU}, 2, v{vTid}")
        e(f"v_add_u32 v{vU+2}, 4096, v{vU}")
        e(f"v_add_u32 v{vU+3}, {13*512}, v{vU}")
        e(f"v_cmp_gt_u32 vcc, 16, v{vTid}")
        e(f"s_lshl_b32 s{sT1}, s{sG}, 13")
        e(f"s_add_u32 s{sT1}, s{sT1}, {KVA_OFF}")
        e(f"v_cndmask_b32 v{vU+3}, v{vOOB}, v{vU+3}, vcc")
        e("s_barrier")
        for k in range(14):
            for ww in range(4):
                e(f"ds_read_b32 v{vD+4*k+ww}, v{vU} offset:{CP_LDS+ww*6784+k*512}")
        for k in range(14):
            e(f"s_waitcnt lgkmcnt({min(15, 4*(13-k))})")
            b = vD + 4*k
            e(f"v_add_f32 v{b}, v{b}, v{b+1}")
            e(f"v_add_f32 v{b+2}, v{b+2}, v{b+3}")
            e(f"v_add_f32 v{b}, v{b}, v{b+2}")
            if k < 8:
                e.vmop(f"buffer_atomic_add_f32 v{b}, v{vU}, s[{S_WS}:{S_WS+3}], s{sT1} offen offset:{k*512}", "kva")
            elif k < 13:
                e.vmop(f"buffer_atomic_add_f32 v{b}, v{vU+2}, s[{S_WS}:{S_WS+3}], s{sT1} offen offset:{(k-8)*512}", "kva")
            else:
                e.vmop(f"buffer_atomic_add_f32 v{b}, v{vU+3}, s[{S_WS}:{S_WS+3}], s{sT1} offen", "kva")
        e.wait_vm({"kva"})
        e.flag_store(3, 4)
        e.stamp("kv_flag")

    def cap(fn):
        e.capture()
        fn()
        return [x for p in e.end_capture() for x in p]
    fin = cap(partial_finish)
    nf1 = 40

    def hard_check(vaddr, vneed, dst, name):
        e("s_waitcnt vmcnt(0)")
        e.vm = ["x"]
        e.poll_check(vaddr, S_WS, vneed, "x", dst=dst)
        e.stamp(name)

    def kv_step(idx, last):
        e(f"s_cmp_eq_u32 s{sSt}, 2")
        e(f"s_cbranch_scc1 L_kvd{idx}")
        e(f"s_getpc_b64 s[60:61]")
        e.label(f"L_kvr{idx}")
        e(f"s_add_u32 s60, s60, L_kvd{idx}-L_kvr{idx}")
        e(f"s_addc_u32 s61, s61, 0")
        e(f"s_cmp_eq_u32 s{sSt}, 1")
        e(f"s_cbranch_scc1 L_kvbuild")
        if last:
            hard_check(vPKa, vN32_3, vP2, "PK_late")
            for rnd in range(4):
                e(f"buffer_load_dwordx4 {r4(vD+4*rnd)}, v{KA+8+rnd}, s[{S_WS}:{S_WS+3}], s{sLb} offen sc1")
            e("s_branch L_kvbuild")
        else:
            e("s_branch L_kvpoll")
        e.label(f"L_kvd{idx}")
        e.vm = []

    PV = partial_valu(KV)
    n2 = len(PV) // 2
    for s in range(10 if KV else 20):
        e.c(f"--- G1 stage {s} ---")
        e("s_waitcnt lgkmcnt(0)")
        e("s_barrier")
        if s == 0:
            for x in partial_reads(KV):
                e(x)
            e("s_waitcnt lgkmcnt(0)")
            e.op(PV[:n2+3])
        if s == 1:
            for n in range(2):
                for u in range(5):
                    e(f"s_add_u32 m0, s{sLa}, {n*5120 + u*1024}")
                    e("s_nop 0")
                    e.vmop(f"buffer_load_dwordx4 v{vRs+5*n+u}, s[{[S_RP, S_RP2][n]}:{[S_RP, S_RP2][n]+3}], 0 offen lds", "rp")
            e.poll_issue(vInA, S_DBG, "pin")
            e.op(PV[n2+3:])
            partial_publish(e, KV)
            e.stamp("published")
        if s == 3:
            e.poll_check(vInA, S_DBG, vInN, "pin")
            for n in range(2):
                for nu in range(5):
                    for h in range(2):
                        d = vRD + 20*n + 4*nu + 2*h
                        e(f"ds_read_b64_tr_b16 v[{d}:{d+1}], v{vRPa} offset:{n*5120+32*nu+1280*h}")
        if s in (4, 5):
            for (n, nu) in [[(0, 0), (0, 1), (0, 2), (1, 0), (1, 1), (1, 2)], [(0, 3), (0, 4), (1, 3), (1, 4)]][s-4]:
                if nu < 4:
                    e.vmop(f"buffer_store_dwordx4 {r4(vRD+20*n+4*nu)}, v{vL16}, s[{S_WS}:{S_WS+3}], s{sRd[n]} offen offset:{1024*nu} sc1", "rps")
                else:
                    e.vmop(f"buffer_store_dwordx4 {r4(vRD+20*n+4*nu)}, v{vL16b}, s[{S_WS}:{S_WS+3}], s{sRd[n]} offen sc1", "rps")
        if s == 5:
            partial_loads(True, 0, NG)
        if s == 6:
            partial_loads(True, NG, 5*NG)
        if s == 7:
            e.wait_vm({"rps"})
        if s == 8:
            e.flag_store(2)
            partial_validate()
            e.stamp("validated")
            for x in fin[:nf1]:
                e(x)
        if s == 9:
            for x in fin[nf1:]:
                e(x)
            e("s_waitcnt lgkmcnt(0)")
            e("s_barrier")
            e.stamp("E1")
        if not KV:
            if 10 <= s <= 11:
                for q in range(5*(s-10), 5*(s-10)+5):
                    e(f"s_add_u32 m0, s{sLa}, {q*1024}")
                    e("s_nop 0")
                    e.vmop(f"buffer_load_dwordx4 v{vOOB}, s[{S_WS}:{S_WS+3}], 0 offen lds", "kz")
            if s == 15:
                e.poll_issue(vPQa, S_WS, "pq", dst=vP2+3)
                e.poll_issue(vPRa, S_WS, "pr")
            if s == 17:
                e.poll_check(vPQa, S_WS, vN16_1, "pq", dst=vP2+3)
                e.poll_check(vPRa, S_WS, vNR, "pr")
                e.stamp("PQ_ok")
                e(f"s_mov_b32 s{sSt}, 0")
                e(f"s_lshl_b32 s{sLb}, s{sG}, 13")
                e(f"s_add_u32 s{sLb}, s{sLb}, {KVA_OFF}")
                e(f"s_lshl_b32 s{sT0}, s{sSW}, 2")
                e(f"s_add_u32 s{sT0}, s{sT0}, {OKW_LDS}")
                e(f"v_mov_b32 v{vP2+1}, s{sT0}")
                e(f"buffer_load_dword v{vP2}, v{vPKa}, s[{S_WS}:{S_WS+3}], 0 offen sc1")
            if s >= max(18, PK0):
                kv_step(s, False)
    if KV:
        kv_atomics()
    else:
        e("s_waitcnt lgkmcnt(0)")
        e("s_barrier")
        kv_step(20, False)
    for s in range(17):
        e.c(f"--- G2 stage {s} ---")
        e("s_waitcnt lgkmcnt(0)")
        e("s_barrier")
        if s == 5:
            hard_check(vPQa, vN16_2, vPoll, "PV_ok")
        if s == 9:
            hard_check(vPQa, vN16_3, vPoll, "PO_ok")
        if not KV and s <= 8:
            kv_step(21 + s, s == 8)
        if s in (4, 8):
            e(f"buffer_load_dword v{vPoll}, v{vPQa}, s[{S_WS}:{S_WS+3}], 0 offen sc1")
    e.stamp("end")
    e.stamp("end_real", True)
    e.stamp_flush()
    e("s_endpgm")
    if not KV:
        e.label("L_kvpoll")
        e("s_waitcnt vmcnt(0)")
        e(f"v_cmp_lt_u32 vcc, v{vP2}, v{vN32_3}")
        e("s_nop 4")
        e("s_cbranch_vccz L_kvgo")
        e(f"buffer_load_dword v{vP2}, v{vPKa}, s[{S_WS}:{S_WS+3}], 0 offen sc1")
        e("s_setpc_b64 s[60:61]")
        e.label("L_kvgo")
        for rnd in range(4):
            e(f"buffer_load_dwordx4 {r4(vD+4*rnd)}, v{KA+8+rnd}, s[{S_WS}:{S_WS+3}], s{sLb} offen sc1")
        e(f"s_mov_b32 s{sSt}, 1")
        e("s_setpc_b64 s[60:61]")
        e.label("L_kvbuild")
        e(f"s_mov_b32 s{sSt}, 2")
        e("s_waitcnt vmcnt(0)")
        for rnd in range(4):
            b = vD + 4*rnd
            e(f"v_cvt_pk_bf16_f32 v{vD+16+2*rnd}, v{b}, v{b+1}")
            e(f"v_cvt_pk_bf16_f32 v{vD+17+2*rnd}, v{b+2}, v{b+3}")
            e(f"ds_write_b64 v{KA+2*rnd}, v[{vD+16+2*rnd}:{vD+17+2*rnd}]")
            e(f"ds_write_b64 v{KA+1+2*rnd}, v[{vD+16+2*rnd}:{vD+17+2*rnd}]")
        e(f"ds_write_b32 v{vP2+1}, v{vOne}")
        e("s_setpc_b64 s[60:61]")
    e.label(f"L_S{typ}_end")
    return e


def gen():
    e = Em("top")
    K = NAME + "_kernel"
    e.L.append(f".globl {K}\n.p2align 8\n.type {K},@function\n{K}:")
    e("s_load_dwordx4 s[44:47], s[0:1], 0")
    e("s_load_dwordx2 s[48:49], s[0:1], 16")
    e("s_load_dwordx4 s[52:55], s[0:1], 32")
    e("s_load_dwordx2 s[50:51], s[0:1], 48")
    e("s_load_dwordx2 s[56:57], s[0:1], 56")
    e("s_load_dwordx2 s[58:59], s[0:1], 64")
    e("s_cmp_ge_u32 s2, 256")
    e("s_cbranch_scc1 L_exit")
    e(f"v_and_b32 v{vLane}, 63, v0")
    e(f"v_lshrrev_b32 v{vT}, 6, v0")
    e(f"v_lshrrev_b32 v{vHi}, 5, v{vLane}")
    e(f"v_readfirstlane_b32 s{sT3}, v{vT}")
    e(f"v_and_b32 v{vL31x4}, 31, v{vLane}")
    e(f"v_lshlrev_b32 v{vL31x4}, 2, v{vL31x4}")
    if STAMP:
        e(f"v_mov_b32 v{vStamp}, 0")
    e(f"s_and_b32 s{sT0}, s2, 1")
    e(f"s_lshl_b32 s{sT0}, s{sT0}, 3")
    e(f"s_bfe_u32 s{sT2}, s2, 0x30003")
    e(f"s_add_u32 s{sI}, s{sT0}, s{sT2}")
    e(f"s_bfe_u32 s{sT0}, s2, 0x20001")
    e(f"s_lshl_b32 s{sT0}, s{sT0}, 2")
    e(f"s_lshr_b32 s{sT1}, s2, 6")
    e(f"s_add_u32 s{sJ}, s{sT0}, s{sT1}")
    e(f"s_lshr_b32 s{sG}, s{sJ}, 1")
    e(f"s_and_b32 s{sT0}, s2, 7")
    e(f"s_lshl_b32 s{sT0}, s{sT0}, 2")
    e(f"s_bfe_u32 s{sT64}, s2, 0x20003")
    e(f"s_add_u32 s{sT64}, s{sT64}, s{sT0}")
    e(f"s_bfe_u32 s{sP}, s2, 0x10005")
    e(f"s_and_b32 s{sT0}, s{sJ}, 2")
    e(f"s_or_b32 s{sP}, s{sP}, s{sT0}")
    e(f"s_and_b32 s{sW}, s{sT3}, 3")
    e(f"s_lshr_b32 s{sRole}, s{sT3}, 2")
    e(f"s_mul_i32 s{sRot}, s{sJ}, 3")
    e(f"s_add_u32 s{sRot}, s{sRot}, s{sI}")
    e(f"s_mul_i32 s{sT2}, s{sRot}, 205")
    e(f"s_lshr_b32 s{sT2}, s{sT2}, 11")
    e(f"s_mul_i32 s{sT2}, s{sT2}, 10")
    e(f"s_sub_u32 s{sRot}, s{sRot}, s{sT2}")
    e(f"s_lshl_b32 s{sFlag}, s{sI}, 4")
    e(f"s_add_u32 s{sFlag}, s{sFlag}, s{sJ}")
    e(f"s_lshl_b32 s{sFlag}, s{sFlag}, 3")
    e(f"s_add_u32 s{sFlag}, s{sFlag}, s{sT3}")
    e(f"s_lshl_b32 s{sFlag}, s{sFlag}, 4")
    e(f"s_add_u32 s{sFlag}, s{sFlag}, {FLG_OFF}")
    e(f"v_mov_b32 v{vT}, {OOB}")
    e(f"v_cmp_eq_u32 vcc, 0, v{vLane}")
    e(f"v_lshlrev_b32 v{vL16}, 4, v{vLane}")
    e(f"v_add_u32 v{vL16b}, 4096, v{vL16}")
    e(f"v_cndmask_b32 v{vFl0}, v{vT}, 0, vcc")
    e(f"s_mov_b32 s{sKVTP}, 176")
    e(f"s_mov_b32 s{sC}, {f32bits(1e-6/LN2):#x}")
    e(f"s_mov_b32 s{sLn2}, {f32bits(LN2):#x}")
    e(f"s_mov_b32 s{sHiMask}, 0xffff0000")
    e(f"s_mov_b32 s{sHIm}, 0")
    e(f"s_mov_b32 s{sHIm+1}, -1")
    e(f"s_mov_b32 s{sL16m}, 0xffff0000")
    e(f"s_mov_b32 s{sL16m+1}, 0xffff0000")
    e(f"s_and_b32 s{sT0}, s{sJ}, 1")
    e(f"s_lshl_b32 s{sT0}, s{sT0}, 2")
    e(f"s_lshr_b32 s{sT1}, s{sT3}, 1")
    e(f"s_add_u32 s{sT0}, s{sT0}, s{sT1}")
    e(f"s_cmp_eq_u32 s{sT0}, 2")
    e("s_cbranch_scc1 L_LKV")
    e(f"s_cmp_eq_u32 s{sT0}, 6")
    e("s_cbranch_scc1 L_LQ")
    e(f"s_cmp_eq_u32 s{sT0}, 3")
    e("s_cbranch_scc1 L_SKV")
    e(f"s_cmp_eq_u32 s{sT0}, 7")
    e("s_cbranch_scc1 L_SQ")
    e(f"s_cmp_ge_u32 s{sT0}, 4")
    e("s_cbranch_scc1 L_CQ")
    body = "".join(p.text() for p in [compute_path("KV"), loader_path("KV"), service_path("KV"),
                                      compute_path("Q"), loader_path("Q"), service_path("Q")])
    print(SCHED, file=sys.stderr)
    assert SCHED["Qh_flag"] <= 16 and SCHED["Qh2_flag"] <= 4
    return e.text() + body + "L_exit:\n    s_endpgm\n"


def main():
    K = NAME + "_kernel"
    out = ["; generated by gen/gen16.py -- LN + linear attention + FFN, one persistent kernel (256 workgroups x 8 waves)",
           "; @launch grid=(256,1,1) block=(512,1,1) lds=163840",
           '.amdgcn_target "amdgcn-amd-amdhsa--gfx950"', ".text", gen(),
           '.section .rodata,"a"', ".p2align 6",
           f""".amdhsa_kernel {K}
  .amdhsa_next_free_vgpr 256
  .amdhsa_next_free_sgpr 102
  .amdhsa_accum_offset 256
  .amdhsa_group_segment_fixed_size 0
  .amdhsa_kernarg_size 72
  .amdhsa_user_sgpr_count 2
  .amdhsa_user_sgpr_kernarg_segment_ptr 1
  .amdhsa_system_sgpr_workgroup_id_x 1
.end_amdhsa_kernel
"""]
    return "\n".join(out)


if __name__ == "__main__":
    p = sys.argv[1] if len(sys.argv) > 1 else f"cdna_kernels/{NAME}.s"
    open(p, "w").write(main())
    print("wrote", p)
```

```python
import sys, struct, os

NAME = "parallel_sum__linear_attn_block__dense_activation_relu__prompt"

ACT_OFF = 0
W2R_OFF = 0x900000
KVA_OFF = 0xC00000
CSP_OFF = 0xC40000
RSTD_OFF = 0xD00000
FLG_OFF = 0xD10000
STP_OFF = 0xD20000
STAMP_OFF = 0xD80000
WS_SIZE = 0xE00000
OOB = 0x40000000
STAMP = os.environ.get("STAMP", "0") == "1"
DBGS = False
ROT2 = int(os.environ.get("ROT2", "1"))
HF = int(os.environ.get("HF", "6"))
HBURST = int(os.environ.get("HBURST", "0"))
H2F = int(os.environ.get("H2F", "3"))
AE = int(os.environ.get("AE", "0"))
SVC = eval(os.environ.get("SVC", "(4, 5, 8)"))
PLN = int(os.environ.get("PLN", "1"))
PQB = int(os.environ.get("PQB", "0"))
SLP = int(os.environ.get("SLP", "4"))
NTK = int(os.environ.get("NTK", "6"))
NFQ = int(os.environ.get("NFQ", "24"))
NFG = int(os.environ.get("NFG", "30"))
PK0 = int(os.environ.get("PK0", "18"))
SCHED = {}

def f32bits(x):
    return struct.unpack("<I", struct.pack("<f", x))[0]

LOG2E = 1.4426950408889634
LN2 = 0.6931471805599453

SLOT1 = 45056
WA_OFF = 16384
G2S_Q = [90112, 0, 45056]
G2S_KV = [45056, 90112, 0]
CP_LDS = 0
TRASH = 28672
MISC = 135168
KVT_LDS = MISC
STAT_LDS = 156672
EXT_LDS = 159744
KVT_P = 176
OKW_LDS = KVT_LDS + 17792

S_X, S_WQKV, S_W1, S_WS, S_DBG, S_RP, S_CODE, S_OUT = 8, 12, 16, 20, 24, 28, 32, 84
sW, sI, sG, sT0, sT1, sT2, sT3, sXlim = 36, 37, 38, 39, 40, 41, 42, 43
sXoff, sWoffA, sWoffB = 60, 61, 62
sLx, sLa, sLb = 63, 64, 75
sC, sLn2, sHiMask = 65, 66, 67
sACT = 68
sTw = 69
sHIm = 70
sL16m = 72
sFlag = 74
sKVTP, sSpin, sRot = 81, 82, 83
sJ, sT64, sP, sA, sB, sCnt = 88, 89, 90, 91, 92, 93
sSlot, sD = 96, 97
sA0, sB0 = 76, 79
sRole = 80
vLane, vHi, vL31x4, vFl0, vL16, vL16b, vStamp, vPoll, vPollN = 1, 2, 3, 4, 5, 6, 7, 8, 9
vT = 10


class Em:
    def __init__(self, lab):
        self.L = []
        self.vm = []
        self.stamps = []
        self.nlab = 0
        self.lab = lab
        self.cap = None

    def __call__(self, s):
        for line in s.split("\n"):
            if self.cap is not None:
                self.cap[-1].append(line)
            else:
                self.L.append("    " + line)

    def capture(self):
        self.cap = [[]]

    def para(self):
        if self.cap is not None and self.cap[-1]:
            self.cap.append([])

    def end_capture(self):
        c = [p for p in self.cap if p]
        self.cap = None
        return c

    def label(self, s):
        self.L.append(s + ":")

    def c(self, s):
        self.L.append("    ; " + s)

    def vmop(self, s, tag):
        assert self.cap is None
        if len(self.vm) >= 60:
            self("s_waitcnt vmcnt(40)")
            self.vm = self.vm[-40:]
        self(s)
        self.vm.append(tag)

    def op(self, o):
        if isinstance(o, tuple):
            self.vmop(o[0], o[1])
        elif isinstance(o, list):
            for x in o:
                self.op(x)
        else:
            self(o)

    def merge(self, dm, paras):
        dm, paras = list(dm), list(paras)
        while dm or paras:
            if dm:
                self.op(dm.pop(0))
            k = -(-len(paras) // (len(dm) + 1)) if paras else 0
            for _ in range(k):
                self.op(paras.pop(0))

    def vm_n(self, tags):
        last = -1
        for k, t in enumerate(self.vm):
            if t in tags:
                last = k
        n = len(self.vm) - 1 - last
        self.vm = self.vm[last + 1:]
        return n

    def wait_vm(self, tags, lgkm=None):
        n = self.vm_n(tags)
        if lgkm is None:
            self(f"s_waitcnt vmcnt({n})")
        else:
            self(f"s_waitcnt vmcnt({n}) lgkmcnt({lgkm})")

    def pending(self, tag):
        return tag in self.vm

    def stamp(self, name, real=False):
        if DBGS:
            if self.lab[0] != "L" or name not in DBG_NAMES:
                return
            k = DBG_NAMES.index(name)
            self("s_waitcnt lgkmcnt(0)")
            self(("s_memtime" if name in ("start", "end") else "s_memrealtime") + " s[98:99]")
            self("s_waitcnt lgkmcnt(0)")
            self(f"v_writelane_b32 v{vStamp}, s98, {k}")
            return
        if not STAMP:
            return
        k = len(self.stamps)
        self.stamps.append(name)
        assert k < 60
        self("s_waitcnt lgkmcnt(0)")
        self(("s_memrealtime" if real else "s_memtime") + " s[98:99]")
        self("s_waitcnt lgkmcnt(0)")
        self(f"v_writelane_b32 v{vStamp}, s98, {k}")

    def stamp_flush(self):
        if DBGS:
            if self.lab[0] != "L":
                return
            self.srds(["DBG2"])
            self(f"v_lshlrev_b32 v{vT}, 2, v{vLane}")
            self(f"v_add_u32 v{vT}, 4, v{vT}")
            self(f"v_mov_b32 v{vT+1}, {OOB}")
            self(f"v_cmp_gt_u32 vcc, 15, v{vLane}")
            self("s_nop 1")
            self(f"v_cndmask_b32 v{vT}, v{vT+1}, v{vT}, vcc")
            self(f"s_cmp_eq_u32 s2, {DBGW}")
            self(f"s_cselect_b32 s98, 0, {OOB}")
            self(f"s_cmp_eq_u32 s{sW}, 0")
            self(f"s_cselect_b32 s98, s98, {OOB}")
            self(f"buffer_store_dword v{vStamp}, v{vT}, s[{S_DBG}:{S_DBG+3}], s98 offen")
            return
        if not STAMP:
            return
        self(f"s_lshl_b32 s98, s2, 3")
        self(f"s_add_u32 s98, s98, s{sW}")
        self(f"s_lshl_b32 s99, s{sRole}, 2")
        self(f"s_add_u32 s98, s98, s99")
        self(f"s_lshl_b32 s98, s98, 8")
        self(f"s_add_u32 s98, s98, {STAMP_OFF}")
        self(f"v_lshlrev_b32 v{vT}, 2, v{vLane}")
        self(f"buffer_store_dword v{vStamp}, v{vT}, s[{S_WS}:{S_WS+3}], s98 offen")
        print(f"stamps: {self.lab}:" + ",".join(self.stamps))

    def flag_store(self, val, off=0):
        self(f"v_mov_b32 v{vPollN}, {val}")
        self.vmop(f"buffer_store_dword v{vPollN}, v{vFl0}, s[{S_WS}:{S_WS+3}], s{sFlag} offen offset:{off} sc1", "flag")

    def poll_issue(self, vaddr, srd, tag, dst=None):
        self.vmop(f"buffer_load_dword v{dst or vPoll}, v{vaddr}, s[{srd}:{srd+3}], 0 offen sc1", tag)

    def poll_check(self, vaddr, srd, vneed, tag, dst=None):
        dst = dst or vPoll
        self.nlab += 1
        k = f"{self.lab}{self.nlab}"
        self.wait_vm({tag})
        self(f"v_cmp_lt_u32 vcc, v{dst}, v{vneed}")
        self(f"s_mov_b32 s{sSpin}, 0")
        self("s_nop 3")
        self(f"s_cbranch_vccz L_ok{k}")
        self.label(f"L_sp{k}")
        self(f"s_sleep {SLP}")
        self(f"buffer_load_dword v{dst}, v{vaddr}, s[{srd}:{srd+3}], 0 offen sc1")
        self("s_waitcnt vmcnt(0)")
        self(f"v_cmp_lt_u32 vcc, v{dst}, v{vneed}")
        self(f"s_add_u32 s{sSpin}, s{sSpin}, 1")
        self(f"s_cmp_lt_u32 s{sSpin}, 0x40000")
        self(f"s_cselect_b64 s[94:95], -1, 0")
        self(f"s_and_b64 vcc, vcc, s[94:95]")
        self(f"s_cbranch_vccnz L_sp{k}")
        self.label(f"L_ok{k}")

    def srds(self, lst):
        tab = {"X": (S_X, 44, 2048*1280), "WQKV": (S_WQKV, 46, 640*3840), "W1": (S_W1, 52, 640*3072),
               "WS": (S_WS, 58, WS_SIZE), "DBG": (S_DBG, 56, 256), "OUT": (S_OUT, 50, 2048*1280), "DBG2": (S_DBG, 100, 256)}
        for k in lst:
            srd, p, sz = tab[k]
            self(f"s_mov_b32 s{srd}, s{p}")
            self(f"s_mov_b32 s{srd+1}, s{p+1}")
            self(f"s_mov_b32 s{srd+2}, {sz}")
            self(f"s_mov_b32 s{srd+3}, 0x00020000")

    def text(self):
        return "\n".join(self.L) + "\n"


def r4(b):
    return f"v[{b}:{b+3}]"


IMG_KV = dict(kk=5120, s=1280, t=64)
IMG_H = dict(kk=4096, s=256, t=512, hi=2048)
IMG_H2 = dict(kk=2048, s=256, t=512, hi=1024)
H2_OFF0 = WA_OFF + 16384
Q2_OFF = WA_OFF + 8192
IMG_Q = dict(kk=3072, s=768, t=64)


def lane_part(e, img, d, t):
    e(f"v_bfe_u32 v{t}, v{vLane}, 2, 2")
    e(f"v_and_b32 v{t+1}, 3, v{vLane}")
    e(f"v_lshlrev_b32 v{t+1}, 3, v{t+1}")
    e(f"v_and_b32 v{t+2}, 16, v{vLane}")
    e(f"v_lshl_add_u32 v{t+1}, v{t+2}, 1, v{t+1}")
    if "hi" in img:
        e(f"v_lshl_add_u32 v{d}, v{t}, 6, v{t+1}")
        e(f"v_mul_u32_u24 v{t+2}, {img['hi']}, v{vHi}")
        e(f"v_add_u32 v{d}, v{d}, v{t+2}")
    else:
        e(f"v_lshl_add_u32 v{t+2}, v{vHi}, 3, v{t}")
        e(f"v_mul_u32_u24 v{d}, {320 if img is IMG_KV else 192}, v{t+2}")
        e(f"v_add_u32 v{d}, v{d}, v{t+1}")


def x_addrs(e, d, t):
    e(f"v_and_b32 v{t}, 31, v{vLane}")
    e(f"v_bfe_u32 v{t+1}, v{vLane}, 1, 3")
    e(f"v_xor_b32 v{t+1}, v{t+1}, v{vHi}")
    e(f"s_lshl_b32 s{sT0}, s{sW}, 12")
    e(f"v_lshl_add_u32 v{t}, v{t}, 7, s{sT0}")
    for kk in range(4):
        e(f"v_xor_b32 v{t+2}, {2*kk}, v{t+1}")
        e(f"v_lshl_add_u32 v{d+kk}, v{t+2}, 4, v{t}")


def slot_offsets(e, d_st, d_cs):
    e(f"s_mul_i32 s{d_st}, s{sI}, 10")
    e(f"s_add_u32 s{d_st}, s{d_st}, s{sRot}")
    e(f"s_lshl_b32 s{d_st}, s{d_st}, 10")
    e(f"s_add_u32 s{d_st}, s{d_st}, {STP_OFF}")
    e(f"s_cmp_lt_u32 s{sJ}, 10")
    e(f"s_cselect_b32 s{d_st}, s{d_st}, {OOB}")
    e(f"s_mul_i32 s{d_cs}, s{sJ}, 10")
    e(f"s_add_u32 s{d_cs}, s{d_cs}, s{sRot}")
    e(f"s_lshl_b32 s{d_cs}, s{d_cs}, 11")
    e(f"s_add_u32 s{d_cs}, s{d_cs}, {CSP_OFF}")
    e(f"s_cmp_lt_u32 s{sI}, 10")
    e(f"s_cselect_b32 s{d_cs}, s{d_cs}, {OOB}")


def pq_addr(e, d, t):
    e(f"s_lshr_b32 s{sT0}, s{sT64}, 1")
    e(f"s_lshl_b32 s{sT0}, s{sT0}, 11")
    e(f"s_and_b32 s{sT1}, s{sT64}, 1")
    e(f"s_lshl_b32 s{sT1}, s{sT1}, 5")
    e(f"s_add_u32 s{sT0}, s{sT0}, s{sT1}")
    e(f"s_add_u32 s{sT0}, s{sT0}, {FLG_OFF + 128}")
    e(f"v_lshrrev_b32 v{t}, 1, v{vLane}")
    e(f"v_and_b32 v{t+1}, 1, v{vLane}")
    e(f"v_lshl_add_u32 v{t+1}, v{t+1}, 4, s{sT0}")
    e(f"v_lshl_add_u32 v{d}, v{t}, 8, v{t+1}")


def pr_addr(e, d, t):
    e(f"s_lshr_b32 s{sT0}, s{sP}, 1")
    e(f"s_lshl_b32 s{sT0}, s{sT0}, 8")
    e(f"s_and_b32 s{sT1}, s{sP}, 1")
    e(f"s_lshl_b32 s{sT1}, s{sT1}, 13")
    e(f"s_add_u32 s{sT0}, s{sT0}, s{sT1}")
    e(f"s_add_u32 s{sT0}, s{sT0}, {FLG_OFF + 96}")
    e(f"v_and_b32 v{t}, 3, v{vLane}")
    e(f"v_lshl_add_u32 v{t}, v{t}, 11, s{sT0}")
    e(f"v_and_b32 v{t+1}, 4, v{vLane}")
    e(f"v_lshl_add_u32 v{t}, v{t+1}, 12, v{t}")
    e(f"v_and_b32 v{t+1}, 8, v{vLane}")
    e(f"v_lshl_add_u32 v{t}, v{t+1}, 4, v{t}")
    e(f"v_and_b32 v{t+1}, 48, v{vLane}")
    e(f"v_lshl_add_u32 v{d}, v{t+1}, 5, v{t}")


def compute_path(typ):
    KV = typ == "KV"
    e = Em("C" + typ)
    G2S = G2S_KV if KV else G2S_Q
    NT = NTK if KV else 10 - NTK
    T0 = 0 if KV else NTK
    KB = 4096 + NT*1024
    vXrd = 18
    vWA, vWB = 22, 23
    vSt = 24
    vAcc = 32
    A_ = lambda t: vAcc + 16*t
    vXext = 244
    vXp, vRstd, vSd, vRl = 248, 249, 250, 251
    if KV:
        P1, P2, ALL = [0, 1, 2, 3, 4], [], [3, 4, 2, 0, 1]
        wreg = lambda ps, par, t: 144 + 20*par + 4*t
        xreg = lambda ps, par: 184 + 4*par
        EXR = lambda t: 192 + 4*t
    else:
        P1, P2, ALL = [0, 1, 2, 3], [4, 5, 6, 7, 8], list(range(9))
        wreg = lambda ps, par, t: (176 + 16*par + 4*t) if ps == 1 else (176 + 20*par + 4*(t-4))
        xreg = lambda ps, par: 224 + 4*par
        EXR = lambda t: 176 + 4*t if t < 4 else (208 + 4*(t-4) if t < 8 else 232)
    img = lambda t: IMG_KV if KV else (IMG_H if t < 4 else (IMG_H2 if t < 6 else IMG_Q))
    tix = lambda t: t if KV or t < 4 else (t - 4 if t < 6 else t - 6)
    vWC = 28
    areg = lambda t: vWA if KV or t < 4 else (vWC if t < 6 else vWB)

    e.label(f"L_C{typ}")
    e.stamp("start_real", True)
    e.stamp("start")
    e(f"s_getpc_b64 s[{S_CODE}:{S_CODE+1}]")
    e.label(f"L_C{typ}_pc")
    e(f"s_mov_b32 s{S_CODE+2}, L_S{typ}_end-L_C{typ}_pc")
    e(f"s_mov_b32 s{S_CODE+3}, 0x00020000")
    e(f"v_lshlrev_b32 v{vT}, 7, v0")
    e.vmop(f"buffer_load_dword v255, v{vT}, s[{S_CODE}:{S_CODE+3}], 0 offen", "pf")
    for r in range(4):
        e(f"v_mov_b32 v{vAcc+r}, 0")
    slot_offsets(e, sT0, sT1)
    e(f"s_cmp_eq_u32 s{sW}, 0")
    e(f"s_cselect_b32 s{sT0}, s{sT0}, {OOB}")
    e(f"s_cselect_b32 s{sT1}, s{sT1}, {OOB}")
    e(f"s_and_b32 s{sT2}, s{sFlag}, 0xffffff80")
    e(f"v_mov_b32 v{vT+1}, {OOB}")
    e(f"v_cmp_gt_u32 vcc, 8, v0")
    if KV:
        e(f"s_lshl_b32 s{sT3}, s{sG}, 13")
        e(f"s_lshl_b32 s{sTw}, s{sI}, 10")
        e(f"s_add_u32 s{sT3}, s{sT3}, s{sTw}")
        e(f"s_add_u32 s{sT3}, s{sT3}, {KVA_OFF}")
        e(f"s_cmp_lt_u32 s{sI}, 7")
        e(f"s_cselect_b32 s{sT3}, s{sT3}, {OOB}")
        e(f"s_cmp_eq_u32 s{sW}, 0")
        e(f"s_cselect_b32 s{sT3}, s{sT3}, {OOB}")
    else:
        e("s_nop 1")
    e(f"v_cndmask_b32 v{vT}, v{vT+1}, v{vL16}, vcc")
    e("s_waitcnt lgkmcnt(0)")
    e.srds(["WS"])
    e.vmop(f"buffer_store_dwordx4 {r4(vAcc)}, v{vT}, s[{S_WS}:{S_WS+3}], s{sT2} offen sc1", "z")
    e.vmop(f"buffer_store_dwordx4 {r4(vAcc)}, v{vL16}, s[{S_WS}:{S_WS+3}], s{sT0} offen sc1", "z")
    e.vmop(f"buffer_store_dwordx4 {r4(vAcc)}, v{vL16}, s[{S_WS}:{S_WS+3}], s{sT1} offen sc1", "z")
    if KV:
        e.vmop(f"buffer_store_dwordx4 {r4(vAcc)}, v{vL16}, s[{S_WS}:{S_WS+3}], s{sT3} offen sc1", "z")
    else:
        e.vmop(f"buffer_store_dwordx4 {r4(vAcc)}, v{vT}, s[{S_WS}:{S_WS+3}], s{sT1} offen offset:1024 sc1", "z")
    e.srds(["X", "OUT", "DBG"])
    x_addrs(e, vXrd, vT)
    lane_part(e, img(0), vWA, vT)
    e(f"v_add_u32 v{vWA}, {WA_OFF}, v{vWA}")
    if not KV:
        lane_part(e, IMG_Q, vWB, vT)
        e(f"v_add_u32 v{vWB}, {Q2_OFF + SLOT1}, v{vWB}")
        lane_part(e, IMG_H2, vWC, vT)
        e(f"v_add_u32 v{vWC}, {WA_OFF + SLOT1}, v{vWC}")
    e(f"v_and_b32 v{vT}, 15, v{vLane}")
    e(f"v_lshlrev_b32 v{vT}, 4, v{vT}")
    e(f"v_lshl_add_u32 v{vT}, v{vHi}, 8, v{vT}")
    e(f"v_and_b32 v{vT+1}, 16, v{vLane}")
    e(f"v_lshl_add_u32 v{vT}, v{vT+1}, 6, v{vT}")
    e(f"s_and_b32 s{sT0}, s{sW}, 1")
    e(f"s_lshl_b32 s{sT0}, s{sT0}, 11")
    e(f"v_add_u32 v{vSt}, s{sT0}, v{vT}")
    e(f"s_lshr_b32 s{sT0}, s{sW}, 1")
    e(f"s_lshl_b32 s{sT1}, s{sI}, 1")
    e(f"s_add_u32 s{sT0}, s{sT0}, s{sT1}")
    e(f"s_mul_i32 s{sACT}, s{sT0}, {68*4096}")
    z = list(range(vAcc+4, vAcc+16*len(ALL))) + [wreg(1, 1, t)+k for t in P1 for k in range(4)] + \
        list(range(xreg(1, 1), xreg(1, 1)+4)) + [vXext+2, vXext+3]
    for r in z:
        e(f"v_mov_b32 v{r}, 0")
    e(f"v_lshlrev_b32 v25, 1, v{vL31x4}")
    e(f"v_add_u32 v25, {EXT_LDS}, v25")
    e(f"s_mul_i32 s{sT0}, s{sW}, 768")
    e(f"s_add_u32 s{sT0}, s{sT0}, {STAT_LDS}")
    e(f"v_lshl_add_u32 v26, v{vL31x4}, 2, s{sT0}")
    e(f"v_lshl_add_u32 v27, v{vHi}, 4, s{sT0}")
    e(f"s_and_b32 s{sT0}, s2, 1")
    e(f"s_lshl_b32 s{sT0}, s{sT0}, 7")
    e(f"v_mov_b32 v{vT}, s{sT0}")
    e(f"v_mov_b32 v{vT+1}, {OOB}")
    e(f"v_cmp_eq_u32 vcc, 0, v0")
    e(f"v_mov_b32 v{vT+2}, 1")
    e("s_nop 0")
    e(f"v_cndmask_b32 v{vT}, v{vT+1}, v{vT}, vcc")
    e.wait_vm({"z"})
    e.vmop(f"buffer_atomic_add v{vT+2}, v{vT}, s[{S_DBG}:{S_DBG+3}], 0 offen", "init")

    SYNC = "SYNC"
    CUR = [0]

    class Fill:
        def __init__(self, items):
            self.q = list(items)

        def release(self):
            if self.q and self.q[0] == SYNC:
                self.q.pop(0)

        def emit(self, n):
            while n > 0 and self.q and self.q[0] != SYNC:
                it = self.q.pop(0)
                if callable(it):
                    it()
                    continue
                e.op(it)
                n -= len(it) if isinstance(it, list) else 1

        def done(self):
            return not self.q

    def reads(ps, kk, TL):
        out = [f"ds_read_b128 {r4(xreg(ps, kk % 2))}, v{vXrd+kk}"]
        for t in TL:
            I = img(t)
            va = areg(t)
            for s in range(2):
                d = wreg(ps, kk % 2, t) + 2*s
                out.append(f"ds_read_b64_tr_b16 v[{d}:{d+1}], v{va} offset:{kk*I['kk'] + s*I['s'] + I['t']*tix(t)}")
        return out

    def mf(t, x, w):
        acc = f"v[{A_(t)}:{A_(t)+15}]"
        if KV:
            return f"v_mfma_f32_32x32x16_bf16 {acc}, {x}, {w}, {acc}"
        return f"v_mfma_f32_32x32x16_bf16 {acc}, {w}, {x}, {acc}"

    def mfm(ps, par, t):
        return mf(t, r4(xreg(ps, par)), r4(wreg(ps, par, t)))

    def g1_body(ps, TL, fill=None, nf=0, first=False, gs=None, count=None):
        aregs = list(range(vXrd, vXrd+4)) + ([vWA] if ps == 1 else [vWB, vWC])
        e("s_waitcnt lgkmcnt(0)")
        e("s_barrier")
        per = 4 if len(TL) >= 4 else 8
        for kk in range(4):
            if kk:
                e("s_waitcnt lgkmcnt(0)")
            if fill:
                fill.release()
            rd = reads(ps, kk, TL)
            mm = [] if (first and kk == 0) else [mfm(ps, (kk + 1) % 2, t) for t in TL]
            if not mm:
                for x in rd:
                    e(x)
                rd = []
                if fill:
                    fill.emit(nf)
            for k, m in enumerate(mm):
                e(m)
                for _ in range(per):
                    if rd:
                        e(rd.pop(0))
                if fill:
                    fill.emit(-(-nf // len(mm)))
            assert not rd
            if gs is None and kk == 2:
                for x in [f"s_add_u32 s{sSlot}, s{sSlot}, 1", f"s_cmp_eq_u32 s{sSlot}, 3", f"s_cselect_b32 s{sSlot}, 0, s{sSlot}",
                          f"s_mov_b32 s{sD}, {SLOT1}", f"s_cselect_b32 s{sD}, {(-2*SLOT1) & 0xffffffff:#x}, s{sD}",
                          f"s_add_u32 s{sCnt}, s{sCnt}, 1", f"s_cmp_lt_u32 s{sCnt}, {count}"]:
                    e(x)
        for r in aregs:
            if gs is None:
                e(f"v_add_u32 v{r}, s{sD}, v{r}")
            else:
                d = SLOT1 if (gs + 1) % 3 else -2*SLOT1
                e(f"v_add_u32 v{r}, {d & 0xffffffff:#x}, v{r}")

    def g1_loop(name, ps, TL, gs0, count):
        if count <= 0:
            return
        e(f"s_mov_b32 s{sCnt}, 0")
        e(f"s_mov_b32 s{sSlot}, {gs0 % 3}")
        e(".p2align 3")
        e.label(name)
        g1_body(ps, TL, count=count)
        e(f"s_cbranch_scc1 {name}")

    def phi2(dst, a0, a1, r0, r1):
        t = vT
        return [f"v_fma_f32 v{t}, v{a0}, v{r0}, s{sC}", f"v_fma_f32 v{t+2}, v{a1}, v{r1}, s{sC}",
                f"v_exp_f32 v{t+1}, v{t} clamp", f"v_exp_f32 v{t+3}, v{t+2} clamp",
                f"v_max_f32 v{t}, s{sC}, v{t}", f"v_max_f32 v{t+2}, s{sC}, v{t+2}",
                f"v_fma_f32 v{t}, v{t}, s{sLn2}, v{t+1}", f"v_fma_f32 v{t+2}, v{t+2}, s{sLn2}, v{t+3}",
                f"v_cvt_pk_bf16_f32 v{dst}, v{t}, v{t+2}"]

    def flag_item(tag, val, name):
        def f():
            e.wait_vm({tag})
            e.flag_store(val)
            e.stamp(name)
            SCHED[typ + name] = CUR[0]
        return f

    g1_loop(f"L_C{typ}_p1", 1, P1, 0, 10)
    e("s_waitcnt lgkmcnt(0)")
    e("s_barrier")
    e.stamp("E1")
    RL, RS = 112, 128
    e(f"ds_read_b128 {r4(vXp)}, v26")
    for t in ALL:
        e(f"ds_read_b64 v[{EXR(t)}:{EXR(t)+1}], v25 offset:{t*256}")
    if KV:
        for q in range(4):
            e(f"ds_read_b128 {r4(RS+4*q)}, v27 offset:{640+32*q}")
        for q in range(4):
            e(f"ds_read_b128 {r4(RL+4*q)}, v27 offset:{512+32*q}")
    zz = [f"v_mov_b32 v{EXR(t)+k}, 0" for t in ALL for k in (2, 3)]
    for t in ALL:
        if t in P1:
            e(mfm(1, 1, t))
            for _ in range(5):
                if zz:
                    e(zz.pop(0))
    assert not zz
    e(f"s_waitcnt lgkmcnt({8 if KV else 0})")
    e(f"v_lshrrev_b32 v{vT+4}, 16, v{vXp}")
    e(f"v_cndmask_b32 v{vXext}, v{vXp}, 0, s[{sHIm}:{sHIm+1}]")
    e(f"v_cndmask_b32 v{vXext+1}, v{vT+4}, 0, s[{sHIm}:{sHIm+1}]")
    e("s_nop 1")
    for t in ALL:
        e(mf(t, r4(vXext), r4(EXR(t))))

    PQ = 200
    F = []
    if KV:
        Vp = [144, 152, 160]
        Kp = [168, 176, 212]
        PRG = {0: [A_(3), A_(4), RS], 1: [A_(0), 220, 192 - 8], 2: [None, A_(1), A_(2)]}
        PRG[1] = [A_(0), 224, A_(3)]
        vCa, vCb, vCc, vCt = 28, 29, 30, 31
        F += [f"v_mul_u32_u24 v{vCa}, 21, v{vHi}", f"v_and_b32 v{vCb}, 31, v{vLane}",
              [f"v_cmp_eq_u32 vcc, 0, v{vCb}", f"v_add_u32 v{vCc}, 20, v{vCa}", f"v_add_u32 v{vCa}, v{vCa}, v{vCb}",
               f"v_subrev_u32 v{vCt}, 12, v{vCa}", f"v_cndmask_b32 v{vCc}, v{vCt}, v{vCc}, vcc"],
              f"v_add_u32 v{vCb}, v{vHi}, v{vCb}",
              [f"s_mul_i32 s{sT0}, s{sW}, 6784", f"s_add_u32 s{sT0}, s{sT0}, {CP_LDS}"],
              f"v_lshl_add_u32 v{vCa}, v{vCa}, 4, s{sT0}", f"v_lshl_add_u32 v{vCb}, v{vCb}, 4, s{sT0}",
              f"v_lshl_add_u32 v{vCc}, v{vCc}, 4, s{sT0}", f"v_add_u32 v{vCt}, {TRASH}, v{vL16}",
              "s_waitcnt lgkmcnt(0)"]
        for (t, dst) in [(3, Vp[0]), (4, Vp[1]), (2, Vp[2])]:
            a = A_(t)
            for j in range(0, 8, 2):
                F += [f"v_mul_f32 v{vT}, v{a+2*j}, v{RS+2*j}", f"v_mul_f32 v{vT+1}, v{a+2*j+1}, v{RS+2*j+1}",
                      f"v_mul_f32 v{vT+2}, v{a+2*j+2}, v{RS+2*j+2}", f"v_mul_f32 v{vT+3}, v{a+2*j+3}, v{RS+2*j+3}",
                      f"v_cvt_pk_bf16_f32 v{dst+j}, v{vT}, v{vT+1}", f"v_cvt_pk_bf16_f32 v{dst+j+1}, v{vT+2}, v{vT+3}"]
        F.append(f"v_mov_b32 v{vT}, 0x3f803f80")
        for j in range(8):
            F.append(f"v_cndmask_b32 v{Vp[2]+j}, v{vT}, v{Vp[2]+j}, s[{sL16m}:{sL16m+1}]")
        PR_ = [A_(3), A_(4), RS]

        def cwrites(a, b):
            out = []
            base = PR_[b]
            for q in range(4):
                C0 = 8*a + 2*q
                if C0 >= 20:
                    continue
                heads = [C0 // 5, (C0+1) // 5]
                ebase = [0, 32, 48][b]
                mask = 0
                for hi in range(2):
                    for l in range(32):
                        if b == 2 and l < 16:
                            if l == 0:
                                mask |= 1 << (32*hi)
                            continue
                        if (ebase + l) // 20 == heads[hi]:
                            mask |= 1 << (32*hi + l)
                if not mask:
                    continue
                if b == 2:
                    va, imm = vCc, 16*21*C0
                else:
                    va, imm = (vCa if heads[0] == heads[1] else vCb), 16*(21*C0 + ebase - 20*heads[0])
                t = vT + 6 + (len(out) % 2)
                out.append([f"s_mov_b32 s94, {mask & 0xffffffff:#x}", f"s_mov_b32 s95, {mask >> 32:#x}",
                            f"v_cndmask_b32 v{t}, v{vCt}, v{va}, s[94:95]", f"ds_write_b128 v{t}, {r4(base+4*q)} offset:{imm}"])
            return out

        def prods(a_):
            bs = [0, 1, 2] if a_ < 2 else [1, 2]
            out = []
            for h in range(2):
                for b in bs:
                    d = f"v[{PR_[b]}:{PR_[b]+15}]"
                    out.append(f"v_mfma_f32_32x32x16_bf16 {d}, {r4(Kp[a_]+4*h)}, {r4(Vp[b]+4*h)}, {'0' if h == 0 else d}")
            return out, [w for b in bs for w in cwrites(a_, b)]

        pm, pw = [], []
        for a_ in range(3):
            a = A_(a_)
            for j in range(8):
                F += phi2(Kp[a_] + j, a+2*j, a+2*j+1, RL+2*j, RL+2*j+1)
                if j < 3:
                    F += pm[2*j:2*j+2]
                if j >= 4 and pw:
                    k = -(-len(pw) // (8 - j))
                    F += pw[:k]
                    pw = pw[k:]
            pm, pw = prods(a_)
        F += ["s_nop 1"] + pm + ["s_nop 7", "s_nop 7"] + pw
        Fill(F).emit(100000)
        e.stamp("kv_done")
    else:
        sHb = sA
        F += [[f"s_lshl_b32 s{sT2}, s{sI}, 2", f"s_add_u32 s{sT2}, s{sT2}, s{sW}", f"s_lshl_b32 s{sT2}, s{sT2}, 7",
               f"s_add_u32 s{sT2}, s{sT2}, {RSTD_OFF}", f"s_cmp_eq_u32 s{sG}, 0", f"s_cselect_b32 s{sT2}, s{sT2}, {OOB}"],
              (f"buffer_store_dword v{vRstd}, v{vL31x4}, s[{S_WS}:{S_WS+3}], s{sT2} offen sc1", "hst"),
              f"s_lshl_b32 s{sHb}, s{sG}, 14", f"s_add_u32 s{sHb}, s{sHb}, s{sACT}"]
        for t in range(4):
            a = A_(t)
            for j in range(8):
                F += [f"v_max_f32 v{a+2*j}, 0, v{a+2*j}", f"v_max_f32 v{a+2*j+1}, 0, v{a+2*j+1}",
                      f"v_cvt_pk_bf16_f32 v{a+j}, v{a+2*j}, v{a+2*j+1}"]
            F += [f"s_add_u32 s{sT1}, s{sHb}, {t*4096}",
                  (f"buffer_store_dwordx4 {r4(a)}, v{vSt}, s[{S_WS}:{S_WS+3}], s{sT1} offen sc1", "hst"),
                  (f"buffer_store_dwordx4 {r4(a+4)}, v{vSt}, s[{S_WS}:{S_WS+3}], s{sT1} offen offset:512 sc1", "hst")]
        if HBURST:
            e("s_nop 3")
            Fill(F).emit(100000)
            e.stamp("h_stored")
            F = []
        F += [SYNC] * HF + [flag_item("hst", 1, "h_flag")]
        fill = Fill(F)
        gs = 10
        while not fill.done():
            CUR[0] = gs
            g1_body(2, P2, fill, NFQ, first=(gs == 10), gs=gs)
            gs += 1
            assert gs <= 20
        g1_loop(f"L_C{typ}_p2", 2, P2, gs, 20 - gs)
    e("s_waitcnt lgkmcnt(0)")
    e("s_barrier")
    e.stamp("E3")
    for t in P2:
        e(mfm(2, 1, t))
    if not KV:
        e(f"s_lshl_b32 s{sHb}, s{sG}, 13")
        e(f"s_add_u32 s{sHb}, s{sHb}, {32*4096}")
        e(f"s_add_u32 s{sHb}, s{sHb}, s{sACT}")
        e("s_nop 4")
        for n, t in enumerate((4, 5)):
            a, o = A_(t), 176 + 8*n
            for j in range(8):
                e(f"v_max_f32 v{a+2*j}, 0, v{a+2*j}")
                e(f"v_max_f32 v{a+2*j+1}, 0, v{a+2*j+1}")
                e(f"v_cvt_pk_bf16_f32 v{o+j}, v{a+2*j}, v{a+2*j+1}")
            e(f"s_add_u32 s{sT1}, s{sHb}, {n*4096}")
            e.vmop(f"buffer_store_dwordx4 {r4(o)}, v{vSt}, s[{S_WS}:{S_WS+3}], s{sT1} offen sc1", "h2")
            e.vmop(f"buffer_store_dwordx4 {r4(o+4)}, v{vSt}, s[{S_WS}:{S_WS+3}], s{sT1} offen offset:512 sc1", "h2")

    vA2, vB2 = 18, 19
    vG = 32
    FS = 4*(NT + 1)
    fb = 64 if KV else 48
    vF2 = [fb + FS*k for k in range(4)]
    CH = 2*NT
    R = -(-16*CH // 64)
    PITCH = NT*64 + 16
    OUT_LDS = G2S[0]
    if KV:
        vGo, vLr, vRa, vRs, vLw, vXd, RB, vO = 192, 196, 200, 204, 208, 212, 64, 228
    else:
        vGo, vLr, vRa, vRs, vLw, vXd, RB, vO = 220, 224, 228, 232, 236, 128, 48, 144
    e(f"s_lshl_b32 s{sT0}, s{sW}, 10")
    e(f"s_add_u32 s{sT0}, s{sT0}, {G2S[0]}")
    e(f"v_add_u32 v{vA2}, s{sT0}, v{vL16}")
    e(f"v_add_u32 v{vB2}, {G2S[0]}, v{vL16b}")

    def reads2(kk):
        f = vF2[kk]
        return [f"ds_read_b128 {r4(f)}, v{vA2} offset:{kk*KB}"] + \
               [f"ds_read_b128 {r4(f+4+4*nu)}, v{vB2} offset:{kk*KB+nu*1024}" for nu in range(NT)]

    def mfmas2(kk, zero=False):
        f = vF2[kk]
        return [f"v_mfma_f32_16x16x32_bf16 {r4(vG+4*nu)}, {r4(f+4+4*nu)}, {r4(f)}, {'0' if zero else r4(vG+4*nu)}" for nu in range(NT)]

    def g2_body(fill=None, nf=0, gs=None, count=None, okw=False):
        first = gs == 0
        e("s_waitcnt lgkmcnt(0)")
        e("s_barrier")
        if okw:
            e(f"ds_read_b64 v[22:23], v21")
        for half in range(2):
            rd = reads2(2*half) + reads2(2*half+1)
            mm = mfmas2(2*(1-half), zero=(first and half == 1)) + mfmas2(2*(1-half)+1)
            if first and half == 0:
                mm = []
            if half == 1:
                e("s_waitcnt lgkmcnt(0)" if fill else f"s_waitcnt lgkmcnt({NT+1})")
            if fill:
                fill.release()
            for x in rd[:2]:
                e(x)
            rd = rd[2:]
            for k, m in enumerate(mm):
                if half == 1 and k == NT and not fill:
                    e(f"s_waitcnt lgkmcnt({NT+2})")
                e(m)
                if rd:
                    e(rd.pop(0))
            for x in rd:
                e(x)
            if fill:
                fill.emit(nf)
        if gs is None:
            e(f"s_mov_b32 s{sD}, {(G2S[1]-G2S[0]) & 0xffffffff:#x}")
            e(f"s_cmp_eq_u32 s{sSlot}, 1")
            e(f"s_cselect_b32 s{sD}, {(G2S[2]-G2S[1]) & 0xffffffff:#x}, s{sD}")
            e(f"s_cmp_eq_u32 s{sSlot}, 2")
            e(f"s_cselect_b32 s{sD}, {(G2S[0]-G2S[2]) & 0xffffffff:#x}, s{sD}")
            e(f"s_cselect_b32 s{sSlot}, -1, s{sSlot}")
            e(f"s_add_u32 s{sSlot}, s{sSlot}, 1")
            e(f"v_add_u32 v{vA2}, s{sD}, v{vA2}")
            e(f"v_add_u32 v{vB2}, s{sD}, v{vB2}")
            e(f"s_add_u32 s{sCnt}, s{sCnt}, 1")
            e(f"s_cmp_lt_u32 s{sCnt}, {count}")
        else:
            d = (G2S[(gs+1) % 3] - G2S[gs % 3]) & 0xffffffff
            e(f"v_add_u32 v{vA2}, {d:#x}, v{vA2}")
            e(f"v_add_u32 v{vB2}, {d:#x}, v{vB2}")

    def g2_loop(name, gs0, upto, init=True):
        if init:
            e(f"s_mov_b32 s{sCnt}, {gs0}")
            e(f"s_mov_b32 s{sSlot}, {gs0 % 3}")
        e(".p2align 3")
        e.label(name)
        g2_body(count=upto)
        e(f"s_cbranch_scc1 {name}")

    magic = -(-65536 // CH)

    def fin_items():
        out = [[f"s_lshl_b32 s{sT0}, s{sT64}, 6", f"s_lshl_b32 s{sT1}, s{sW}, 4", f"s_add_u32 s{sT0}, s{sT0}, s{sT1}",
                f"s_mul_i32 s{sT2}, s{sT0}, 1280", f"s_mul_i32 s{sT3}, s{sP}, 320", f"s_add_u32 s{sT2}, s{sT2}, s{sT3}",
                f"s_add_u32 s{sT2}, s{sT2}, {T0*32}",
                f"s_lshl_b32 s{sA0}, s{sT0}, 2", f"s_add_u32 s{sA0}, s{sA0}, {RSTD_OFF}",
                f"s_mul_i32 s{sT1}, s{sW}, {16*PITCH}", f"s_add_u32 s{sT1}, s{sT1}, {OUT_LDS}"]]
        for r in range(R):
            out += [f"v_add_u32 v{vT}, {64*r}, v{vLane}", f"v_mul_u32_u24 v{vT+1}, {magic}, v{vT}", f"v_lshrrev_b32 v{vT+1}, 16, v{vT+1}",
                    f"v_mul_u32_u24 v{vT+2}, {CH}, v{vT+1}", f"v_sub_u32 v{vT+2}, v{vT}, v{vT+2}",
                    f"v_mul_u32_u24 v{vT+3}, 1280, v{vT+1}", f"v_lshl_add_u32 v{vT+3}, v{vT+2}, 4, v{vT+3}",
                    f"v_add_u32 v{vGo+r}, s{sT2}, v{vT+3}", f"v_mul_u32_u24 v{vT+3}, {PITCH}, v{vT+1}",
                    f"v_lshl_add_u32 v{vT+3}, v{vT+2}, 5, v{vT+3}", f"v_add_u32 v{vLr+r}, s{sT1}, v{vT+3}",
                    f"v_lshlrev_b32 v{vRa+r}, 2, v{vT+1}"]
        if (16*CH) % 64:
            assert (16*CH) % 64 == 32
            r = R - 1
            out += [f"v_mov_b32 v{vT+4}, {OOB}",
                    f"v_cndmask_b32 v{vGo+r}, v{vGo+r}, v{vT+4}, s[{sHIm}:{sHIm+1}]",
                    f"v_cndmask_b32 v{vRa+r}, v{vRa+r}, v{vT+4}, s[{sHIm}:{sHIm+1}]",
                    f"v_cndmask_b32 v{vLr+r}, v{vLr+r}, v{vLr}, s[{sHIm}:{sHIm+1}]"]
        out += [f"v_and_b32 v{vT}, 15, v{vLane}", f"v_mul_u32_u24 v{vT}, {PITCH}, v{vT}", f"v_lshrrev_b32 v{vT+1}, 4, v{vLane}",
                f"v_lshl_add_u32 v{vT}, v{vT+1}, 4, v{vT}", f"v_add_u32 v{vLw}, s{sT1}, v{vT}"]
        ld = []
        for r in range(R):
            ld.append((f"buffer_load_dwordx4 {r4(vXd+4*r)}, v{vGo+r}, s[{S_X}:{S_X+3}], 0 offen", "x"))
            ld.append((f"buffer_load_dword v{vRs+r}, v{vRa+r}, s[{S_WS}:{S_WS+3}], s{sA0} offen sc1", "x"))
        return out, ld

    gs = 0

    def run_fill(items):
        nonlocal gs
        fl = Fill(items)
        while not fl.done():
            CUR[0] = gs
            g2_body(fl, NFG, gs=gs)
            gs += 1

    fa, fl_ = fin_items()
    if KV:
        run_fill(fa)
        g2_loop(f"L_C{typ}_g2", gs, 15)
    else:
        F = []
        for s in range(5):
            a = A_(6) + 8*s
            for j in range(4):
                F += phi2(PQ+4*s+j, a+2*j, a+2*j+1, vRl, vRl)
            if s == H2F:
                F.append(flag_item("h2", 2, "h2_flag"))
        if PQB:
            CUR[0] = 0
            e("s_nop 7")
            Fill(F).emit(100000)
            F = ["s_nop 0"]
        run_fill(F)
        vKr = 20
        e(f"v_and_b32 v{vKr}, 31, v{vLane}")
        e(f"v_mul_u32_u24 v{vKr}, {KVT_P}, v{vKr}")
        e(f"v_lshl_add_u32 v{vKr}, v{vHi}, 4, v{vKr}")
        e(f"v_add_u32 v{vKr}, {KVT_LDS}, v{vKr}")
        e(f"v_mov_b32 v21, {OKW_LDS}")
        e(f"ds_read_b64 v[22:23], v21")
        e(f"s_lshr_b32 s{sT0}, s{sG}, 1")
        e(f"s_mul_i32 s{sT0}, s{sT0}, {5*4096}")
        e(f"s_add_u32 s{sT0}, s{sT0}, {48*4096}")
        e(f"s_add_u32 s{sT0}, s{sT0}, s{sACT}")
        e(f"s_and_b32 s{sT1}, s{sG}, 1")
        e(f"s_mul_i32 s{sT2}, s{sT1}, {3*4096}")
        e(f"s_add_u32 s{sT2}, s{sT2}, s{sT0}")
        e(f"s_add_u32 s{sT3}, s{sT2}, 4096")
        e(f"s_lshl_b32 s{sT1}, s{sT1}, 9")
        e(f"s_add_u32 s{sT0}, s{sT0}, s{sT1}")
        e(f"s_add_u32 s{sT0}, s{sT0}, {2*4096}")
        e(f"s_mov_b32 s{sCnt}, {gs}")
        e(f"s_mov_b32 s{sSlot}, {gs % 3}")
        e(f"s_mov_b32 s{sTw}, 0")
        e("s_waitcnt lgkmcnt(0)")
        e("s_branch L_CQ_chk")
        e(".p2align 3")
        e.label("L_CQ_dyn")
        g2_body(count=10, okw=True)
        e(f"s_cselect_b32 s{sTw}, 0, 1")
        e.label("L_CQ_chk")
        e(f"v_min_u32 v22, v22, v23")
        e("s_nop 0")
        e(f"v_readfirstlane_b32 s{sB}, v22")
        e("s_nop 3")
        e(f"s_or_b32 s{sTw}, s{sTw}, s{sB}")
        e("s_cbranch_scc0 L_CQ_dyn")
        e.stamp("g2_mid")
        OA = 128
        free = list(range(vF2[0], vF2[2], 4)) + list(range(176, 200, 4))
        frs = free[:12]
        need = [(2, 0), (0, 0), (2, 1), (0, 1), (1, 1), (2, 2), (0, 2), (1, 2), (2, 3), (1, 3), (2, 4), (1, 4)]
        for n, (o, s) in enumerate(need):
            e(f"ds_read_b128 {r4(frs[n])}, v{vKr} offset:{o*32*KVT_P+32*s}")
        first = {}
        for n, (o, s) in enumerate(need):
            e(f"s_waitcnt lgkmcnt({11-n})")
            d = f"v[{OA+16*o}:{OA+16*o+15}]"
            e(f"v_mfma_f32_32x32x16_bf16 {d}, {r4(frs[n])}, {r4(PQ+4*s)}, {'0' if o not in first else d}")
            first[o] = 1
        e("s_nop 9")
        Fr = vT
        for h in range(4):
            e(f"v_add_f32 v{Fr+h}, {f32bits(1e-6):#x}, v{OA+32+h}")
        for h in range(4):
            e(f"v_rcp_f32 v{Fr+h}, v{Fr+h}")
        e("s_nop 0")
        for h in range(4):
            e(f"v_mul_f32 v{Fr+h}, v{Fr+h}, v{vSd}")
        e(f"v_cndmask_b32 v{Fr+4}, v{Fr}, v{Fr+1}, s[{sHIm}:{sHIm+1}]")
        e(f"v_cndmask_b32 v{Fr+5}, v{Fr+2}, v{Fr+3}, s[{sHIm}:{sHIm+1}]")
        OP = 176
        k = 0
        dests = [(sT2, 0), (sT2, 512), (sT3, 0), (sT3, 512), (sT0, 0)]
        for o in range(3):
            for q in range(4):
                if o == 2 and q < 2:
                    continue
                C0 = 8*o + 2*q if o < 2 else 16 + 2*(q-2)
                f = Fr + C0 // 5 if C0 // 5 == (C0+1) // 5 else Fr + 4 + (0 if C0 == 4 else 1)
                a = OA + 16*o + 4*q
                for r in range(4):
                    e(f"v_mul_f32 v{a+r}, v{a+r}, v{f}")
                e(f"v_cvt_pk_bf16_f32 v{OP+k}, v{a}, v{a+1}")
                e(f"v_cvt_pk_bf16_f32 v{OP+k+1}, v{a+2}, v{a+3}")
                k += 2
                if k % 4 == 0:
                    sg, off = dests[k//4 - 1]
                    e.vmop(f"buffer_store_dwordx4 {r4(OP+k-4)}, v{vSt}, s[{S_WS}:{S_WS+3}], s{sg} offen offset:{off} sc1", "ost")
        e.op(fa)
        e(f"s_cmp_ge_u32 s{sCnt}, 9")
        e("s_cbranch_scc1 L_CQ_of")
        g2_body(count=99)
        e.label("L_CQ_of")
        e.wait_vm({"ost"})
        e.flag_store(3)
        e.stamp("o_flag")
        g2_loop("L_CQ_g2c", None, 15, init=False)
    e.op(fl_)
    g2_loop(f"L_C{typ}_g2e", None, 17, init=False)
    e("s_waitcnt lgkmcnt(0)")
    for m in mfmas2(2) + mfmas2(3):
        e(m)
    e.stamp("g2_done")
    e("s_nop 7")
    for nu in range(NT):
        e(f"ds_write_b128 v{vLw}, {r4(vG+4*nu)} offset:{nu*64}")
    e("s_waitcnt lgkmcnt(0)")
    for r in range(R):
        for h in range(2):
            e(f"ds_read_b128 {r4(RB+r*8+h*4)}, v{vLr+r} offset:{h*16}")
    e.wait_vm({"x"})
    for r in range(R):
        e(f"s_waitcnt lgkmcnt({2*(R-1-r)})")
        b = RB + r*8
        o = vO + 4*r
        for k in range(4):
            xr = vXd + 4*r + k
            e(f"v_lshlrev_b32 v{vT}, 16, v{xr}")
            e(f"v_and_b32 v{vT+1}, s{sHiMask}, v{xr}")
            e(f"v_fma_f32 v{vT}, v{b+2*k}, v{vRs+r}, v{vT}")
            e(f"v_fma_f32 v{vT+1}, v{b+2*k+1}, v{vRs+r}, v{vT+1}")
            e(f"v_cvt_pk_bf16_f32 v{o+k}, v{vT}, v{vT+1}")
        e(f"buffer_store_dwordx4 {r4(o)}, v{vGo+r}, s[{S_OUT}:{S_OUT+3}], 0 offen")
    e.stamp("end")
    e.stamp("end_real", True)
    e.stamp_flush()
    e("s_endpgm")
    return e


class HR:
    vC = 32
    vCs = 36
    vOOB = 45
    vU = 58
    vD = 64
    vXa = 112
    vSx = 116
    vXd = 120
    sTi = [96, 97, 95 - 0]


TI = [96, 97, 78]


def sets(KV):
    return [IMG_KV, IMG_KV] if KV else [IMG_H, IMG_H2, IMG_Q]


def partial_setup(e, KV):
    H = HR
    vU = H.vU
    S = sets(KV)
    lane_part(e, S[0], vU, vT)
    e(f"s_mul_i32 s{sT0}, s{sW}, {S[0]['t']}")
    e(f"s_add_u32 s{sT0}, s{sT0}, {WA_OFF}")
    e(f"v_add_u32 v{H.vC}, s{sT0}, v{vU}")
    e(f"s_lshl_b32 s{TI[0]}, s{sW}, 7")
    if KV:
        e(f"v_add_u32 v{H.vC+1}, {WA_OFF + 256}, v{vU}")
        e(f"s_mov_b32 s{TI[1]}, 512")
    else:
        e.para()
        lane_part(e, IMG_H2, vU, vT)
        e(f"s_and_b32 s{TI[1]}, s{sW}, 1")
        e(f"s_lshl_b32 s{sT0}, s{TI[1]}, 9")
        e(f"s_add_u32 s{sT0}, s{sT0}, {H2_OFF0}")
        e(f"v_add_u32 v{H.vC+1}, s{sT0}, v{vU}")
        e(f"s_add_u32 s{TI[1]}, s{TI[1]}, 4")
        e(f"s_lshl_b32 s{TI[1]}, s{TI[1]}, 7")
    e.para()
    if not KV:
        lane_part(e, IMG_Q, vU, vT)
        e(f"s_min_u32 s{TI[2]}, s{sW}, 2")
        e(f"s_lshl_b32 s{sT0}, s{TI[2]}, 6")
        e(f"s_add_u32 s{sT0}, s{sT0}, {MISC}")
        e(f"v_add_u32 v{H.vC+2}, s{sT0}, v{vU}")
        e(f"s_add_u32 s{TI[2]}, s{TI[2]}, 6")
        e(f"s_lshl_b32 s{TI[2]}, s{TI[2]}, 7")
        e.para()
    x_addrs(e, H.vXa, vT)
    e.para()


def partial_reads(KV):
    H = HR
    rd = [f"ds_read_b128 {r4(H.vXd+4*kk)}, v{H.vXa+kk}" for kk in range(4)]
    for k, I in enumerate(sets(KV)):
        for kk in range(4):
            for h in range(2):
                d = H.vD + 16*k + 4*kk + 2*h
                rd.append(f"ds_read_b64_tr_b16 v[{d}:{d+1}], v{H.vC+k} offset:{kk*I['kk'] + h*I['s']}")
    return rd


def partial_valu(KV):
    H = HR
    n = len(sets(KV))
    vSx, vCs, a = H.vSx, H.vCs, H.vU
    P = [[f"v_mov_b32 v{vSx+r}, 0" for r in range(4)] + [f"v_mov_b32 v{vCs+r}, 0" for r in range(2*n)]]
    for r in range(0, 16, 2):
        x = H.vXd + r
        P.append([f"v_lshlrev_b32 v{a}, 16, v{x}", f"v_and_b32 v{a+1}, s{sHiMask}, v{x}",
                  f"v_lshlrev_b32 v{a+2}, 16, v{x+1}", f"v_and_b32 v{a+3}, s{sHiMask}, v{x+1}",
                  f"v_add_f32 v{vSx}, v{vSx}, v{a}", f"v_add_f32 v{vSx+1}, v{vSx+1}, v{a+1}",
                  f"v_fmac_f32 v{vSx+2}, v{a}, v{a}", f"v_fmac_f32 v{vSx+3}, v{a+1}, v{a+1}",
                  f"v_add_f32 v{vSx}, v{vSx}, v{a+2}", f"v_add_f32 v{vSx+1}, v{vSx+1}, v{a+3}",
                  f"v_fmac_f32 v{vSx+2}, v{a+2}, v{a+2}", f"v_fmac_f32 v{vSx+3}, v{a+3}, v{a+3}"])
    for r in range(16):
        g = []
        for k in range(n):
            x = H.vD + 16*k + r
            g += [f"v_lshlrev_b32 v{a+2*k}, 16, v{x}", f"v_and_b32 v{a+2*k+1}, s{sHiMask}, v{x}"]
        for k in range(2*n):
            g.append(f"v_add_f32 v{vCs+k}, v{vCs+k}, v{a+k}")
        P.append(g)
    cs = [vSx, vSx+1] + [vCs+2*k for k in range(n)]
    P.append([f"v_add_f32 v{vSx}, v{vSx}, v{vSx+1}", f"v_add_f32 v{vSx+1}, v{vSx+2}, v{vSx+3}"] +
             [f"v_add_f32 v{vCs+2*k}, v{vCs+2*k}, v{vCs+2*k+1}" for k in range(n)] +
             [f"v_mov_b32 v{a+k}, v{c}" for k, c in enumerate(cs)] + ["s_nop 1"] +
             [f"v_permlane32_swap_b32 v{c}, v{a+k}" for k, c in enumerate(cs)] + ["s_nop 1"] +
             [f"v_add_f32 v{c}, v{c}, v{a+k}" for k, c in enumerate(cs)] +
             [f"v_max_u32 v{c}, 1, v{c}" for c in cs])
    return P


def partial_publish(e, KV):
    H = HR
    vU = H.vU
    slot_offsets(e, sT0, sT3)
    e(f"s_lshl_b32 s{sT1}, s{sW}, 8")
    e(f"s_add_u32 s{sT0}, s{sT0}, s{sT1}")
    e(f"v_lshlrev_b32 v{vU}, 1, v{vL31x4}")
    e(f"v_cndmask_b32 v{vU}, v{vU}, v{H.vOOB}, s[{sHIm}:{sHIm+1}]")
    e.vmop(f"buffer_store_dwordx2 v[{H.vSx}:{H.vSx+1}], v{vU}, s[{S_WS}:{S_WS+3}], s{sT0} offen sc1", "pp")
    e(f"v_add_u32 v{vU+1}, s{TI[0]}, v{vL31x4}")
    e(f"v_add_u32 v{vU+2}, s{TI[1]}, v{vL31x4}")
    e(f"v_cndmask_b32 v{vU+1}, v{vU+1}, v{vU+2}, s[{sHIm}:{sHIm+1}]")
    e(f"v_cndmask_b32 v{H.vCs}, v{H.vCs}, v{H.vCs+2}, s[{sHIm}:{sHIm+1}]")
    e.vmop(f"buffer_store_dword v{H.vCs}, v{vU+1}, s[{S_WS}:{S_WS+3}], s{sT3} offen sc1", "pp")
    if not KV:
        e(f"v_add_u32 v{vU+3}, s{TI[2]}, v{vL31x4}")
        e(f"v_cndmask_b32 v{vU+3}, v{vU+3}, v{H.vOOB}, s[{sHIm}:{sHIm+1}]")
        e.vmop(f"buffer_store_dword v{H.vCs+4}, v{vU+3}, s[{S_WS}:{S_WS+3}], s{sT3} offen sc1", "pp")


def loader_path(typ):
    KV = typ == "KV"
    e = Em("L" + typ)
    H = HR
    G2S = G2S_KV if KV else G2S_Q
    NT = NTK if KV else 10 - NTK
    T0 = 0 if KV else NTK
    KB = 4096 + NT*1024
    NS1 = 10 if KV else 20
    vXsrc = 18
    vWsrcA = 22
    vWsrcB = 28
    vOOB = H.vOOB
    sX2, sA2, sB2 = 77, 49, 48
    sCa, sCb, sR3 = 47, 50, 51
    sL2 = 57
    nA, nB = (5, 0) if KV else (4, 3)
    pA, pB = (3840, 3840) if KV else (3072, 3840)
    lA, lB = (5120, 0) if KV else (4096, 3072)
    vWsrcC = 26
    sLc = 56

    e.label(f"L_L{typ}")
    e.stamp("start_real", True)
    e.stamp("start")
    e(f"v_lshrrev_b32 v{vT}, 3, v{vLane}")
    e(f"v_and_b32 v{vT+1}, 7, v{vLane}")
    e(f"v_lshrrev_b32 v{vT+2}, 1, v{vT}")
    e(f"v_xor_b32 v{vT+1}, v{vT+1}, v{vT+2}")
    e(f"v_xor_b32 v{vT+2}, 4, v{vT+1}")
    e(f"v_mul_u32_u24 v{vT}, 1280, v{vT}")
    e(f"v_lshl_add_u32 v{vXsrc}, v{vT+1}, 4, v{vT}")
    e(f"v_lshl_add_u32 v{vXsrc+1}, v{vT+2}, 4, v{vT}")
    e(f"v_add_u32 v{vXsrc+1}, {8*1280}, v{vXsrc+1}")
    e(f"v_add_u32 v{vXsrc+2}, {16*1280}, v{vXsrc}")
    e(f"v_add_u32 v{vXsrc+3}, {16*1280}, v{vXsrc+1}")
    e(f"s_lshl_b32 s{sT3}, s{sW}, 1")
    e(f"s_lshl_b32 s{sT0}, s{sI}, 2")
    e(f"s_add_u32 s{sT0}, s{sT0}, s{sT3}")
    e(f"s_mul_i32 s{sXoff}, s{sT0}, {32*1280}")
    e(f"s_add_u32 s{sXlim}, s{sXoff}, 1280")
    e(f"s_lshl_b32 s{sT0}, s{sRot}, 7")
    e(f"s_add_u32 s{sXoff}, s{sXoff}, s{sT0}")
    e(f"s_lshl_b32 s{sLx}, s{sT3}, 12")
    e(f"s_lshl_b32 s{sT1}, s{sRot}, 2")
    e(f"s_add_u32 s{sT1}, s{sT1}, s{sT3}")
    e(f"s_mul_i32 s{sWoffA}, s{sT1}, {16*pA}")
    e(f"s_mul_i32 s{sWoffB}, s{sT1}, {16*pB}")
    e(f"s_mul_i32 s{sLa}, s{sT3}, {lA}")
    e(f"s_mul_i32 s{sLb}, s{sT3}, {lB}")
    e(f"s_add_u32 s{sX2}, s{sXoff}, {32*1280}")
    e(f"v_mov_b32 v{vOOB}, {OOB}")

    def rowmajor_src(dst, n, div, magic, kind):
        for u in range(n):
            e(f"v_add_u32 v{vT}, {64*u}, v{vLane}")
            e(f"v_mul_u32_u24 v{vT+1}, {magic}, v{vT}")
            e(f"v_lshrrev_b32 v{vT+1}, 16, v{vT+1}")
            e(f"v_mul_u32_u24 v{vT+2}, {div}, v{vT+1}")
            e(f"v_sub_u32 v{vT+2}, v{vT}, v{vT+2}")
            e(f"v_cmp_lt_u32 vcc, 9, v{vT+2}")
            e(f"v_mul_u32_u24 v{vT+1}, 3840, v{vT+1}")
            e(f"v_lshl_add_u32 v{vT+1}, v{vT+2}, 4, v{vT+1}")
            if kind == "kv":
                e(f"v_cndmask_b32 v{vT+3}, v{vT+6}, v{vT+4}, vcc")
                e(f"v_cmp_lt_u32 vcc, 11, v{vT+2}")
                e(f"v_add_u32 v{vT+1}, s{sT0}, v{vT+1}")
                e(f"s_nop 0")
                e(f"v_cndmask_b32 v{vT+3}, v{vT+3}, v{vT+5}, vcc")
                e(f"v_add_u32 v{dst+u}, v{vT+1}, v{vT+3}")
            else:
                e(f"v_add_u32 v{vT+1}, s{sT0}, v{vT+1}")
                e(f"v_cndmask_b32 v{dst+u}, v{vT+1}, v{vOOB}, vcc")

    e(f"s_mul_i32 s{sT0}, s{sG}, 160")
    if KV:
        e(f"v_mov_b32 v{vT+4}, 2528")
        e(f"v_mov_b32 v{vT+5}, 2368")
        e(f"v_mov_b32 v{vT+6}, 1280")
        rowmajor_src(vWsrcA, 5, 20, 3277, "kv")
    else:
        rowmajor_src(vWsrcB, 3, 12, 5462, "q")
        e(f"v_bfe_u32 v{vT}, v{vLane}, 2, 3")
        e(f"v_mul_u32_u24 v{vT}, 3072, v{vT}")
        e(f"v_and_b32 v{vT+1}, 3, v{vLane}")
        e(f"v_lshl_add_u32 v{vT}, v{vT+1}, 4, v{vT}")
        e(f"v_lshl_add_u32 v{vT}, v{vHi}, 6, v{vT}")
        e(f"s_mul_i32 s{sT0}, s{sG}, 384")
        e(f"v_add_u32 v{vWsrcC}, s{sT0}, v{vT}")
        e(f"v_add_u32 v{vWsrcC+1}, {8*3072}, v{vWsrcC}")
        for u in range(4):
            e(f"v_add_u32 v{vWsrcA+u}, {(u // 2)*8*3072 + (u % 2)*128 + 128}, v{vWsrcC}")
    e("s_waitcnt lgkmcnt(0)")
    e.srds(["X", "WQKV", "W1", "WS"])
    e(f"s_add_u32 s{sA2}, s{sWoffA}, {16*pA}")
    e(f"s_add_u32 s{sB2}, s{sWoffB}, {16*pB}")
    e(f"s_lshl_b32 s{sLc}, s{sW}, 12")
    SW_A = S_WQKV if KV else S_W1
    stepA, stepB = 64*pA, 64*pB

    def g1_dmas(s):
        if s >= NS1:
            return []
        base = (s % 3) * SLOT1
        g = []
        doA = s < 10
        doB = (not KV) and (s == 0 or s >= 10)
        bB = MISC if s == 0 else base + Q2_OFF
        bC = base + (H2_OFF0 if s == 0 else WA_OFF)
        for k in range(2):
            for b in range(4):
                g.append([f"s_add_u32 m0, s{sLx}, {base + k*4096 + b*1024}", "s_nop 0",
                          (f"buffer_load_dwordx4 v{vXsrc+b}, s[{S_X}:{S_X+3}], s{[sXoff, sX2][k]} offen lds", ("st", s))])
            if doA:
                for u in range(nA):
                    g.append([f"s_add_u32 m0, s{sLa}, {base + WA_OFF + k*lA + u*1024}", "s_nop 0",
                              (f"buffer_load_dwordx4 v{vWsrcA+u}, s[{SW_A}:{SW_A+3}], s{[sWoffA, sA2][k]} offen lds", ("st", s))])
            if doB:
                for u in range(2):
                    g.append([f"s_add_u32 m0, s{sLc}, {bC + k*2048 + u*1024}", "s_nop 0",
                              (f"buffer_load_dwordx4 v{vWsrcC+u}, s[{S_W1}:{S_W1+3}], s{[sWoffA, sA2][k]} offen lds", ("st", s))])
                for u in range(nB):
                    g.append([f"s_add_u32 m0, s{sLb}, {bB + k*lB + u*1024}", "s_nop 0",
                              (f"buffer_load_dwordx4 v{vWsrcB+u}, s[{S_WQKV}:{S_WQKV+3}], s{[sWoffB, sB2][k]} offen lds", ("st", s))])
        adv = [f"s_add_u32 s{sXoff}, s{sXoff}, 128", f"s_cmp_ge_u32 s{sXoff}, s{sXlim}", f"s_cselect_b32 s{sTw}, 1280, 0",
               f"s_sub_u32 s{sXoff}, s{sXoff}, s{sTw}", f"s_add_u32 s{sX2}, s{sXoff}, {32*1280}"]
        for (do, so, s2, st, p) in ((True, sWoffA, sA2, stepA, pA), (s >= 10, sWoffB, sB2, stepB, pB)):
            if do:
                adv += [f"s_add_u32 s{so}, s{so}, {st}", f"s_cmp_ge_u32 s{so}, {10*st}", f"s_cselect_b32 s{sTw}, {10*st}, 0",
                        f"s_sub_u32 s{so}, s{so}, s{sTw}", f"s_add_u32 s{s2}, s{so}, {16*p}"]
        g[-1] = g[-1] + adv
        return g

    vPa, vTwo, vPb, vPm = 46, 47, 48, 49
    e.capture()
    partial_setup(e, KV)
    e(f"s_lshl_b32 s{sT3}, s{sW}, 1")
    e(f"s_mul_i32 s{sA0}, s{sT64}, 68")
    e(f"s_add_u32 s{sA0}, s{sA0}, s{sT3}")
    e(f"s_lshl_b32 s{sA0}, s{sA0}, 12")
    e(f"s_mul_i32 s{sB0}, s{sP}, 68")
    e(f"s_add_u32 s{sB0}, s{sB0}, s{sT3}")
    e(f"s_mul_i32 s{sB0}, s{sB0}, 10240")
    e(f"s_add_u32 s{sB0}, s{sB0}, {W2R_OFF + T0*1024}")
    e(f"s_mul_i32 s{sL2}, s{sT3}, {KB}")
    e.para()
    e(f"s_mov_b32 s{sCa}, 0")
    e(f"s_mov_b32 s{sCb}, 0")
    if KV:
        e.para()
        pr_addr(e, vPa, vT)
        e(f"v_mov_b32 v{vTwo}, 2")
        e.para()
        pq_addr(e, vT+2, vT)
        e(f"v_cmp_gt_u32 vcc, 16, v{vLane}")
        e(f"v_mov_b32 v{vT+3}, 1")
        e("s_nop 0")
        e(f"v_cndmask_b32 v{vPb}, v{vOOB}, v{vT+2}, vcc")
        e(f"v_cndmask_b32 v{vPm}, 0, v{vT+3}, vcc")
    setup = e.end_capture()
    d0 = g1_dmas(0)
    e.op(d0[:10])
    e.merge(d0[10:], setup)
    e.stamp("st0_issued")
    e.op(g1_dmas(1))
    e.stamp("st1_issued")

    def cursor(cur, s):
        return [f"s_add_u32 s{cur}, s{cur}, 1"]

    def a_dmas(s):
        base = G2S[s % 3]
        g = [f"s_lshl_b32 s{sA}, s{sCa}, 14", f"s_add_u32 s{sA}, s{sA}, s{sA0}"]
        for k in range(2):
            g += [f"s_add_u32 m0, s{sL2}, {base + k*KB}", "s_nop 0"]
            for m in range(4):
                g.append((f"buffer_load_dwordx4 v{[vL16, vL16b][k]}, s[{S_WS}:{S_WS+3}], s{sA} offen offset:{1024*m} sc1 lds", ("g2", s)))
        return g + cursor(sCa, s)

    def b_dmas(s):
        base = G2S[s % 3] + 4096
        g = [f"s_mul_i32 s{sB}, s{sCb}, {4*10240}", f"s_add_u32 s{sB}, s{sB}, s{sB0}"]
        for k in range(2):
            for nu in range(NT):
                if nu % 4 == 0:
                    g += [f"s_add_u32 m0, s{sL2}, {base + k*KB + nu*1024}", "s_nop 0"]
                g.append((f"buffer_load_dwordx4 v{[vL16, vL16b][nu // 4]}, s[{S_WS}:{S_WS+3}], s{sB} offen offset:{1024*(nu % 4)} sc1 lds", ("g2", s)))
            if k == 0:
                g.append(f"s_add_u32 s{sB}, s{sB}, 10240")
        return g + cursor(sCb, s)

    PV = partial_valu(KV)
    n2 = len(PV) // 2
    for s in range(NS1):
        e.c(f"--- G1 stage {s} ---")
        e.wait_vm({("st", s)}, lgkm=0)
        e("s_barrier")
        e.stamp(f"B{s}")
        dm = g1_dmas(s + 2) if s != 10 else []
        va = []
        if s == 0:
            for x in partial_reads(KV):
                e(x)
            e.op(dm.pop(0))
            e.op(dm.pop(0))
            e("s_waitcnt lgkmcnt(0)")
            va = PV[:n2]
        if s == 1:
            va = PV[n2:]
        e.merge(dm, va)
        if s == 1:
            partial_publish(e, KV)
        if s == 9:
            e("s_barrier")
            e.stamp("E1")
            e.op(g1_dmas(12))
        if s == 18:
            e.op(a_dmas(0))
            e.op(b_dmas(0))
        if s == 19:
            e.op(a_dmas(1))
    if KV:
        e.poll_issue(vPa, S_WS, "pr")
        e.poll_check(vPa, S_WS, vTwo, "pr")
        e.stamp("PR_ok")
        e.op(b_dmas(0))
        e.op(b_dmas(1))
        e.poll_issue(vPb, S_WS, "pq")
        if not AE:
            e("s_barrier")
            e.stamp("E3")
        e.poll_check(vPb, S_WS, vPm, "pq")
        e.stamp("PQ_ok")
        e.op(a_dmas(0))
        e.op(a_dmas(1))
        if AE:
            e("s_barrier")
            e.stamp("E3")
    else:
        e("s_barrier")
        e.stamp("E3")
        e.op(b_dmas(1))
        e.op(a_dmas(2))
        e.op(b_dmas(2))
    for s in range(17):
        e.c(f"--- G2 stage {s} ---")
        e.wait_vm({("g2", s)})
        e("s_barrier")
        e.stamp(f"G{s}")
        n = s + 2
        if (s >= 1 or KV) and n < 17:
            e.op(a_dmas(n))
            e.op(b_dmas(n))
    e.stamp("end")
    e.stamp("end_real", True)
    e.stamp_flush()
    e("s_endpgm")
    return e


def service_path(typ):
    KV = typ == "KV"
    e = Em("S" + typ)
    H = HR
    vOOB, vU, vD = H.vOOB, H.vU, H.vD
    vOne, vThree = 46, 31
    vPRa, vPQa, vPKa, vInA = 47, 48, 50, 51
    vN16_1, vN16_2, vNR, vInN = 52, 53, 54, 55
    vTid = 56
    vN16_3 = 49
    vN32_3 = 44
    vRs = 140
    vRPa = 150
    vPL = 152
    KA = 160
    vRD = 176
    vP2 = 220
    sSW = 49
    sRd = [77, 63]
    S_RP2 = 12
    sPs, sPc = 44, 45
    sSt = 64

    e.label(f"L_S{typ}")
    e.stamp("start_real", True)
    e.stamp("start")
    e(f"v_mov_b32 v{vOOB}, {OOB}")
    partial_setup(e, KV)
    e(f"s_sub_u32 s{sTw}, s{sW}, 2")
    e("s_waitcnt lgkmcnt(0)")
    e.srds(["WS", "DBG"])
    half = 0 if KV else 1
    for n in range(2):
        srd = [S_RP, S_RP2][n]
        e(f"s_lshl_b32 s{sT1}, s{sTw}, 5")
        e(f"s_add_u32 s{sT1}, s{sT1}, s{sT64}")
        if n:
            e(f"s_add_u32 s{sT1}, s{sT1}, 64")
        e(f"s_sub_u32 s76, s{sT1}, 48")
        e(f"s_mul_i32 s60, s76, 13108")
        e(f"s_lshr_b32 s60, s60, 16")
        e(f"s_mul_i32 s61, s60, 5")
        e(f"s_sub_u32 s61, s76, s61")
        e(f"s_lshl_b32 s79, s61, 1")
        e(f"s_cmp_lt_u32 s61, 3")
        e(f"s_cselect_b32 s{sT2}, 0, 1")
        e(f"s_sub_u32 s79, s79, s{sT2}")
        e(f"s_add_u32 s{sT2}, s79, 1")
        e(f"s_cmp_eq_u32 s61, 2")
        e(f"s_cselect_b32 s{sT2}, 9, s{sT2}")
        e(f"s_mul_i32 s60, s60, 10")
        e(f"s_add_u32 s79, s79, s60")
        e(f"s_add_u32 s{sT2}, s{sT2}, s60")
        e(f"s_lshr_b32 s76, s{sT1}, 2")
        e(f"s_mul_i32 s76, s76, 12")
        e(f"s_and_b32 s60, s{sT1}, 3")
        e(f"s_lshl_b32 s60, s60, 1")
        e(f"s_add_u32 s76, s76, s60")
        e(f"s_add_u32 s76, s76, 4")
        e(f"s_sub_u32 s60, s{sT1}, 32")
        e(f"s_lshr_b32 s60, s60, 1")
        e(f"s_mul_i32 s60, s60, 12")
        e(f"s_and_b32 s61, s{sT1}, 1")
        e(f"s_lshl_b32 s61, s61, 1")
        e(f"s_add_u32 s60, s60, s61")
        e(f"s_cmp_lt_u32 s{sT1}, 32")
        e(f"s_cselect_b32 s76, s76, s60")
        e(f"s_add_u32 s60, s76, 1")
        e(f"s_cmp_lt_u32 s{sT1}, 48")
        e(f"s_cselect_b32 s79, s76, s79")
        e(f"s_cselect_b32 s{sT2}, s60, s{sT2}")
        e(f"s_cselect_b32 s{srd}, s54, s48")
        e(f"s_cselect_b32 s{srd+1}, s55, s49")
        e(f"s_mov_b32 s{srd+2}, {640*1280}")
        e(f"s_cselect_b32 s{srd+2}, {1536*1280}, s{srd+2}")
        e(f"s_mov_b32 s{srd+3}, 0x00020000")
        e(f"s_mul_i32 s76, s{sP}, 320")
        e(f"s_add_u32 s76, s76, {160*half}")
        e(f"s_mul_i32 s79, s79, {16*1280}")
        e(f"s_mul_i32 s{sT2}, s{sT2}, {16*1280}")
        e(f"s_sub_u32 s{sT2}, s{sT2}, {16*1280}")
        e(f"s_add_u32 s79, s79, s76")
        e(f"s_add_u32 s{sT2}, s{sT2}, s76")
        e(f"s_mul_i32 s{sRd[n]}, s{sP}, 68")
        e(f"s_add_u32 s{sRd[n]}, s{sRd[n]}, s{sT1}")
        e(f"s_mul_i32 s{sRd[n]}, s{sRd[n]}, 10240")
        e(f"s_add_u32 s{sRd[n]}, s{sRd[n]}, {W2R_OFF + 5120*half}")
        e(f"s_cmp_lt_u32 s{sT1}, 68")
        e(f"s_cselect_b32 s79, s79, {OOB}")
        e(f"s_cselect_b32 s{sT2}, s{sT2}, {OOB}")
        e(f"s_cselect_b32 s{sRd[n]}, s{sRd[n]}, {OOB}")
        e(f"v_mov_b32 v{vT+3}, s79")
        e(f"v_mov_b32 v{vT+4}, s{sT2}")
        for u in range(5):
            e(f"v_add_u32 v{vU}, {64*u}, v{vLane}")
            e(f"v_mul_u32_u24 v{vT+1}, 6554, v{vU}")
            e(f"v_lshrrev_b32 v{vT+1}, 16, v{vT+1}")
            e(f"v_mul_u32_u24 v{vT+2}, 10, v{vT+1}")
            e(f"v_sub_u32 v{vT+2}, v{vU}, v{vT+2}")
            e(f"v_cmp_lt_u32 vcc, 15, v{vT+1}")
            e(f"v_mul_u32_u24 v{vT+1}, 1280, v{vT+1}")
            e(f"v_lshl_add_u32 v{vT+1}, v{vT+2}, 4, v{vT+1}")
            e(f"v_cndmask_b32 v{vT+5}, v{vT+3}, v{vT+4}, vcc")
            e(f"v_add_u32 v{vRs+5*n+u}, v{vT+1}, v{vT+5}")
    e(f"s_mov_b32 s{sSW}, s{sTw}")
    e(f"s_mul_i32 s{sLa}, s{sSW}, 10240")
    e(f"s_add_u32 s{sLa}, s{sLa}, {MISC}")
    e(f"v_bfe_u32 v{vU}, v{vLane}, 4, 1")
    e(f"v_bfe_u32 v{vT+1}, v{vLane}, 2, 2")
    e(f"v_lshl_add_u32 v{vU}, v{vU}, 2, v{vT+1}")
    e(f"v_lshl_add_u32 v{vU}, v{vHi}, 4, v{vU}")
    e(f"v_mul_u32_u24 v{vU}, 160, v{vU}")
    e(f"v_and_b32 v{vT+1}, 3, v{vLane}")
    e(f"v_lshl_add_u32 v{vU}, v{vT+1}, 3, v{vU}")
    e(f"v_add_u32 v{vRPa}, s{sLa}, v{vU}")
    e(f"v_subrev_u32 v{vTid}, 384, v0")
    e(f"v_mov_b32 v{vOne}, 1")
    e(f"v_mov_b32 v{vThree}, 3")
    e(f"v_cmp_gt_u32 vcc, 2, v{vTid}")
    e(f"v_lshlrev_b32 v{vT+1}, 7, v{vLane}")
    e(f"v_mov_b32 v{vT+3}, 128")
    e(f"v_cndmask_b32 v{vInA}, v{vOOB}, v{vT+1}, vcc")
    e(f"v_cndmask_b32 v{vInN}, 0, v{vT+3}, vcc")
    pq_addr(e, vT+2, vT)
    e(f"v_cmp_gt_u32 vcc, 16, v{vTid}")
    e(f"v_mov_b32 v{vT+3}, 2")
    e("s_nop 0")
    e(f"v_cndmask_b32 v{vPQa}, v{vOOB}, v{vT+2}, vcc")
    e(f"v_cndmask_b32 v{vN16_1}, 0, v{vOne}, vcc")
    e(f"v_cndmask_b32 v{vN16_2}, 0, v{vT+3}, vcc")
    e(f"v_cndmask_b32 v{vN16_3}, 0, v{vThree}, vcc")
    if not KV:
        pr_addr(e, vT+2, vT)
        e(f"v_cmp_gt_u32 vcc, 64, v{vTid}")
        e("s_nop 1")
        e(f"v_cndmask_b32 v{vPRa}, v{vOOB}, v{vT+2}, vcc")
        e(f"v_cndmask_b32 v{vNR}, 0, v{vT+3}, vcc")
    ncol = 160 if KV else 256
    e(f"v_lshlrev_b32 v{vT+1}, 2, v{vL31x4}")
    e(f"s_lshl_b32 s{sT0}, s{sSW}, 9")
    e(f"v_add_u32 v{vT+1}, s{sT0}, v{vT+1}")
    e(f"v_lshl_add_u32 v{vPL}, v{vHi}, 10, v{vT+1}")
    e(f"v_cmp_gt_u32 vcc, {ncol*4}, v{vT+1}")
    e(f"v_and_b32 v{vT+2}, 0x7f, v{vT+1}")
    e(f"s_mul_i32 s{sPs}, s{sI}, 10240")
    e(f"s_add_u32 s{sPs}, s{sPs}, {STP_OFF}")
    e(f"v_cndmask_b32 v{vT+3}, v{vT+2}, v{vT+1}, vcc")
    e(f"v_lshl_add_u32 v{vPL+1}, v{vHi}, 11, v{vT+3}")
    e(f"v_lshl_add_u32 v{vPL+4}, v{vHi}, 11, v{vT+2}")
    e(f"s_mul_i32 s{sPc}, s{sJ}, 20480")
    e(f"s_add_u32 s{sPc}, s{sPc}, {CSP_OFF}")
    e(f"v_lshlrev_b32 v{vPL+3}, 1, v{vT+1}")
    e(f"v_lshl_add_u32 v{vPL+3}, v{vHi}, 4, v{vPL+3}")
    e(f"v_add_u32 v{vPL+3}, {EXT_LDS}, v{vPL+3}")
    e(f"v_lshlrev_b32 v{vT+2}, 1, v{vT+2}")
    e(f"v_lshl_add_u32 v{vT+2}, v{vHi}, 4, v{vT+2}")
    e(f"v_add_u32 v{vPL+5}, {EXT_LDS + 2048}, v{vT+2}")
    e(f"v_lshrrev_b32 v{vT+1}, 3, v{vT+1}")
    e(f"v_add_u32 v{vPL+2}, v{vT+1}, v{vHi}")
    if not KV:
        e(f"s_lshl_b32 s{sT0}, s{sG}, 8")
        e(f"s_add_u32 s{sT0}, s{sT0}, {FLG_OFF + 96 + 4}")
        e(f"v_lshrrev_b32 v{vT+1}, 1, v{vLane}")
        e(f"v_lshlrev_b32 v{vT+1}, 11, v{vT+1}")
        e(f"v_and_b32 v{vT+3}, 1, v{vLane}")
        e(f"v_lshl_add_u32 v{vT+1}, v{vT+3}, 4, v{vT+1}")
        e(f"v_add_u32 v{vT+1}, s{sT0}, v{vT+1}")
        e(f"v_cndmask_b32 v{vPKa}, v{vT+1}, v{vOOB}, s[{sHIm}:{sHIm+1}]")
        e(f"v_cndmask_b32 v{vN32_3}, v{vThree}, 0, s[{sHIm}:{sHIm+1}]")
        for rnd in range(4):
            A1 = KA + 2*rnd
            A2 = A1 + 1
            e(f"v_add_u32 v{vT}, {128*rnd}, v{vTid}")
            e(f"v_mul_u32_u24 v{vT+1}, 3121, v{vT}")
            e(f"v_lshrrev_b32 v{vT+1}, 16, v{vT+1}")
            e(f"v_mul_u32_u24 v{vT+2}, 21, v{vT+1}")
            e(f"v_sub_u32 v{vT+2}, v{vT}, v{vT+2}")
            e(f"v_mul_u32_u24 v{vT+3}, 13108, v{vT+1}")
            e(f"v_lshrrev_b32 v{vT+3}, 16, v{vT+3}")
            e(f"v_mul_u32_u24 v{vT+4}, 20, v{vT+3}")
            e(f"v_add_u32 v{vT+4}, v{vT+4}, v{vT+2}")
            e(f"v_add_u32 v{vT+5}, 16, v{vT+4}")
            e(f"v_cmp_lt_u32 vcc, 63, v{vT+4}")
            e(f"v_add_u32 v{vT+3}, 64, v{vT+3}")
            e(f"v_lshlrev_b32 v{KA+8+rnd}, 4, v{vT}")
            e(f"v_cndmask_b32 v{vT+4}, v{vT+4}, v{vT+5}, vcc")
            e(f"v_cmp_eq_u32 vcc, 20, v{vT+2}")
            e(f"v_add_u32 v{vT+5}, 4, v{vT+3}")
            e("s_nop 0")
            e(f"v_cndmask_b32 v{vT+5}, v{vT+4}, v{vT+5}, vcc")
            e(f"v_cndmask_b32 v{vT+4}, v{vT+4}, v{vT+3}, vcc")
            e(f"v_lshrrev_b32 v{vT+2}, 2, v{vT+1}")
            e(f"v_lshlrev_b32 v{vT+2}, 5, v{vT+2}")
            e(f"v_and_b32 v{vT+3}, 1, v{vT+1}")
            e(f"v_lshl_add_u32 v{vT+2}, v{vT+3}, 4, v{vT+2}")
            e(f"v_and_b32 v{vT+3}, 2, v{vT+1}")
            e(f"v_lshl_add_u32 v{vT+2}, v{vT+3}, 2, v{vT+2}")
            e(f"v_add_u32 v{vT+2}, {KVT_LDS}, v{vT+2}")
            e(f"v_mad_u32_u24 v{A1}, v{vT+4}, s{sKVTP}, v{vT+2}")
            e(f"v_mad_u32_u24 v{A2}, v{vT+5}, s{sKVTP}, v{vT+2}")
        e(f"v_mov_b32 v{vT}, {KVT_LDS + 100*KVT_P}")
        e(f"v_cmp_gt_u32 vcc, 36, v{vTid}")
        e("s_nop 1")
        e(f"v_cndmask_b32 v{KA+6}, v{vT}, v{KA+6}, vcc")
        e(f"v_cndmask_b32 v{KA+7}, v{vT}, v{KA+7}, vcc")
        e(f"v_cndmask_b32 v{KA+11}, v{vOOB}, v{KA+11}, vcc")
    e.stamp("setup_done")

    NG = 2 if KV else 3
    PLI = []
    for k in range(5):
        PLI.append([f"s_add_u32 s{sT0}, s{sPs}, {k*2048}", f"buffer_load_dwordx4 {r4(vD+4*k)}, v{vPL}, s[{S_WS}:{S_WS+3}], s{sT0} offen sc1"])
        PLI.append([f"s_add_u32 s{sT0}, s{sPc}, {k*4096}", f"buffer_load_dwordx4 {r4(vD+20+4*k)}, v{vPL+1}, s[{S_WS}:{S_WS+3}], s{sT0} offen sc1"])
        if not KV:
            PLI.append(["s_nop 0", f"buffer_load_dwordx4 {r4(vD+40+4*k)}, v{vPL+4}, s[{S_WS}:{S_WS+3}], s{sT0} offen offset:1024 sc1"])

    def partial_loads(track, lo=0, hi=99):
        for (a_, ins) in PLI[lo:hi]:
            e(a_)
            if track:
                e.vmop(ins, "pl")
            else:
                e(ins)

    def partial_validate():
        regs = list(range(vD, vD+20*NG))
        e.wait_vm({"pl"})
        e(f"s_mov_b32 s{sSpin}, 0")
        e.label(f"L_pv{typ}")
        e(f"v_min_u32 v{vU}, v{regs[0]}, v{regs[1]}")
        e(f"v_min_u32 v{vU+1}, v{regs[2]}, v{regs[3]}")
        for k in range(4, len(regs), 4):
            e(f"v_min3_u32 v{vU}, v{vU}, v{regs[k]}, v{regs[k+1]}")
            e(f"v_min3_u32 v{vU+1}, v{vU+1}, v{regs[k+2]}, v{regs[k+3]}")
        e(f"v_min_u32 v{vU}, v{vU}, v{vU+1}")
        e(f"v_cmp_eq_u32 vcc, 0, v{vU}")
        e(f"s_add_u32 s{sSpin}, s{sSpin}, 1")
        e(f"s_cmp_lt_u32 s{sSpin}, 0x20000")
        e(f"s_cselect_b64 s[94:95], -1, 0")
        e(f"s_and_b64 vcc, vcc, s[94:95]")
        e(f"s_cbranch_vccz L_pvok{typ}")
        e("s_sleep 2")
        partial_loads(False)
        e("s_waitcnt vmcnt(0)")
        e(f"s_branch L_pv{typ}")
        e.label(f"L_pvok{typ}")

    def partial_finish():
        G = [vD + 20*k for k in range(NG)]
        D = G[0]
        for k in range(1, 5):
            for r in range(4):
                for g in G:
                    e(f"v_add_f32 v{g+r}, v{g+r}, v{g+4*k+r}")
        e("s_nop 1")
        for g in G:
            e(f"v_permlane32_swap_b32 v{g}, v{g+2}")
            e(f"v_permlane32_swap_b32 v{g+1}, v{g+3}")
        e("s_nop 1")
        e(f"v_add_f32 v{D}, v{D}, v{D+2}")
        e(f"v_add_f32 v{D+1}, v{D+1}, v{D+3}")
        CS = []
        for g in G[1:]:
            e(f"v_add_f32 v{g+4}, v{g}, v{g+2}")
            e(f"v_add_f32 v{g+12}, v{g+1}, v{g+3}")
            CS += [g+4, g+12]
        O = D + 4
        sp = []
        for c in CS:
            u, x = c + 4, c + 2
            sp.append([f"v_and_b32 v{u}, s{sHiMask}, v{c}", f"v_sub_f32 v{u}, v{c}, v{u}", f"v_lshrrev_b32 v{c}, 16, v{c}",
                       f"v_and_or_b32 v{x}, v{u}, s{sHiMask}, v{c}", f"v_and_b32 v{u+1}, s{sHiMask}, v{u}",
                       f"v_sub_f32 v{u+1}, v{u}, v{u+1}", f"v_lshrrev_b32 v{x+1}, 16, v{u+1}"])
        sp = [y for p in zip(*sp) for y in p]
        st = [f"v_mul_f32 v{vT+5}, {f32bits(1.0/640):#x}, v{D}", f"v_mul_f32 v{vT+4}, {f32bits(1.0/640):#x}, v{D+1}",
              f"v_fma_f32 v{vT+4}, -v{vT+5}, v{vT+5}, v{vT+4}", f"v_max_f32 v{vT+4}, 0, v{vT+4}",
              f"v_cvt_pk_bf16_f32 v{vT+2}, v{vT+5}, v{vT+4}", f"v_lshlrev_b32 v{vT+3}, 16, v{vT+2}",
              f"v_and_b32 v{vT+4}, s{sHiMask}, v{vT+2}", f"v_add_f32 v{vT+4}, {f32bits(1e-5):#x}, v{vT+4}",
              f"v_cvt_pk_bf16_f32 v{vT+4}, v{vT+4}, v{vT+4}", f"v_and_b32 v{vT+4}, s{sHiMask}, v{vT+4}",
              f"v_sqrt_f32 v{vT+4}, v{vT+4}", f"v_xor_b32 v{vT+2}, 0x80000000, v{vT+3}",
              f"v_cvt_pk_bf16_f32 v{vT+4}, v{vT+4}, v{vT+4}", f"v_and_b32 v{O+2}, s{sHiMask}, v{vT+4}",
              f"v_rcp_f32 v{O+1}, v{O+2}", f"v_lshrrev_b32 v{vT+4}, 16, v{vT+2}",
              f"v_mul_f32 v{O+3}, {f32bits(LOG2E):#x}, v{O+1}", f"v_or_b32 v{O}, v{vT+2}, v{vT+4}"]
        while st or sp:
            if st:
                e(st.pop(0))
            for _ in range(NG - 1):
                if sp:
                    e(sp.pop(0))
        e(f"v_lshrrev_b32 v{vT+1}, 5, v{vPL+2}")
        e(f"v_mul_u32_u24 v{vT+1}, 768, v{vT+1}")
        e(f"v_add_u32 v{vT+1}, {STAT_LDS}, v{vT+1}")
        e(f"v_and_b32 v{vT+3}, 31, v{vPL+2}")
        e(f"v_lshl_add_u32 v{vT+2}, v{vT+3}, 2, v{vT+1}")
        e(f"v_lshl_add_u32 v{vT+1}, v{vT+3}, 4, v{vT+1}")
        e(f"ds_write_b128 v{vT+1}, {r4(O)}")
        if KV:
            e(f"ds_write_b32 v{vT+2}, v{O+3} offset:512")
            e(f"ds_write_b32 v{vT+2}, v{O+1} offset:640")
        for n, c in enumerate(CS):
            e(f"ds_write_b64 v{[vPL+3, vPL+5][n // 2]}, v[{c+2}:{c+3}] offset:{8*(n % 2)}")

    def kv_atomics():
        e(f"v_lshlrev_b32 v{vU}, 2, v{vTid}")
        e(f"v_add_u32 v{vU+2}, 4096, v{vU}")
        e(f"v_add_u32 v{vU+3}, {13*512}, v{vU}")
        e(f"v_cmp_gt_u32 vcc, 16, v{vTid}")
        e(f"s_lshl_b32 s{sT1}, s{sG}, 13")
        e(f"s_add_u32 s{sT1}, s{sT1}, {KVA_OFF}")
        e(f"v_cndmask_b32 v{vU+3}, v{vOOB}, v{vU+3}, vcc")
        e("s_barrier")
        for k in range(14):
            for ww in range(4):
                e(f"ds_read_b32 v{vD+4*k+ww}, v{vU} offset:{CP_LDS+ww*6784+k*512}")
        for k in range(14):
            e(f"s_waitcnt lgkmcnt({min(15, 4*(13-k))})")
            b = vD + 4*k
            e(f"v_add_f32 v{b}, v{b}, v{b+1}")
            e(f"v_add_f32 v{b+2}, v{b+2}, v{b+3}")
            e(f"v_add_f32 v{b}, v{b}, v{b+2}")
            if k < 8:
                e.vmop(f"buffer_atomic_add_f32 v{b}, v{vU}, s[{S_WS}:{S_WS+3}], s{sT1} offen offset:{k*512}", "kva")
            elif k < 13:
                e.vmop(f"buffer_atomic_add_f32 v{b}, v{vU+2}, s[{S_WS}:{S_WS+3}], s{sT1} offen offset:{(k-8)*512}", "kva")
            else:
                e.vmop(f"buffer_atomic_add_f32 v{b}, v{vU+3}, s[{S_WS}:{S_WS+3}], s{sT1} offen", "kva")
        e.wait_vm({"kva"})
        e.flag_store(3, 4)
        e.stamp("kv_flag")

    def cap(fn):
        e.capture()
        fn()
        return [x for p in e.end_capture() for x in p]
    fin = cap(partial_finish)
    nf1 = 40

    def hard_check(vaddr, vneed, dst, name):
        e("s_waitcnt vmcnt(0)")
        e.vm = ["x"]
        e.poll_check(vaddr, S_WS, vneed, "x", dst=dst)
        e.stamp(name)

    def kv_step(idx, last):
        e(f"s_cmp_eq_u32 s{sSt}, 2")
        e(f"s_cbranch_scc1 L_kvd{idx}")
        e(f"s_getpc_b64 s[60:61]")
        e.label(f"L_kvr{idx}")
        e(f"s_add_u32 s60, s60, L_kvd{idx}-L_kvr{idx}")
        e(f"s_addc_u32 s61, s61, 0")
        e(f"s_cmp_eq_u32 s{sSt}, 1")
        e(f"s_cbranch_scc1 L_kvbuild")
        if last:
            hard_check(vPKa, vN32_3, vP2, "PK_late")
            for rnd in range(4):
                e(f"buffer_load_dwordx4 {r4(vD+4*rnd)}, v{KA+8+rnd}, s[{S_WS}:{S_WS+3}], s{sLb} offen sc1")
            e("s_branch L_kvbuild")
        else:
            e("s_branch L_kvpoll")
        e.label(f"L_kvd{idx}")
        e.vm = []

    PV = partial_valu(KV)
    n2 = len(PV) // 2
    for s in range(10 if KV else 20):
        e.c(f"--- G1 stage {s} ---")
        e("s_waitcnt lgkmcnt(0)")
        e("s_barrier")
        if s == 0:
            for x in partial_reads(KV):
                e(x)
            e("s_waitcnt lgkmcnt(0)")
            e.op(PV[:n2+3])
        if s == 1:
            for n in range(2):
                for u in range(5):
                    e(f"s_add_u32 m0, s{sLa}, {n*5120 + u*1024}")
                    e("s_nop 0")
                    e.vmop(f"buffer_load_dwordx4 v{vRs+5*n+u}, s[{[S_RP, S_RP2][n]}:{[S_RP, S_RP2][n]+3}], 0 offen lds", "rp")
            e.poll_issue(vInA, S_DBG, "pin")
            e.op(PV[n2+3:])
            partial_publish(e, KV)
            e.stamp("published")
        if s == 3:
            e.poll_check(vInA, S_DBG, vInN, "pin")
            for n in range(2):
                for nu in range(5):
                    for h in range(2):
                        d = vRD + 20*n + 4*nu + 2*h
                        e(f"ds_read_b64_tr_b16 v[{d}:{d+1}], v{vRPa} offset:{n*5120+32*nu+1280*h}")
        RS_, PL_, VA_ = SVC
        if s in (RS_, RS_+1):
            for (n, nu) in [[(0, 0), (0, 1), (0, 2), (1, 0), (1, 1), (1, 2)], [(0, 3), (0, 4), (1, 3), (1, 4)]][s-RS_]:
                if nu < 4:
                    e.vmop(f"buffer_store_dwordx4 {r4(vRD+20*n+4*nu)}, v{vL16}, s[{S_WS}:{S_WS+3}], s{sRd[n]} offen offset:{1024*nu} sc1", "rps")
                else:
                    e.vmop(f"buffer_store_dwordx4 {r4(vRD+20*n+4*nu)}, v{vL16b}, s[{S_WS}:{S_WS+3}], s{sRd[n]} offen sc1", "rps")
        if s == PL_:
            partial_loads(True, 0, PLN*NG)
        if s == PL_ + 1:
            partial_loads(True, PLN*NG, 5*NG)
        if s == RS_ + 4:
            e.flag_store(2)
        if s == VA_:
            partial_validate()
            e.stamp("validated")
        nch = 10 - VA_
        if s >= VA_ and s <= 9:
            k = s - VA_
            if nch == 2:
                part = fin[:nf1] if k == 0 else fin[nf1:]
            else:
                c1 = 25
                c2 = c1 + (len(fin) - c1 + 1) // 2 if nch >= 4 else len(fin)
                part = [fin[:c1], fin[c1:c2], fin[c2:], []][k]
            for x in part:
                e(x)
        if s == RS_ + 3 and e.pending("rps"):
            e.wait_vm({"rps"})
        if s == 9:
            e("s_waitcnt lgkmcnt(0)")
            e("s_barrier")
            e.stamp("E1")
        if not KV:
            if 10 <= s <= 11:
                for q in range(5*(s-10), 5*(s-10)+5):
                    e(f"s_add_u32 m0, s{sLa}, {q*1024}")
                    e("s_nop 0")
                    e.vmop(f"buffer_load_dwordx4 v{vOOB}, s[{S_WS}:{S_WS+3}], 0 offen lds", "kz")
            if s == 15:
                e.poll_issue(vPQa, S_WS, "pq", dst=vP2+3)
                e.poll_issue(vPRa, S_WS, "pr")
            if s == 17:
                e.poll_check(vPQa, S_WS, vN16_1, "pq", dst=vP2+3)
                e.poll_check(vPRa, S_WS, vNR, "pr")
                e.stamp("PQ_ok")
                e(f"s_mov_b32 s{sSt}, 0")
                e(f"s_lshl_b32 s{sLb}, s{sG}, 13")
                e(f"s_add_u32 s{sLb}, s{sLb}, {KVA_OFF}")
                e(f"s_lshl_b32 s{sT0}, s{sSW}, 2")
                e(f"s_add_u32 s{sT0}, s{sT0}, {OKW_LDS}")
                e(f"v_mov_b32 v{vP2+1}, s{sT0}")
                e(f"buffer_load_dword v{vP2}, v{vPKa}, s[{S_WS}:{S_WS+3}], 0 offen sc1")
            if s >= max(18, PK0):
                kv_step(s, False)
    if KV:
        kv_atomics()
    else:
        e("s_waitcnt lgkmcnt(0)")
        e("s_barrier")
        kv_step(20, False)
    for s in range(17):
        e.c(f"--- G2 stage {s} ---")
        e("s_waitcnt lgkmcnt(0)")
        e("s_barrier")
        if s == 5:
            hard_check(vPQa, vN16_2, vPoll, "PV_ok")
        if s == 9:
            hard_check(vPQa, vN16_3, vPoll, "PO_ok")
        if not KV and s <= 8:
            kv_step(21 + s, s == 8)
        if s in (4, 8):
            e(f"buffer_load_dword v{vPoll}, v{vPQa}, s[{S_WS}:{S_WS+3}], 0 offen sc1")
    e.stamp("end")
    e.stamp("end_real", True)
    e.stamp_flush()
    e("s_endpgm")
    if not KV:
        e.label("L_kvpoll")
        e("s_waitcnt vmcnt(0)")
        e(f"v_cmp_lt_u32 vcc, v{vP2}, v{vN32_3}")
        e("s_nop 4")
        e("s_cbranch_vccz L_kvgo")
        e(f"buffer_load_dword v{vP2}, v{vPKa}, s[{S_WS}:{S_WS+3}], 0 offen sc1")
        e("s_setpc_b64 s[60:61]")
        e.label("L_kvgo")
        for rnd in range(4):
            e(f"buffer_load_dwordx4 {r4(vD+4*rnd)}, v{KA+8+rnd}, s[{S_WS}:{S_WS+3}], s{sLb} offen sc1")
        e(f"s_mov_b32 s{sSt}, 1")
        e("s_setpc_b64 s[60:61]")
        e.label("L_kvbuild")
        e(f"s_mov_b32 s{sSt}, 2")
        e("s_waitcnt vmcnt(0)")
        for rnd in range(4):
            b = vD + 4*rnd
            e(f"v_cvt_pk_bf16_f32 v{vD+16+2*rnd}, v{b}, v{b+1}")
            e(f"v_cvt_pk_bf16_f32 v{vD+17+2*rnd}, v{b+2}, v{b+3}")
            e(f"ds_write_b64 v{KA+2*rnd}, v[{vD+16+2*rnd}:{vD+17+2*rnd}]")
            e(f"ds_write_b64 v{KA+1+2*rnd}, v[{vD+16+2*rnd}:{vD+17+2*rnd}]")
        e(f"ds_write_b32 v{vP2+1}, v{vOne}")
        e("s_setpc_b64 s[60:61]")
    e.label(f"L_S{typ}_end")
    return e


def gen():
    e = Em("top")
    K = NAME + "_kernel"
    e.L.append(f".globl {K}\n.p2align 8\n.type {K},@function\n{K}:")
    e("s_load_dwordx4 s[44:47], s[0:1], 0")
    e("s_load_dwordx2 s[48:49], s[0:1], 16")
    e("s_load_dwordx4 s[52:55], s[0:1], 32")
    e("s_load_dwordx2 s[50:51], s[0:1], 48")
    e("s_load_dwordx2 s[56:57], s[0:1], 56")
    e("s_load_dwordx2 s[58:59], s[0:1], 64")
    e("s_cmp_ge_u32 s2, 256")
    e("s_cbranch_scc1 L_exit")
    e(f"v_and_b32 v{vLane}, 63, v0")
    e(f"v_lshrrev_b32 v{vT}, 6, v0")
    e(f"v_lshrrev_b32 v{vHi}, 5, v{vLane}")
    e(f"v_readfirstlane_b32 s{sT3}, v{vT}")
    e(f"v_and_b32 v{vL31x4}, 31, v{vLane}")
    e(f"v_lshlrev_b32 v{vL31x4}, 2, v{vL31x4}")
    if STAMP:
        e(f"v_mov_b32 v{vStamp}, 0")
    e(f"s_and_b32 s{sT0}, s2, 1")
    e(f"s_lshl_b32 s{sT0}, s{sT0}, 3")
    e(f"s_bfe_u32 s{sT2}, s2, 0x30003")
    e(f"s_add_u32 s{sI}, s{sT0}, s{sT2}")
    e(f"s_bfe_u32 s{sT0}, s2, 0x20001")
    e(f"s_lshl_b32 s{sT0}, s{sT0}, 2")
    e(f"s_lshr_b32 s{sT1}, s2, 6")
    e(f"s_add_u32 s{sJ}, s{sT0}, s{sT1}")
    e(f"s_lshr_b32 s{sG}, s{sJ}, 1")
    e(f"s_and_b32 s{sT0}, s2, 7")
    e(f"s_lshl_b32 s{sT0}, s{sT0}, 2")
    e(f"s_bfe_u32 s{sT64}, s2, 0x20003")
    e(f"s_add_u32 s{sT64}, s{sT64}, s{sT0}")
    e(f"s_bfe_u32 s{sP}, s2, 0x10005")
    e(f"s_and_b32 s{sT0}, s{sJ}, 2")
    e(f"s_or_b32 s{sP}, s{sP}, s{sT0}")
    e(f"s_and_b32 s{sW}, s{sT3}, 3")
    e(f"s_lshr_b32 s{sRole}, s{sT3}, 2")
    e(f"s_mul_i32 s{sRot}, s{sJ}, 3")
    e(f"s_add_u32 s{sRot}, s{sRot}, s{sI}")
    e(f"s_mul_i32 s{sT2}, s{sRot}, 205")
    e(f"s_lshr_b32 s{sT2}, s{sT2}, 11")
    e(f"s_mul_i32 s{sT2}, s{sT2}, 10")
    e(f"s_sub_u32 s{sRot}, s{sRot}, s{sT2}")
    e(f"s_lshl_b32 s{sFlag}, s{sI}, 4")
    e(f"s_add_u32 s{sFlag}, s{sFlag}, s{sJ}")
    e(f"s_lshl_b32 s{sFlag}, s{sFlag}, 3")
    e(f"s_add_u32 s{sFlag}, s{sFlag}, s{sT3}")
    e(f"s_lshl_b32 s{sFlag}, s{sFlag}, 4")
    e(f"s_add_u32 s{sFlag}, s{sFlag}, {FLG_OFF}")
    e(f"v_mov_b32 v{vT}, {OOB}")
    e(f"v_cmp_eq_u32 vcc, 0, v{vLane}")
    e(f"v_lshlrev_b32 v{vL16}, 4, v{vLane}")
    e(f"v_add_u32 v{vL16b}, 4096, v{vL16}")
    e(f"v_cndmask_b32 v{vFl0}, v{vT}, 0, vcc")
    e(f"s_mov_b32 s{sKVTP}, 176")
    e(f"s_mov_b32 s{sC}, {f32bits(1e-6/LN2):#x}")
    e(f"s_mov_b32 s{sLn2}, {f32bits(LN2):#x}")
    e(f"s_mov_b32 s{sHiMask}, 0xffff0000")
    e(f"s_mov_b32 s{sHIm}, 0")
    e(f"s_mov_b32 s{sHIm+1}, -1")
    e(f"s_mov_b32 s{sL16m}, 0xffff0000")
    e(f"s_mov_b32 s{sL16m+1}, 0xffff0000")
    e(f"s_and_b32 s{sT0}, s{sJ}, 1")
    e(f"s_lshl_b32 s{sT0}, s{sT0}, 2")
    e(f"s_lshr_b32 s{sT1}, s{sT3}, 1")
    e(f"s_add_u32 s{sT0}, s{sT0}, s{sT1}")
    e(f"s_cmp_eq_u32 s{sT0}, 2")
    e("s_cbranch_scc1 L_LKV")
    e(f"s_cmp_eq_u32 s{sT0}, 6")
    e("s_cbranch_scc1 L_LQ")
    e(f"s_cmp_eq_u32 s{sT0}, 3")
    e("s_cbranch_scc1 L_SKV")
    e(f"s_cmp_eq_u32 s{sT0}, 7")
    e("s_cbranch_scc1 L_SQ")
    e(f"s_cmp_ge_u32 s{sT0}, 4")
    e("s_cbranch_scc1 L_CQ")
    body = "".join(p.text() for p in [compute_path("KV"), loader_path("KV"), service_path("KV"),
                                      compute_path("Q"), loader_path("Q"), service_path("Q")])
    print(SCHED, file=sys.stderr)
    assert SCHED["Qh_flag"] <= 16 and SCHED["Qh2_flag"] <= 4
    return e.text() + body + "L_exit:\n    s_endpgm\n"


def main():
    K = NAME + "_kernel"
    out = ["; generated by gen/gen16.py -- LN + linear attention + FFN, one persistent kernel (256 workgroups x 8 waves)",
           "; @launch grid=(256,1,1) block=(512,1,1) lds=163840",
           '.amdgcn_target "amdgcn-amd-amdhsa--gfx950"', ".text", gen(),
           '.section .rodata,"a"', ".p2align 6",
           f""".amdhsa_kernel {K}
  .amdhsa_next_free_vgpr 256
  .amdhsa_next_free_sgpr 102
  .amdhsa_accum_offset 256
  .amdhsa_group_segment_fixed_size 0
  .amdhsa_kernarg_size 72
  .amdhsa_user_sgpr_count 2
  .amdhsa_user_sgpr_kernarg_segment_ptr 1
  .amdhsa_system_sgpr_workgroup_id_x 1
.end_amdhsa_kernel
"""]
    return "\n".join(out)


if __name__ == "__main__":
    p = sys.argv[1] if len(sys.argv) > 1 else f"cdna_kernels/{NAME}.s"
    open(p, "w").write(main())
    print("wrote", p)
```
